```python
import torch

def _softmax(x, axis=-1):
    return torch.softmax(x, dim=axis)
def _gelu(x):
    return torch.nn.functional.gelu(x, approximate="tanh")
def _silu(x):
    return torch.nn.functional.silu(x)
def _sigmoid(x):
    return torch.sigmoid(x)
def _layernorm(x, axis=-1, eps=1e-5):
    m = x.mean(dim=axis, keepdim=True)
    v = x.var(dim=axis, keepdim=True, unbiased=False)
    return (x - m) / torch.sqrt(v + eps)
def _scatter_add(tgt, idx, src, axis=0):
    return tgt.clone().index_add_(axis, idx, src)
def _segment_sum(src, seg, n):
    out = torch.zeros((n,) + src.shape[1:], dtype=src.dtype)
    return out.index_add_(0, seg, src)
def _pad(x, pw):
    flat = tuple(v for pair in reversed(pw) for v in pair)
    return torch.nn.functional.pad(x, flat)

kernel_name = 'recurrent_scan__spectral_fnet__swiglu_ffn__prompt'

def setup_inputs():

    _w = (lambda a: (lambda t: t.to(torch.bfloat16) if t.is_floating_point() else t)(torch.as_tensor(a)))
    def _A_setup():
        B, S, D = 1, 2048, 512
        ns = torch.arange(S)[:, None] * torch.arange(S)[None, :]
        nd = torch.arange(D)[:, None] * torch.arange(D)[None, :]
        Ws_re = torch.cos(-2.0 * torch.pi * ns / S).to(float)
        Ws_im = torch.sin(-2.0 * torch.pi * ns / S).to(float)
        Wd_re = torch.cos(-2.0 * torch.pi * nd / D).to(float)
        Wd_im = torch.sin(-2.0 * torch.pi * nd / D).to(float)
        return {
            "x": _w((lambda *s: torch.randn(*s, dtype=torch.bfloat16) * 0.05)(B, S, D)),
            "dft_seq_re": _w(Ws_re),
            "dft_seq_im": _w(Ws_im),
            "dft_hid_re": _w(Wd_re),
            "dft_hid_im": _w(Wd_im),
        }
    _A_in = _A_setup()

    def _B_setup():
        B, S, D, F = 1, 2048, 512, 1792
        return {
            "x": _w((lambda *s: torch.randn(*s, dtype=torch.bfloat16) * 0.05)(B, S, D)),
            "w_gate": _w((lambda *s: torch.randn(*s, dtype=torch.bfloat16) * 0.05)(D, F)),
            "w_up": _w((lambda *s: torch.randn(*s, dtype=torch.bfloat16) * 0.05)(D, F)),
            "w_down": _w((lambda *s: torch.randn(*s, dtype=torch.bfloat16) * 0.05)(F, D)),
        }
    _B_in = _B_setup()

    return {
        "A_x": _A_in["x"],
        "A_dft_seq_re": _A_in["dft_seq_re"],
        "A_dft_seq_im": _A_in["dft_seq_im"],
        "A_dft_hid_re": _A_in["dft_hid_re"],
        "A_dft_hid_im": _A_in["dft_hid_im"],
        "B_x": _B_in["x"],
        "B_w_gate": _B_in["w_gate"],
        "B_w_up": _B_in["w_up"],
        "B_w_down": _B_in["w_down"],
    }

def reference(A_x, A_dft_seq_re, A_dft_seq_im, A_dft_hid_re, A_dft_hid_im, B_x, B_w_gate, B_w_up, B_w_down):
    def _A_ref(x, dft_seq_re, dft_seq_im, dft_hid_re, dft_hid_im):
        a = torch.einsum("bsd,ed->bse", x, dft_hid_re)
        b = torch.einsum("bsd,ed->bse", x, dft_hid_im)
        y = torch.einsum("ts,bse->bte", dft_seq_re, a) - torch.einsum("ts,bse->bte", dft_seq_im, b)
        return y

    def _B_ref(x, w_gate, w_up, w_down):
        g = _silu(x @ w_gate)
        u = x @ w_up
        return (g * u) @ w_down

    x = A_x
    xn = _layernorm(x, axis=-1)
    s = _A_ref(xn, A_dft_seq_re, A_dft_seq_im, A_dft_hid_re, A_dft_hid_im)
    g = _silu(_B_ref(xn, B_w_gate, B_w_up, B_w_down))
    return x + s * g
```

```python
import sys
NAME='recurrent_scan__spectral_fnet__swiglu_ffn__prompt'
LOG2E=1.4426950408889634
import struct
def f2u(x): return struct.unpack('<I',struct.pack('<f',x))[0]

WS_H=0
WS_G=0x700000
WS_ST=0x900000
WS_CS=0x904000
WS_FL=0x920000
WS_END=0x930000

class Asm:
    def __init__(self): self.l=[]; self.n=0
    def __call__(self,s):
        for line in s.split('\n'):
            line=line.strip()
            if line: self.l.append(('' if line.endswith(':') or line.startswith('.') or line.startswith(';') else '    ')+line)
    def lab(self,b): self.n+=1; return f"L_{b}_{self.n}"
    def text(self): return '\n'.join(self.l)+'\n'

def kd(name,vgpr,sgpr,accum):
    return f""".amdhsa_kernel {name}
  .amdhsa_next_free_vgpr {vgpr}
  .amdhsa_next_free_sgpr {sgpr}
  .amdhsa_accum_offset {accum}
  .amdhsa_group_segment_fixed_size 0
  .amdhsa_kernarg_size 96
  .amdhsa_user_sgpr_count 2
  .amdhsa_user_sgpr_kernarg_segment_ptr 1
  .amdhsa_system_sgpr_workgroup_id_x 1
  .amdhsa_float_denorm_mode_32 3
.end_amdhsa_kernel
"""
def kbegin(a,name): a(f".globl {name}\n.p2align 8\n.type {name},@function\n{name}:")
def srd(a,d,base,nbytes):
    a(f"s_mov_b32 s{d}, s{base}\ns_mov_b32 s{d+1}, s{base+1}\ns_mov_b32 s{d+2}, {nbytes}\ns_mov_b32 s{d+3}, 0x00020000")
def vr(b,n): return f"v[{b}:{b+n-1}]" if n>1 else f"v{b}"
MF="v_mfma_f32_16x16x32_bf16"

P_X,P_HRE,P_HIM,P_WG,P_WU,P_WD,P_OUT,P_DBG,P_WS=32,38,40,44,46,48,50,52,54
SX,SB0,SB1,SWS,SWD,SOUT=8,12,16,20,24,28
S_WAVE=56; S_I=57; S_J=58; S_T0=60
VL=255

def prologue(a,endlab):
    a(f"s_cmp_ge_u32 s2, 256\ns_cbranch_scc1 {endlab}")
    a("s_load_dwordx16 s[32:47], s[0:1], 0\ns_load_dwordx8 s[48:55], s[0:1], 64")
    a(f"v_lshrrev_b32 v1, 6, v0\nv_and_b32 v{VL}, 63, v0\nv_readfirstlane_b32 s{S_WAVE}, v1")
    a("s_waitcnt lgkmcnt(0)")
    srd(a,SX,P_X,2048*512*2)
    srd(a,SWS,P_WS,WS_END)

def stats_colsum(a):
    skip=a.lab('nocs')
    a(f"s_cmp_ge_u32 s2, 224\ns_cbranch_scc1 {skip}")
    a(f"""
    s_lshr_b32 s60, s2, 2
    s_and_b32 s61, s2, 3
    s_cmp_ge_u32 s60, 28
    s_cselect_b32 s64, s{P_WU}, s{P_WG}
    s_cselect_b32 s65, s{P_WU+1}, s{P_WG+1}
    s_cselect_b32 s62, 28, 0
    s_mov_b32 s66, {512*1792*2}
    s_mov_b32 s67, 0x00020000
    s_sub_u32 s62, s60, s62
    s_lshl_b32 s62, s62, 7
    s_mul_i32 s63, s61, {128*3584}
    s_add_u32 s62, s62, s63
    v_lshrrev_b32 v1, 3, v{VL}
    v_mul_u32_u24 v1, 3584, v1
    v_and_b32 v2, 7, v{VL}
    v_lshl_add_u32 v1, v2, 4, v1
    """)
    for n in range(16):
        a(f"buffer_load_dwordx4 {vr(16+4*n,4)}, v1, s[64:67], s62 offen")
        if n<15: a(f"s_add_u32 s62, s62, {8*3584}")
    a(f"""
    v_and_b32 v2, 15, v{VL}
    v_and_b32 v3, 1, v2
    v_lshlrev_b32 v3, 4, v3
    v_mov_b32 v8, 0x3f80
    v_lshlrev_b32 v3, v3, v8
    v_lshrrev_b32 v2, 1, v2
    """)
    for p in range(4):
        a(f"v_cmp_eq_u32 vcc, {p}, v2\ns_nop 1\nv_cndmask_b32 v{4+p}, 0, v3, vcc")
    a(f"""
    s_mul_i32 s61, s61, {3584*4}
    s_lshl_b32 s60, s60, 8
    s_add_u32 s60, s60, s61
    s_add_u32 s60, s60, {WS_CS}
    v_and_b32 v2, 7, v{VL}
    v_lshlrev_b32 v2, 5, v2
    v_and_b32 v3, 16, v{VL}
    v_add_u32 v2, v2, v3
    """)
    for n in range(16):
        a(f"s_waitcnt vmcnt({15-n})")
        a(f"{MF} v[8:11], v[4:7], {vr(16+4*n,4)}, {'0' if n==0 else 'v[8:11]'}")
    a("s_nop 7\ns_nop 1")
    for j in range(4):
        a(f"v_add_f32_dpp v{12+j}, v{8+j}, v{8+j} row_ror:8 row_mask:0xf bank_mask:0xf")
    a(f"s_mov_b64 exec, 0x00ff00ff")
    a(f"buffer_store_dwordx4 v[12:15], v2, s[{SWS}:{SWS+3}], s60 offen sc1")
    a("s_mov_b64 exec, -1")
    a(f"{skip}:")

def stats_rows(a):
    a(f"""
    s_sub_u32 s60, s{S_WAVE}, 1
    s_lshr_b32 s61, s2, 3
    s_and_b32 s62, s2, 7
    s_lshl_b32 s63, s61, 1
    s_add_u32 s63, s63, s60
    s_lshl_b32 s64, s62, 8
    s_add_u32 s63, s63, s64
    s_lshl_b32 s63, s63, 10
    v_lshrrev_b32 v1, 4, v{VL}
    v_and_b32 v2, 15, v{VL}
    v_lshlrev_b32 v2, 4, v2
    v_lshl_add_u32 v2, v1, 16, v2
    """)
    for p in range(4):
        a(f"buffer_load_dwordx4 {vr(16+4*p,4)}, v2, s[{SX}:{SX+3}], s63 offen offset:{256*p}")
    a(f"""
    s_lshl_b32 s61, s61, 9
    s_lshl_b32 s62, s62, 6
    s_add_u32 s61, s61, s62
    s_lshl_b32 s60, s60, 3
    s_add_u32 s61, s61, s60
    s_add_u32 s61, s61, {WS_ST}
    v_lshlrev_b32 v1, 4, v1
    v_mov_b32 v3, 0x3f803f80
    v_mov_b32 v4, 0
    v_mov_b32 v5, 0
    v_mov_b32 v6, 0x00003f80
    v_mov_b32 v7, 0x3f800000
    """)
    for p in range(4):
        a(f"s_waitcnt vmcnt({3-p})")
        for r in range(4):
            a(f"v_dot2c_f32_bf16 v{4+(r&1)}, v{16+4*p+r}, v3")
    a("s_nop 2\nv_add_f32 v4, v4, v5")
    def red(v):
        for s in (8,4,2,1):
            a(f"s_nop 1\nv_add_f32_dpp v{v}, v{v}, v{v} row_ror:{s} row_mask:0xf bank_mask:0xf")
    red(4)
    a(f"v_mul_f32 v4, {hex(f2u(-1.0/512))}, v4")
    a("v_mov_b32 v8, 0\nv_mov_b32 v9, 0")
    for p in range(4):
        for r in range(4):
            a(f"v_dot2_f32_bf16 v{32+2*r}, v{16+4*p+r}, v6, v4\nv_dot2_f32_bf16 v{33+2*r}, v{16+4*p+r}, v7, v4")
        for r in range(8):
            a(f"v_fmac_f32 v{8+(r&1)}, v{32+r}, v{32+r}")
    a("v_add_f32 v8, v8, v9")
    red(8)
    a(f"""
    v_mul_f32 v8, {hex(f2u(1.0/512))}, v8
    v_cvt_pk_bf16_f32 v8, v8, v4
    v_and_b32 v10, 0xffff0000, v8
    v_lshlrev_b32 v8, 16, v8
    v_add_f32 v8, {hex(f2u(1e-5))}, v8
    v_cvt_pk_bf16_f32 v8, v8, v8
    v_lshlrev_b32 v8, 16, v8
    v_sqrt_f32 v8, v8
    s_nop 0
    v_cvt_pk_bf16_f32 v8, v8, v8
    v_lshlrev_b32 v11, 16, v8
    s_mov_b32 exec_lo, 0x00010001
    s_mov_b32 exec_hi, 0x00010001
    buffer_store_dwordx2 v[10:11], v1, s[{SWS}:{SWS+3}], s61 offen sc1
    s_mov_b64 exec, -1
    """)

def kernel_stats(a):
    name='st_kernel'
    kbegin(a,name)
    end=a.lab('end')
    prologue(a,end)
    l1=a.lab('w1')
    a(f"s_cmp_lg_u32 s{S_WAVE}, 0\ns_cbranch_scc1 {l1}")
    stats_colsum(a)
    a(f"s_branch {end}\n{l1}:")
    a(f"s_cmp_eq_u32 s{S_WAVE}, 3\ns_cbranch_scc1 {end}")
    stats_rows(a)
    a(f"{end}:\ns_endpgm")
    return name

SLOT=49152
L_STAT=3*SLOT
L_RSTD=L_STAT+2048
L_CS=L_RSTD+512
LDS1=L_CS+1024

def tile_map(a,mapping):
    a("s_and_b32 s60, s2, 7\ns_lshr_b32 s61, s2, 3")
    if mapping=='2x16':
        a(f"s_lshl_b32 s{S_I}, s60, 1\ns_and_b32 s62, s61, 1\ns_add_u32 s{S_I}, s{S_I}, s62\ns_lshr_b32 s{S_J}, s61, 1")
    elif mapping=='8x4':
        a(f"s_and_b32 s{S_I}, s60, 1\ns_lshl_b32 s{S_I}, s{S_I}, 3\ns_and_b32 s62, s61, 7\ns_add_u32 s{S_I}, s{S_I}, s62")
        a(f"s_lshr_b32 s{S_J}, s60, 1\ns_lshl_b32 s{S_J}, s{S_J}, 2\ns_lshr_b32 s62, s61, 3\ns_add_u32 s{S_J}, s{S_J}, s62")
    elif mapping=='4x8':
        a(f"s_and_b32 s{S_I}, s60, 3\ns_lshl_b32 s{S_I}, s{S_I}, 2\ns_and_b32 s62, s61, 3\ns_add_u32 s{S_I}, s{S_I}, s62")
        a(f"s_lshr_b32 s{S_J}, s60, 2\ns_lshl_b32 s{S_J}, s{S_J}, 3\ns_lshr_b32 s62, s61, 2\ns_add_u32 s{S_J}, s{S_J}, s62")

def token_row(a,spec,vt,vd,tmp):
    if not spec:
        a(f"v_and_b32 v{vd}, 63, v{vt}\nv_lshlrev_b32 v{vd}, 5, v{vd}\nv_lshrrev_b32 v{tmp}, 6, v{vt}\ns_lshl_b32 s62, s{S_I}, 1\nv_add3_u32 v{vd}, v{vd}, v{tmp}, s62")
    else:
        a(f"v_and_b32 v{vd}, 31, v{vt}\nv_lshlrev_b32 v{vd}, 6, v{vd}\nv_lshrrev_b32 v{tmp}, 5, v{vt}\ns_lshl_b32 s62, s{S_I}, 2\nv_add3_u32 v{vd}, v{vd}, v{tmp}, s62")

def loader1(a,cfg):
    spec=a.lab('lspec'); join=a.lab('ljoin')
    a(f"s_sub_u32 s74, s{S_WAVE}, 4")
    a(f"v_lshrrev_b32 v1, 3, v{VL}\nv_and_b32 v2, 7, v{VL}\ns_lshl_b32 s75, s74, 5")
    a(f"s_cmp_ge_u32 s{S_J}, 14\ns_cbranch_scc1 {spec}")
    for sp in (False,True):
        if sp: a(f"{spec}:")
        for p in range(4):
            a(f"v_add3_u32 v3, v1, s75, {8*p}")
            a(f"v_bfe_u32 v4, v3, 1, 3\nv_xor_b32 v4, v4, v2\nv_lshlrev_b32 v4, 4, v4")
            token_row(a,sp,3,5,6)
            a(f"v_lshl_add_u32 v{10+p}, v5, 10, v4")
            if sp:
                a(f"s_sub_u32 s62, s{S_J}, 14\ns_lshl_b32 s62, s62, 7\ns_add_u32 s62, s62, 1\nv_add_u32 v5, s62, v3\nv_lshl_add_u32 v{14+p}, v5, 10, v4")
        for h in range(2):
            a(f"v_add_u32 v3, {64*h}, v{VL}")
            token_row(a,sp,3,5,6)
            a(f"v_bfe_u32 v6, v5, 1, 5\nv_lshlrev_b32 v6, 6, v6\nv_lshrrev_b32 v7, 6, v5\nv_lshl_add_u32 v6, v7, 1, v6\nv_and_b32 v7, 1, v5\nv_add_u32 v6, v6, v7\nv_lshlrev_b32 v{18+h}, 3, v6")
        if not sp:
            srd(a,SB0,P_WG,512*1792*2); srd(a,SB1,P_WU,512*1792*2)
            a(f"v_lshrrev_b32 v3, 4, v{VL}\nv_and_b32 v4, 15, v{VL}\ns_lshl_b32 s62, s74, 4\ns_lshl_b32 s63, s{S_J}, 8")
            for p in range(4):
                a(f"v_or_b32 v5, {(p>>1)<<2}, v3\nv_lshlrev_b32 v5, 1, v5\nv_xor_b32 v5, v5, v4\nv_lshl_add_u32 v5, v5, 4, s63")
                a(f"v_add3_u32 v6, v3, s62, {4*p}\nv_mul_u32_u24 v6, 3584, v6\nv_add_u32 v{14+p}, v5, v6")
            a(f"s_mov_b32 s72, {64*3584}\ns_branch {join}")
        else:
            srd(a,SB0,P_HRE,512*512*2); srd(a,SB1,P_HIM,512*512*2)
            a("s_mov_b32 s72, 128")
    a(f"{join}:")
    a("s_lshl_b32 s73, s74, 12")
    if cfg.get('rot'):
        a(f"s_add_u32 s76, s{S_I}, s{S_J}\ns_and_b32 s76, s76, 7")
    else:
        a("s_mov_b32 s76, 0")
    def issue(c):
        slot=c%3
        a("s_lshl_b32 s70, s76, 7\ns_mul_i32 s71, s76, s72\ns_add_u32 s76, s76, 1\ns_and_b32 s76, s76, 7")
        for p in range(4):
            a(f"s_add_u32 m0, s73, {slot*SLOT+p*1024}\ns_nop 0\nbuffer_load_dwordx4 v{10+p}, s[{SX}:{SX+3}], s70 offen lds")
            a(f"s_add_u32 m0, s73, {slot*SLOT+16384+p*1024}\ns_nop 0\nbuffer_load_dwordx4 v{14+p}, s[{SB0}:{SB0+3}], s71 offen lds")
            a(f"s_add_u32 m0, s73, {slot*SLOT+32768+p*1024}\ns_nop 0\nbuffer_load_dwordx4 v{14+p}, s[{SB1}:{SB1+3}], s71 offen lds")
    for c in range(3): issue(c)
    for c in range(7):
        n={0:24}.get(c,12)
        a(f"s_waitcnt vmcnt({n})\ns_barrier")
        if 1<=c<=5: issue(c+2)
    w1=a.lab('lw1'); done=a.lab('ldone'); none=a.lab('lnone')
    a(f"s_cmp_lg_u32 s74, 0\ns_cbranch_scc1 {w1}")
    a(f"s_mov_b32 s62, {WS_ST}")
    for h in range(2):
        a(f"buffer_load_dwordx2 v[{20+4*h}:{21+4*h}], v{18+h}, s[{SWS}:{SWS+3}], s62 offen sc1")
    a(f"v_lshlrev_b32 v1, 4, v{VL}\nv_add_u32 v1, {L_STAT}, v1\nv_lshlrev_b32 v2, 2, v{VL}\nv_add_u32 v2, {L_RSTD}, v2\ns_waitcnt vmcnt(0)\ns_barrier")
    for h in range(2):
        b=20+4*h
        a(f"v_rcp_f32 v{b+3}, v{b+1}\nv_mul_f32 v{b+2}, v{b+1}, v{b+1}\nv_mul_f32 v{b+1}, {hex(f2u(-LOG2E))}, v{b+3}")
        a(f"ds_write_b128 v1, v[{b}:{b+3}] offset:{1024*h}\nds_write_b32 v2, v{b+3} offset:{256*h}")
    a(f"s_branch {done}\n{w1}:")
    a(f"s_cmp_lg_u32 s74, 1\ns_cbranch_scc1 {none}\ns_cmp_ge_u32 s{S_J}, 14\ns_cbranch_scc1 {none}")
    a(f"v_and_b32 v1, 31, v{VL}\nv_lshlrev_b32 v1, 4, v1\nv_lshrrev_b32 v2, 5, v{VL}\nv_mul_u32_u24 v2, {1792*4}, v2\nv_add_u32 v1, v1, v2\ns_lshl_b32 s62, s{S_J}, 9\ns_add_u32 s62, s62, {WS_CS}")
    for kq in range(4):
        a(f"buffer_load_dwordx4 {vr(20+4*kq,4)}, v1, s[{SWS}:{SWS+3}], s62 offen sc1\ns_add_u32 s62, s62, {3584*4}")
    a(f"v_lshlrev_b32 v1, 4, v{VL}\nv_add_u32 v1, {L_CS}, v1\ns_waitcnt vmcnt(0)\ns_barrier")
    for j in range(4):
        a(f"v_add_f32 v{20+j}, v{20+j}, v{24+j}\nv_add_f32 v{28+j}, v{28+j}, v{32+j}\nv_add_f32 v{20+j}, v{20+j}, v{28+j}")
    a("ds_write_b128 v1, v[20:23]")
    a(f"s_branch {done}\n{none}:\ns_waitcnt vmcnt(0)\ns_barrier")
    a(f"{done}:\ns_waitcnt lgkmcnt(0)\ns_barrier")

XA,XB,WA,WB=128,160,192,208
AX0,AX1,AW0,AW1=224,225,226,227

def mainloop1(a,spec):
    def reads(k,xb,wb):
        xs=[f"ds_read_b128 {vr(xb+4*t,4)}, v{AX0+k} offset:{t*2048}" for t in range(8)]
        ws=[]
        for g in range(4):
            if spec:
                ws.append(f"ds_read_b128 {vr(wb+4*g,4)}, v{AW0+k} offset:{16384+(g>>1)*16384+(g&1)*2048}")
            else:
                for rho in range(2):
                    ws.append(f"ds_read_b64_tr_b16 {vr(wb+4*g+2*rho,2)}, v{AW0+(g&1)} offset:{16384+(g>>1)*16384+k*8192+rho*1024}")
        return ws+xs
    def mfmas(xb,wb):
        out=[]
        for t in range(8):
            for gg in range(4):
                g=gg if t%2==0 else 3-gg
                d=(t*4+g)*4
                x=vr(xb+4*t,4); w=vr(wb+4*g,4)
                p,q=(x,w) if spec else (w,x)
                out.append(f"{MF} {vr(d,4)}, {p}, {q}, {vr(d,4)}")
        return out
    a("s_barrier")
    for l in reads(0,XA,WA): a(l)
    a(f"s_mov_b32 s70, 0\ns_mov_b32 s72, 8")
    loop=a.lab('loop')
    a(f".p2align 6\n{loop}:")
    a("s_waitcnt lgkmcnt(0)")
    r=reads(1,XB,WB)
    extra={17:f"s_add_u32 s70, s70, 1\ns_cmp_eq_u32 s70, 3",18:f"s_cselect_b32 s71, {-2*SLOT}, {SLOT}".replace(f", {SLOT}",", s73")+"\ns_cselect_b32 s70, 0, s70",
           20:f"v_add_u32 v{AX0}, s71, v{AX0}",21:f"v_add_u32 v{AX1}, s71, v{AX1}",22:f"v_add_u32 v{AW0}, s71, v{AW0}",23:f"v_add_u32 v{AW1}, s71, v{AW1}"}
    for i,m in enumerate(mfmas(XA,WA)):
        a(m)
        if i<len(r): a(r[i])
        if i in extra: a(extra[i])
    a("s_waitcnt lgkmcnt(0)\ns_barrier")
    r=reads(0,XA,WA)
    for i,m in enumerate(mfmas(XB,WB)):
        a(m)
        if i<len(r): a(r[i])
        if i==20: a("s_sub_u32 s72, s72, 1\ns_cmp_lg_u32 s72, 0")
    a(f"s_cbranch_scc1 {loop}")

def compute1_setup(a,spec):
    a(f"""
    v_and_b32 v1, 15, v{VL}
    v_lshrrev_b32 v2, 4, v{VL}
    v_lshrrev_b32 v3, 1, v1
    v_xor_b32 v3, v3, v2
    v_lshlrev_b32 v3, 4, v3
    v_lshl_add_u32 v{AX0}, v1, 7, v3
    v_xor_b32 v{AX1}, 64, v{AX0}
    s_mov_b32 s73, {SLOT}
    """)
    if spec:
        a(f"s_lshl_b32 s62, s{S_WAVE}, 12\nv_add_u32 v{AW0}, s62, v{AX0}\nv_add_u32 v{AW1}, s62, v{AX1}")
    else:
        a(f"""
        v_lshrrev_b32 v3, 2, v1
        v_and_b32 v4, 3, v1
        v_and_b32 v5, 1, v2
        v_lshl_or_b32 v5, v5, 2, v3
        s_lshl_b32 s62, s{S_WAVE}, 1
        v_xor_b32 v5, s62, v5
        v_lshlrev_b32 v5, 5, v5
        v_lshl_add_u32 v5, v4, 3, v5
        v_lshl_add_u32 v3, v2, 3, v3
        v_lshl_add_u32 v{AW0}, v3, 8, v5
        v_xor_b32 v{AW1}, 32, v{AW0}
        """)

FC,FS,FN=228,236,244
def dft32_consts(a):
    a(f"v_and_b32 v1, 15, v{VL}\nv_lshrrev_b32 v2, 4, v{VL}\nv_lshlrev_b32 v2, 2, v2")
    for tb in range(2):
        a(f"v_add_u32 v3, {16*tb}, v1\nv_cvt_f32_u32 v3, v3\nv_mul_f32 v3, {hex(f2u(1/32.))}, v3")
        for j in range(8):
            a(f"v_add_u32 v4, {16*(j>>2)+(j&3)}, v2\nv_cvt_f32_u32 v4, v4\nv_mul_f32 v4, v4, v3\nv_fract_f32 v4, v4\nv_cos_f32 v{8+j}, v4\nv_sin_f32 v{16+j}, v4")
        a("s_nop 0")
        for p in range(4):
            a(f"v_cvt_pk_bf16_f32 v{FC+4*tb+p}, v{8+2*p}, v{9+2*p}\nv_cvt_pk_bf16_f32 v{FS+4*tb+p}, v{16+2*p}, v{17+2*p}")
            a(f"v_xor_b32 v{FN+4*tb+p}, 0x80008000, v{FS+4*tb+p}")

def zero_acc(a,n=128):
    for r in range(n): a(f"v_mov_b32 v{r}, 0")

def epilogue_ffn(a):
    ST=128
    a(f"""
    s_waitcnt lgkmcnt(0)
    v_and_b32 v200, 15, v{VL}
    v_lshlrev_b32 v201, 4, v200
    v_add_u32 v201, {L_STAT}, v201
    v_bfe_u32 v202, v{VL}, 4, 1
    v_lshl_add_u32 v200, v202, 4, v200
    v_lshrrev_b32 v202, 5, v{VL}
    v_lshl_add_u32 v200, v202, 7, v200
    s_lshl_b32 s62, s{S_WAVE}, 5
    v_add_u32 v200, s62, v200
    v_lshlrev_b32 v200, 2, v200
    v_add_u32 v200, {L_CS}, v200
    ds_read_b32 v203, v200
    """)
    for t in range(8): a(f"ds_read_b128 {vr(ST+4*t,4)}, v201 offset:{256*t}")
    a(f"""
    s_mul_i32 s62, s{S_I}, {8*56}
    s_lshl_b32 s63, s{S_J}, 2
    s_add_u32 s62, s62, s63
    s_add_u32 s62, s62, s{S_WAVE}
    s_lshl_b32 s62, s62, 10
    v_lshlrev_b32 v204, 4, v{VL}
    s_waitcnt lgkmcnt(0)
    """)
    for t in range(8):
        a(f"v_mfma_f32_16x16x1_4b_f32 {vr(16*t,16)}, v203, v{ST+4*t}, {vr(16*t,16)}")
    a("s_nop 7")
    T=160
    for t in range(8):
        b=16*t; s=ST+4*t; o=208+4*(t&1)
        for p in range(4):
            a(f"v_pk_mul_f32 {vr(T+2*p,2)}, {vr(b+2*p,2)}, {vr(s,2)} op_sel:[0,1] op_sel_hi:[1,1]")
        for p in range(8): a(f"v_exp_f32 v{T+p}, v{T+p}")
        for p in range(4):
            a(f"v_pk_mul_f32 {vr(b+2*p,2)}, {vr(b+2*p,2)}, {vr(b+8+2*p,2)}")
        for p in range(4):
            a(f"v_pk_fma_f32 {vr(T+2*p,2)}, {vr(T+2*p,2)}, {vr(s+2,2)}, {vr(s+2,2)} op_sel:[0,0,0] op_sel_hi:[1,0,0]")
        for p in range(8): a(f"v_rcp_f32 v{T+p}, v{T+p}")
        a("s_nop 0")
        for p in range(4):
            a(f"v_pk_mul_f32 {vr(b+2*p,2)}, {vr(b+2*p,2)}, {vr(T+2*p,2)}")
        for p in range(4):
            a(f"v_cvt_pk_bf16_f32 v{o+p}, v{b+2*p}, v{b+2*p+1}")
        a(f"buffer_store_dwordx4 {vr(o,4)}, v204, s[{SWS}:{SWS+3}], s62 offen")
        if t<7: a(f"s_add_u32 s62, s62, {56*1024}")

def epilogue_spec(a):
    R=128; Z=160
    a(f"s_waitcnt lgkmcnt(0)\nv_lshrrev_b32 v252, 4, v{VL}\nv_lshlrev_b32 v253, 4, v252\nv_add_u32 v253, {L_RSTD}, v253")
    for t in range(8): a(f"ds_read_b128 {vr(R+4*t,4)}, v253 offset:{64*t}")
    a(f"""
    v_and_b32 v253, 15, v{VL}
    v_lshlrev_b32 v253, 4, v253
    v_lshl_add_u32 v253, v252, 18, v253
    s_sub_u32 s62, s{S_J}, 14
    s_lshl_b32 s62, s62, 11
    s_lshl_b32 s63, s{S_WAVE}, 9
    s_add_u32 s62, s62, s63
    s_lshl_b32 s63, s{S_I}, 12
    s_add_u32 s62, s62, s63
    s_add_u32 s62, s62, {WS_G}
    s_waitcnt lgkmcnt(0)
    """)
    for t in range(8):
        for g in range(4):
            d=(t*4+g)*4
            for p in range(2):
                a(f"v_pk_mul_f32 {vr(d+2*p,2)}, {vr(d+2*p,2)}, {vr(R+4*t+2*p,2)}")
        for g in range(4):
            d=(t*4+g)*4
            z=Z+((t>>1)*4+g)*4+(t&1)*2
            for p in range(2):
                a(f"v_cvt_pk_bf16_f32 v{z+p}, v{d+2*p}, v{d+2*p+1}")
    a("s_nop 1")
    def acc(tb,eb,b,ri): return (((tb*2+eb)*4+b)*2+ri)*4
    for tb in range(2):
        for eb in range(2):
            for b in range(4):
                zr=vr(Z+(b*4+eb)*4,4); zi=vr(Z+(b*4+2+eb)*4,4)
                a(f"{MF} {vr(acc(tb,eb,b,0),4)}, {vr(FC+4*tb,4)}, {zr}, 0")
                a(f"{MF} {vr(acc(tb,eb,b,1),4)}, {vr(FC+4*tb,4)}, {zi}, 0")
                a(f"{MF} {vr(acc(tb,eb,b,0),4)}, {vr(FS+4*tb,4)}, {zi}, {vr(acc(tb,eb,b,0),4)}")
                a(f"{MF} {vr(acc(tb,eb,b,1),4)}, {vr(FN+4*tb,4)}, {zr}, {vr(acc(tb,eb,b,1),4)}")
    a("s_nop 7")
    n=0
    for tb in range(2):
        for eb in range(2):
            for j in range(4):
                o=128+4*(n%8); n+=1
                for b in range(4):
                    a(f"v_cvt_pk_bf16_f32 v{o+b}, v{acc(tb,eb,b,0)+j}, v{acc(tb,eb,b,1)+j}")
                a(f"s_add_u32 s63, s62, {(16*tb+j)*65536}")
                a(f"buffer_store_dwordx4 {vr(o,4)}, v253, s[{SWS}:{SWS+3}], s63 offen offset:{eb*256}")

def kernel_s1(a,cfg):
    name='s1_kernel'
    kbegin(a,name)
    end=a.lab('end')
    prologue(a,end)
    tile_map(a,cfg.get('map','2x16'))
    ld=a.lab('ld'); sp=a.lab('sp')
    a(f"s_cmp_ge_u32 s{S_WAVE}, 4\ns_cbranch_scc1 {ld}")
    a(f"s_cmp_ge_u32 s{S_J}, 14\ns_cbranch_scc1 {sp}")
    compute1_setup(a,False); zero_acc(a); mainloop1(a,False); epilogue_ffn(a)
    a(f"s_endpgm\n{sp}:")
    compute1_setup(a,True); dft32_consts(a); zero_acc(a); mainloop1(a,True); epilogue_spec(a)
    a(f"s_endpgm\n{ld}:")
    loader1(a,cfg)
    a(f"{end}:\ns_endpgm")
    return name

S_T1=57; S_NB=58
SL2=32768
L_Y=4*SL2; L_RED=L_Y+16384; LDS2=L_RED+16384

def loader2(a,cfg):
    a(f"s_sub_u32 s74, s{S_WAVE}, 4")
    srd(a,SWD,P_WD,1792*512*2)
    a(f"""
    v_and_b32 v1, 15, v{VL}
    v_lshrrev_b32 v2, 4, v{VL}
    s_lshl_b32 s60, s{S_NB}, 6
    s_lshl_b32 s61, s74, 4
    s_add_u32 s60, s60, s61
    v_add_u32 v3, s60, v1
    v_sub_u32 v4, 512, v3
    s_sub_u32 s61, 32, s{S_T1}
    s_and_b32 s61, s61, 31
    s_cmp_ge_u32 s{S_NB}, 4
    s_cselect_b32 s61, s61, s{S_T1}
    s_cselect_b64 vcc, -1, 0
    s_mov_b32 s63, {hex(f2u(1/2048.))}
    s_mov_b32 s64, {hex(f2u(-1/2048.))}
    s_cselect_b32 s63, s64, s63
    v_cndmask_b32 v4, v3, v4, vcc
    v_subrev_u32 v4, 1, v4
    v_lshlrev_b32 v4, 4, v4
    v_lshl_add_u32 v4, v2, 12, v4
    v_cmp_eq_u32 vcc, 0, v3
    v_mov_b32 v5, 0x40000000
    s_lshl_b32 s61, s61, 16
    v_cndmask_b32 v4, v4, v5, vcc
    s_add_u32 s61, s61, {WS_G}
    """)
    GA=16
    for k in range(4):
        a(f"buffer_load_dwordx4 {vr(GA+4*k,4)}, v4, s[{SWS}:{SWS+3}], s61 offen sc1\ns_add_u32 s61, s61, {4*4096}")
    a(f"""
    v_lshrrev_b32 v5, 3, v{VL}
    v_and_b32 v6, 7, v{VL}
    v_lshlrev_b32 v7, 1, v2
    v_xor_b32 v6, v6, v7
    v_lshlrev_b32 v6, 4, v6
    v_lshl_add_u32 v6, v5, 10, v6
    s_lshl_b32 s60, s{S_NB}, 7
    s_lshl_b32 s61, s74, 15
    s_add_u32 s60, s60, s61
    v_add_u32 v10, s60, v6
    s_lshl_b32 s73, s74, 12
    """)
    stage_rot(a,cfg,76)
    def issue(sg):
        slot=sg%4
        a("s_lshl_b32 s70, s76, 17\ns_add_u32 s76, s76, 1\ns_cmp_eq_u32 s76, 7\ns_cselect_b32 s76, 0, s76")
        for kh in range(2):
            for p in range(4):
                a(f"s_add_u32 m0, s73, {slot*SL2+kh*16384+p*1024}\ns_add_u32 s71, s70, {(kh*896+8*p)*1024}\nbuffer_load_dwordx4 v10, s[{SWD}:{SWD+3}], s71 offen lds")
    for sg in range(4): issue(sg)
    CB=64
    a(f"v_lshlrev_b32 v2, 2, v2\nv_cvt_f32_u32 v2, v2")
    def consts(tb):
        a(f"v_add_u32 v3, {16*tb}, v1\nv_lshlrev_b32 v3, 5, v3\nv_add_u32 v3, s{S_T1}, v3\nv_cvt_f32_u32 v3, v3\nv_mul_f32 v3, s63, v3")
        for k in range(4):
            for b in range(4):
                a(f"v_add_f32 v{40+b}, {hex(f2u(16.0*k+b))}, v2\nv_mul_f32 v{40+b}, v{40+b}, v3\nv_fract_f32 v{40+b}, v{40+b}")
            for b in range(4):
                a(f"v_cos_f32 v{44+b}, v{40+b}\nv_sin_f32 v{48+b}, v{40+b}")
            a("s_nop 0")
            for b in range(4):
                a(f"v_cvt_pk_bf16_f32 v{CB+(tb*4+k)*4+b}, v{44+b}, v{48+b}")
    for sg in range(7):
        n={0:24,1:16,2:16,3:16,4:16,5:8,6:0}[sg]
        a(f"s_waitcnt vmcnt({n})\ns_barrier")
        if 1<=sg<=3: issue(sg+3)
        if sg<4: consts(sg)
    YA=128
    a("s_nop 1")
    for tb in range(4):
        for k in range(4):
            a(f"{MF} {vr(YA+4*tb,4)}, {vr(GA+4*k,4)}, {vr(CB+(tb*4+k)*4,4)}, {'0' if k==0 else vr(YA+4*tb,4)}")
    a(f"v_lshlrev_b32 v1, 4, v{VL}\ns_add_u32 s60, s73, {L_Y}\nv_add_u32 v1, s60, v1\ns_nop 7")
    for tb in range(4):
        a(f"ds_write_b128 v1, {vr(YA+4*tb,4)} offset:{1024*tb}")
    a("s_waitcnt lgkmcnt(0)\ns_barrier")

def stage_rot(a,cfg,s):
    if cfg.get('rot2',1):
        a(f"s_cmp_eq_u32 s{S_NB}, 7\ns_cselect_b32 s{s}, 0, s{S_NB}")
    else:
        a(f"s_mov_b32 s{s}, 0")

def compute2(a,cfg):
    PF=cfg.get('pf2',8)
    ACC=0; WF=32; HF=64; XR=160; AW=200; AH=204
    srd(a,SOUT,P_OUT,2048*512*2)
    a(f"""
    s_lshr_b32 s60, s{S_WAVE}, 1
    s_and_b32 s61, s{S_WAVE}, 1
    s_lshl_b32 s62, s{S_T1}, 2
    s_lshl_b32 s63, s61, 1
    s_add_u32 s62, s62, s63
    s_mul_i32 s62, s62, 56
    s_mul_i32 s63, s60, 28
    s_add_u32 s62, s62, s63
    s_lshl_b32 s62, s62, 10
    v_lshlrev_b32 v1, 4, v{VL}
    v_add_u32 v{AH}, s62, v1
    v_add_u32 v{AH+1}, {56*1024}, v{AH}
    """)
    stage_rot(a,cfg,76)
    for sg in range(7):
        a(f"s_lshl_b32 s{80+sg}, s76, 12\ns_add_u32 s76, s76, 1\ns_cmp_eq_u32 s76, 7\ns_cselect_b32 s76, 0, s76")
    def hload(n):
        sg,k=divmod(n,4); b=HF+8*(n%PF)
        return [f"buffer_load_dwordx4 {vr(b+4*t,4)}, v{AH+t}, s[{SWS}:{SWS+3}], s{80+sg} offen offset:{k*1024} sc1" for t in range(2)]
    a(f"""
    v_and_b32 v1, 15, v{VL}
    v_lshrrev_b32 v2, 4, v{VL}
    s_lshl_b32 s62, s61, 10
    s_add_u32 s62, s62, s{S_T1}
    s_lshl_b32 s62, s62, 10
    s_lshl_b32 s63, s{S_NB}, 7
    s_add_u32 s62, s62, s63
    s_lshl_b32 s63, s60, 6
    s_add_u32 s77, s62, s63
    s_add_u32 s78, s77, {16*32*1024}
    v_lshlrev_b32 v3, 15, v1
    v_lshl_add_u32 v206, v2, 3, v3
    """)
    for t in range(2):
        for eb in range(2):
            a(f"buffer_load_dwordx2 {vr(XR+16+(t*2+eb)*2,2)}, v206, s[{SX}:{SX+3}], s{77+t} offen offset:{32*eb}")
    for n in range(PF):
        for l in hload(n): a(l)
    a(f"""
    v_and_b32 v4, 1, v2
    v_lshlrev_b32 v4, 5, v4
    v_lshrrev_b32 v5, 1, v2
    v_lshl_add_u32 v4, v5, 4, v4
    v_add_u32 v207, v3, v4
    """)
    a(f"""
    v_lshrrev_b32 v3, 2, v1
    v_and_b32 v4, 3, v1
    v_lshl_add_u32 v3, v2, 2, v3
    v_bfe_u32 v5, v3, 1, 2
    s_lshl_b32 s62, s60, 1
    v_xor_b32 v5, s62, v5
    v_lshlrev_b32 v5, 5, v5
    v_lshl_add_u32 v5, v4, 3, v5
    v_lshl_add_u32 v5, v3, 7, v5
    s_lshl_b32 s62, s60, 14
    v_add_u32 v{AW}, s62, v5
    """)
    for eb in range(1,4): a(f"v_xor_b32 v{AW+eb}, {eb<<5}, v{AW}")
    for eb in range(4): a(f"v_add_u32 v{210+eb}, {2*SL2}, v{AW+eb}")
    def wreads(n):
        sg,k=divmod(n,4); b=WF+16*(n&1); slot=sg%4
        base=AW if slot<2 else 210
        return [f"ds_read_b64_tr_b16 {vr(b+4*eb+2*rho,2)}, v{base+eb} offset:{(slot&1)*SL2+k*4096+rho*2048}" for eb in range(4) for rho in range(2)]
    a("s_barrier")
    for l in wreads(0): a(l)
    a(f"s_waitcnt vmcnt({2*PF})")
    for i in range(8):
        a(f"v_lshlrev_b32 v{XR+2*i}, 16, v{XR+16+i}\nv_and_b32 v{XR+2*i+1}, 0xffff0000, v{XR+16+i}")
    for n in range(28):
        outstanding=2*(min(28,n+PF)-(n+1))
        a(f"s_waitcnt vmcnt({outstanding}) lgkmcnt(0)")
        if n%4==3 and n<27: a("s_barrier")
        r=wreads(n+1) if n<27 else []
        hb=HF+8*(n%PF); wb=WF+16*(n&1)
        i=0
        for t in range(2):
            for ee in range(4):
                eb=ee if t==0 else 3-ee
                d=ACC+(t*4+eb)*4
                a(f"{MF} {vr(d,4)}, {vr(wb+4*eb,4)}, {vr(hb+4*t,4)}, {'0' if n==0 else vr(d,4)}")
                if i<len(r): a(r[i])
                i+=1
        if n+PF<28:
            for l in hload(n+PF): a(l)
    a(f"""
    v_lshlrev_b32 v40, 4, v{VL}
    s_lshl_b32 s62, s{S_WAVE}, 12
    s_add_u32 s62, s62, {L_RED}
    v_add_u32 v41, s62, v40
    v_xor_b32 v42, 8192, v41
    s_lshl_b32 s62, s60, 13
    s_lshl_b32 s63, s61, 11
    s_add_u32 s62, s62, s63
    s_add_u32 s62, s62, {L_Y}
    v_add_u32 v43, s62, v40
    s_nop 1
    """)
    for t in range(2):
        for eb in range(2):
            a(f"ds_write_b128 v41, {vr(ACC+(t*4+2+eb)*4,4)} offset:{(t*2+eb)*1024}")
    a("s_waitcnt lgkmcnt(0)\ns_barrier")
    RD=64; Y=80; T=96
    for t in range(2):
        for eb in range(2):
            a(f"ds_read_b128 {vr(RD+(t*2+eb)*4,4)}, v42 offset:{(t*2+eb)*1024}")
    for t in range(2):
        for eb in range(2):
            a(f"ds_read_b128 {vr(Y+(t*2+eb)*4,4)}, v43 offset:{eb*4096+t*1024}")
    a(f"s_mov_b32 s64, {hex(f2u(-LOG2E))}\ns_mov_b32 s65, s64\ns_waitcnt lgkmcnt(0)")
    for t in range(2):
        b=ACC+t*16
        for p in range(4): a(f"v_pk_add_f32 {vr(b+2*p,2)}, {vr(b+2*p,2)}, {vr(RD+t*8+2*p,2)}")
        for p in range(4): a(f"v_pk_mul_f32 {vr(T+2*p,2)}, {vr(b+2*p,2)}, s[64:65]")
        for p in range(8): a(f"v_exp_f32 v{T+p}, v{T+p}")
        for p in range(4): a(f"v_pk_mul_f32 {vr(b+2*p,2)}, {vr(b+2*p,2)}, {vr(Y+t*8+2*p,2)}")
        for p in range(4): a(f"v_pk_add_f32 {vr(T+2*p,2)}, {vr(T+2*p,2)}, 1.0 op_sel_hi:[1,0]")
        for p in range(8): a(f"v_rcp_f32 v{T+p}, v{T+p}")
        a("s_nop 0")
        for p in range(4): a(f"v_pk_fma_f32 {vr(b+2*p,2)}, {vr(b+2*p,2)}, {vr(T+2*p,2)}, {vr(XR+t*8+2*p,2)}")
        o=112+4*t
        for p in range(4): a(f"v_cvt_pk_bf16_f32 v{o+p}, v{b+2*p}, v{b+2*p+1}")
        a(f"s_nop 1\nv_permlane16_swap_b32 v{o}, v{o+2}\nv_permlane16_swap_b32 v{o+1}, v{o+3}")
        a(f"buffer_store_dwordx4 {vr(o,4)}, v207, s[{SOUT}:{SOUT+3}], s{77+t} offen")

def kernel_s2(a,cfg):
    name='s2_kernel'
    kbegin(a,name)
    end=a.lab('end')
    prologue(a,end)
    a(f"s_and_b32 s60, s2, 7\ns_lshr_b32 s61, s2, 3\ns_lshl_b32 s60, s60, 2\ns_and_b32 s62, s61, 3\ns_add_u32 s{S_T1}, s60, s62\ns_lshr_b32 s{S_NB}, s61, 2")
    ld=a.lab('ld')
    a(f"s_cmp_ge_u32 s{S_WAVE}, 4\ns_cbranch_scc1 {ld}")
    compute2(a,cfg)
    a(f"s_endpgm\n{ld}:")
    loader2(a,cfg)
    a(f"{end}:\ns_endpgm")
    return name

def build(cfg):
    a=Asm()
    a(f"; @launch kernel=st_kernel grid=(256,1,1) block=(256,1,1) lds=0")
    a(f"; @launch kernel=s1_kernel grid=(256,1,1) block=(512,1,1) lds={LDS1}")
    a(f"; @launch kernel=s2_kernel grid=(256,1,1) block=(512,1,1) lds={LDS2}")
    for n in range(cfg.get('dummy',0)):
        a(f"; @launch kernel=nop_kernel grid=(256,1,1) block=(64,1,1) lds=0")
    a('.amdgcn_target "amdgcn-amd-amdhsa--gfx950"\n.text')
    names=[kernel_stats(a),kernel_s1(a,cfg),kernel_s2(a,cfg)]
    if cfg.get('dummy',0):
        kbegin(a,'nop_kernel'); a("s_endpgm"); names.append('nop_kernel')
    a('.section .rodata,"a"')
    for n in names:
        a('.p2align 6')
        a.l.append(kd(n,256,102,256))
    return a.text()

if __name__=='__main__':
    cfg={}
    for kv in sys.argv[2:]:
        k,v=kv.split('='); cfg[k]=int(v) if v.lstrip('-').isdigit() else v
    open(sys.argv[1],'w').write(build(cfg))
```

```python
import sys
NAME='recurrent_scan__spectral_fnet__swiglu_ffn__prompt'
LOG2E=1.4426950408889634
import struct
def f2u(x): return struct.unpack('<I',struct.pack('<f',x))[0]

WS_H=0
WS_G=0x700000
WS_ST=0x900000
WS_CS=0x904000
WS_FL=0x920000
WS_STAMP=0x930000
WS_END=0x940000
CFG={}

class Asm:
    def __init__(self): self.l=[]; self.n=0
    def __call__(self,s):
        for line in s.split('\n'):
            line=line.strip()
            if line: self.l.append(('' if line.endswith(':') or line.startswith('.') or line.startswith(';') else '    ')+line)
    def lab(self,b): self.n+=1; return f"L_{b}_{self.n}"
    def text(self): return '\n'.join(self.l)+'\n'

def kd(name,vgpr,sgpr,accum):
    return f""".amdhsa_kernel {name}
  .amdhsa_next_free_vgpr {vgpr}
  .amdhsa_next_free_sgpr {sgpr}
  .amdhsa_accum_offset {accum}
  .amdhsa_group_segment_fixed_size 0
  .amdhsa_kernarg_size 96
  .amdhsa_user_sgpr_count 2
  .amdhsa_user_sgpr_kernarg_segment_ptr 1
  .amdhsa_system_sgpr_workgroup_id_x 1
  .amdhsa_float_denorm_mode_32 3
.end_amdhsa_kernel
"""
def kbegin(a,name): a(f".globl {name}\n.p2align 8\n.type {name},@function\n{name}:")
def srd(a,d,base,nbytes):
    a(f"s_mov_b32 s{d}, s{base}\ns_mov_b32 s{d+1}, s{base+1}\ns_mov_b32 s{d+2}, {nbytes}\ns_mov_b32 s{d+3}, 0x00020000")
def vr(b,n): return f"v[{b}:{b+n-1}]" if n>1 else f"v{b}"
MF="v_mfma_f32_16x16x32_bf16"

P_X,P_HRE,P_HIM,P_WG,P_WU,P_WD,P_OUT,P_DBG,P_WS=32,38,40,44,46,48,50,52,54
SX,SB0,SB1,SWS,SWD,SOUT=8,12,16,20,24,28
S_WAVE=56; S_I=57; S_J=58; S_T0=60
VL=255

def prologue(a,endlab):
    a(f"s_cmp_ge_u32 s2, 256\ns_cbranch_scc1 {endlab}")
    if CFG.get('probe'): a("s_memrealtime s[96:97]")
    a("s_load_dwordx16 s[32:47], s[0:1], 0\ns_load_dwordx8 s[48:55], s[0:1], 64")
    a(f"v_lshrrev_b32 v1, 6, v0\nv_and_b32 v{VL}, 63, v0\nv_readfirstlane_b32 s{S_WAVE}, v1")
    a("s_waitcnt lgkmcnt(0)")
    srd(a,SX,P_X,2048*512*2)
    srd(a,SWS,P_WS,WS_END)

def stamp(a,idx,use_saved=False):
    if not CFG.get('probe'): return
    if not use_saved: a("s_memrealtime s[96:97]\ns_waitcnt lgkmcnt(0)")
    a(f"s_lshl_b32 s98, s2, 2\ns_add_u32 s98, s98, {WS_STAMP+idx*1024}\nv_mov_b32 v254, s96\ns_mov_b64 exec, 1\nbuffer_store_dword v254, off, s[{SWS}:{SWS+3}], s98\ns_mov_b64 exec, -1")

def kernel_probe(a):
    pa,pb=CFG['probe'].split(':'); K=CFG.get('K',10)
    name='probe_kernel'; kbegin(a,name); end=a.lab('end')
    a(f"s_cmp_ge_u32 s2, 1\ns_cbranch_scc1 {end}")
    a("s_load_dwordx2 s[54:55], s[0:1], 88\ns_waitcnt lgkmcnt(0)")
    srd(a,SWS,P_WS,WS_END)
    a("v_lshlrev_b32 v1, 4, v0")
    for r,p in ((4,pa),(8,pb)):
        a(f"s_mov_b32 s60, {WS_STAMP+int(p[3:])*1024}\nbuffer_load_dwordx4 v[{r}:{r+3}], v1, s[{SWS}:{SWS+3}], s60 offen")
    a("s_waitcnt vmcnt(0)\ns_nop 0\nv_readfirstlane_b32 s61, v4\ns_nop 3")
    for r in range(4,12): a(f"v_subrev_u32 v{r}, s61, v{r}")
    for r,p,sd in ((4,pa,62),(8,pb,63)):
        op=p[:3]
        vop={'min':'v_min_i32','max':'v_max_i32','avg':'v_add_u32'}[op]; sop={'min':'s_min_i32','max':'s_max_i32','avg':'s_add_u32'}[op]
        a(f"{vop} v{r}, v{r}, v{r+1}\n{vop} v{r+2}, v{r+2}, v{r+3}\n{vop} v{r}, v{r}, v{r+2}\ns_nop 0")
        a(f"v_readlane_b32 s{sd}, v{r}, 0")
        for l in range(1,64): a(f"v_readlane_b32 s64, v{r}, {l}\ns_nop 0\n{sop} s{sd}, s{sd}, s64")
        a(f"s_mul_i32 s{sd}, s{sd}, {K}")
        if op=='avg': a(f"s_ashr_i32 s{sd}, s{sd}, 8")
    a("s_sub_u32 s62, s63, s62\ns_max_i32 s62, s62, 0\ns_min_i32 s62, s62, 100000")
    a("s_memrealtime s[66:67]\ns_waitcnt lgkmcnt(0)")
    lp=a.lab('spin')
    a(f"{lp}:\ns_memrealtime s[68:69]\ns_waitcnt lgkmcnt(0)\ns_sub_u32 s68, s68, s66\ns_cmp_lt_u32 s68, s62\ns_cbranch_scc1 {lp}")
    a(f"{end}:\ns_endpgm")
    return name

def stats_colsum(a):
    skip=a.lab('nocs')
    a(f"s_cmp_ge_u32 s2, 224\ns_cbranch_scc1 {skip}")
    a(f"""
    s_lshr_b32 s60, s2, 2
    s_and_b32 s61, s2, 3
    s_cmp_ge_u32 s60, 28
    s_cselect_b32 s64, s{P_WU}, s{P_WG}
    s_cselect_b32 s65, s{P_WU+1}, s{P_WG+1}
    s_cselect_b32 s62, 28, 0
    s_mov_b32 s66, {512*1792*2}
    s_mov_b32 s67, 0x00020000
    s_sub_u32 s62, s60, s62
    s_lshl_b32 s62, s62, 7
    s_mul_i32 s63, s61, {128*3584}
    s_add_u32 s62, s62, s63
    v_lshrrev_b32 v1, 3, v{VL}
    v_mul_u32_u24 v1, 3584, v1
    v_and_b32 v2, 7, v{VL}
    v_lshl_add_u32 v1, v2, 4, v1
    """)
    for n in range(16):
        a(f"buffer_load_dwordx4 {vr(16+4*n,4)}, v1, s[64:67], s62 offen")
        if n<15: a(f"s_add_u32 s62, s62, {8*3584}")
    a(f"""
    v_and_b32 v2, 15, v{VL}
    v_and_b32 v3, 1, v2
    v_lshlrev_b32 v3, 4, v3
    v_mov_b32 v8, 0x3f80
    v_lshlrev_b32 v3, v3, v8
    v_lshrrev_b32 v2, 1, v2
    """)
    for p in range(4):
        a(f"v_cmp_eq_u32 vcc, {p}, v2\ns_nop 1\nv_cndmask_b32 v{4+p}, 0, v3, vcc")
    a(f"""
    s_mul_i32 s61, s61, {3584*4}
    s_lshl_b32 s60, s60, 8
    s_add_u32 s60, s60, s61
    s_add_u32 s60, s60, {WS_CS}
    v_and_b32 v2, 7, v{VL}
    v_lshlrev_b32 v2, 5, v2
    v_and_b32 v3, 16, v{VL}
    v_add_u32 v2, v2, v3
    """)
    for n in range(16):
        a(f"s_waitcnt vmcnt({15-n})")
        a(f"{MF} v[8:11], v[4:7], {vr(16+4*n,4)}, {'0' if n==0 else 'v[8:11]'}")
    a("s_nop 7\ns_nop 1")
    for j in range(4):
        a(f"v_add_f32_dpp v{12+j}, v{8+j}, v{8+j} row_ror:8 row_mask:0xf bank_mask:0xf")
    a(f"s_mov_b64 exec, 0x00ff00ff")
    a(f"buffer_store_dwordx4 v[12:15], v2, s[{SWS}:{SWS+3}], s60 offen sc1")
    a("s_mov_b64 exec, -1")
    a(f"{skip}:")

def stats_rows(a):
    a(f"""
    s_sub_u32 s60, s{S_WAVE}, 1
    s_lshr_b32 s61, s2, 3
    s_and_b32 s62, s2, 7
    s_lshl_b32 s63, s61, 1
    s_add_u32 s63, s63, s60
    s_lshl_b32 s64, s62, 8
    s_add_u32 s63, s63, s64
    s_lshl_b32 s63, s63, 10
    v_lshrrev_b32 v1, 4, v{VL}
    v_and_b32 v2, 15, v{VL}
    v_lshlrev_b32 v2, 4, v2
    v_lshl_add_u32 v2, v1, 16, v2
    """)
    for p in range(4):
        a(f"buffer_load_dwordx4 {vr(16+4*p,4)}, v2, s[{SX}:{SX+3}], s63 offen offset:{256*p}")
    a(f"""
    s_lshl_b32 s61, s61, 9
    s_lshl_b32 s62, s62, 6
    s_add_u32 s61, s61, s62
    s_lshl_b32 s60, s60, 3
    s_add_u32 s61, s61, s60
    s_add_u32 s61, s61, {WS_ST}
    v_lshlrev_b32 v1, 4, v1
    v_mov_b32 v3, 0x3f803f80
    v_mov_b32 v4, 0
    v_mov_b32 v5, 0
    v_mov_b32 v6, 0x00003f80
    v_mov_b32 v7, 0x3f800000
    """)
    for p in range(4):
        a(f"s_waitcnt vmcnt({3-p})")
        for r in range(4):
            a(f"v_dot2c_f32_bf16 v{4+(r&1)}, v{16+4*p+r}, v3")
    a("s_nop 2\nv_add_f32 v4, v4, v5")
    def red(v):
        for s in (8,4,2,1):
            a(f"s_nop 1\nv_add_f32_dpp v{v}, v{v}, v{v} row_ror:{s} row_mask:0xf bank_mask:0xf")
    red(4)
    a(f"v_mul_f32 v4, {hex(f2u(-1.0/512))}, v4")
    a("v_mov_b32 v8, 0\nv_mov_b32 v9, 0")
    for p in range(4):
        for r in range(4):
            a(f"v_dot2_f32_bf16 v{32+2*r}, v{16+4*p+r}, v6, v4\nv_dot2_f32_bf16 v{33+2*r}, v{16+4*p+r}, v7, v4")
        for r in range(8):
            a(f"v_fmac_f32 v{8+(r&1)}, v{32+r}, v{32+r}")
    a("v_add_f32 v8, v8, v9")
    red(8)
    a(f"""
    v_mul_f32 v8, {hex(f2u(1.0/512))}, v8
    v_cvt_pk_bf16_f32 v8, v8, v4
    v_and_b32 v10, 0xffff0000, v8
    v_lshlrev_b32 v8, 16, v8
    v_add_f32 v8, {hex(f2u(1e-5))}, v8
    v_cvt_pk_bf16_f32 v8, v8, v8
    v_lshlrev_b32 v8, 16, v8
    v_sqrt_f32 v8, v8
    s_nop 0
    v_cvt_pk_bf16_f32 v8, v8, v8
    v_lshlrev_b32 v11, 16, v8
    s_mov_b32 exec_lo, 0x00010001
    s_mov_b32 exec_hi, 0x00010001
    buffer_store_dwordx2 v[10:11], v1, s[{SWS}:{SWS+3}], s61 offen sc1
    s_mov_b64 exec, -1
    """)

def kernel_stats(a):
    name='st_kernel'
    kbegin(a,name)
    end=a.lab('end')
    prologue(a,end)
    l1=a.lab('w1')
    a(f"s_cmp_lg_u32 s{S_WAVE}, 0\ns_cbranch_scc1 {l1}")
    stats_colsum(a)
    a(f"s_branch {end}\n{l1}:")
    a(f"s_cmp_eq_u32 s{S_WAVE}, 3\ns_cbranch_scc1 {end}")
    stamp(a,0,True)
    stats_rows(a)
    if CFG.get('probe'): a("s_waitcnt vmcnt(0)")
    stamp(a,1)
    a(f"{end}:\ns_endpgm")
    return name

SLOT=49152
L_STAT=3*SLOT
L_RSTD=L_STAT+2048
L_CS=L_RSTD+512
LDS1=L_CS+1024

def tile_map(a,mapping):
    a("s_and_b32 s60, s2, 7\ns_lshr_b32 s61, s2, 3")
    if mapping=='2x16':
        a(f"s_lshl_b32 s{S_I}, s60, 1\ns_and_b32 s62, s61, 1\ns_add_u32 s{S_I}, s{S_I}, s62\ns_lshr_b32 s{S_J}, s61, 1")
    elif mapping=='8x4':
        a(f"s_and_b32 s{S_I}, s60, 1\ns_lshl_b32 s{S_I}, s{S_I}, 3\ns_and_b32 s62, s61, 7\ns_add_u32 s{S_I}, s{S_I}, s62")
        a(f"s_lshr_b32 s{S_J}, s60, 1\ns_lshl_b32 s{S_J}, s{S_J}, 2\ns_lshr_b32 s62, s61, 3\ns_add_u32 s{S_J}, s{S_J}, s62")
    elif mapping=='4x8':
        a(f"s_and_b32 s{S_I}, s60, 3\ns_lshl_b32 s{S_I}, s{S_I}, 2\ns_and_b32 s62, s61, 3\ns_add_u32 s{S_I}, s{S_I}, s62")
        a(f"s_lshr_b32 s{S_J}, s60, 2\ns_lshl_b32 s{S_J}, s{S_J}, 3\ns_lshr_b32 s62, s61, 2\ns_add_u32 s{S_J}, s{S_J}, s62")

def token_row(a,spec,vt,vd,tmp):
    if not spec:
        a(f"v_and_b32 v{vd}, 63, v{vt}\nv_lshlrev_b32 v{vd}, 5, v{vd}\nv_lshrrev_b32 v{tmp}, 6, v{vt}\ns_lshl_b32 s62, s{S_I}, 1\nv_add3_u32 v{vd}, v{vd}, v{tmp}, s62")
    else:
        a(f"v_and_b32 v{vd}, 31, v{vt}\nv_lshlrev_b32 v{vd}, 6, v{vd}\nv_lshrrev_b32 v{tmp}, 5, v{vt}\ns_lshl_b32 s62, s{S_I}, 2\nv_add3_u32 v{vd}, v{vd}, v{tmp}, s62")

def loader1(a,cfg):
    spec=a.lab('lspec'); join=a.lab('ljoin')
    a(f"s_sub_u32 s74, s{S_WAVE}, 4")
    a(f"v_lshrrev_b32 v1, 3, v{VL}\nv_and_b32 v2, 7, v{VL}\ns_lshl_b32 s75, s74, 5")
    a(f"s_cmp_ge_u32 s{S_J}, 14\ns_cbranch_scc1 {spec}")
    for sp in (False,True):
        if sp: a(f"{spec}:")
        for p in range(4):
            a(f"v_add3_u32 v3, v1, s75, {8*p}")
            a(f"v_bfe_u32 v4, v3, 1, 3\nv_xor_b32 v4, v4, v2\nv_lshlrev_b32 v4, 4, v4")
            token_row(a,sp,3,5,6)
            a(f"v_lshl_add_u32 v{10+p}, v5, 10, v4")
            if sp:
                a(f"s_sub_u32 s62, s{S_J}, 14\ns_lshl_b32 s62, s62, 7\ns_add_u32 s62, s62, 1\nv_add_u32 v5, s62, v3\nv_lshl_add_u32 v{14+p}, v5, 10, v4")
        for h in range(2):
            a(f"v_add_u32 v3, {64*h}, v{VL}")
            token_row(a,sp,3,5,6)
            a(f"v_bfe_u32 v6, v5, 1, 5\nv_lshlrev_b32 v6, 6, v6\nv_lshrrev_b32 v7, 6, v5\nv_lshl_add_u32 v6, v7, 1, v6\nv_and_b32 v7, 1, v5\nv_add_u32 v6, v6, v7\nv_lshlrev_b32 v{18+h}, 3, v6")
        if not sp:
            srd(a,SB0,P_WG,512*1792*2); srd(a,SB1,P_WU,512*1792*2)
            a(f"v_lshrrev_b32 v3, 4, v{VL}\nv_and_b32 v4, 15, v{VL}\ns_lshl_b32 s62, s74, 4\ns_lshl_b32 s63, s{S_J}, 8")
            for p in range(4):
                a(f"v_or_b32 v5, {(p>>1)<<2}, v3\nv_lshlrev_b32 v5, 1, v5\nv_xor_b32 v5, v5, v4\nv_lshl_add_u32 v5, v5, 4, s63")
                a(f"v_add3_u32 v6, v3, s62, {4*p}\nv_mul_u32_u24 v6, 3584, v6\nv_add_u32 v{14+p}, v5, v6")
            a(f"s_mov_b32 s72, {64*3584}\ns_branch {join}")
        else:
            srd(a,SB0,P_HRE,512*512*2); srd(a,SB1,P_HIM,512*512*2)
            a("s_mov_b32 s72, 128")
    a(f"{join}:")
    a("s_lshl_b32 s73, s74, 12")
    if cfg.get('rot'):
        a(f"s_add_u32 s76, s{S_I}, s{S_J}\ns_and_b32 s76, s76, 7")
    else:
        a("s_mov_b32 s76, 0")
    def issue(c):
        slot=c%3
        a("s_lshl_b32 s70, s76, 7\ns_mul_i32 s71, s76, s72\ns_add_u32 s76, s76, 1\ns_and_b32 s76, s76, 7")
        for p in range(4):
            a(f"s_add_u32 m0, s73, {slot*SLOT+p*1024}\ns_nop 0\nbuffer_load_dwordx4 v{10+p}, s[{SX}:{SX+3}], s70 offen lds")
            a(f"s_add_u32 m0, s73, {slot*SLOT+16384+p*1024}\ns_nop 0\nbuffer_load_dwordx4 v{14+p}, s[{SB0}:{SB0+3}], s71 offen lds")
            a(f"s_add_u32 m0, s73, {slot*SLOT+32768+p*1024}\ns_nop 0\nbuffer_load_dwordx4 v{14+p}, s[{SB1}:{SB1+3}], s71 offen lds")
    for c in range(3): issue(c)
    for c in range(7):
        n={0:24}.get(c,12)
        a(f"s_waitcnt vmcnt({n})\ns_barrier")
        if 1<=c<=5: issue(c+2)
    w1=a.lab('lw1'); done=a.lab('ldone'); none=a.lab('lnone')
    a(f"s_cmp_lg_u32 s74, 0\ns_cbranch_scc1 {w1}")
    a(f"s_mov_b32 s62, {WS_ST}")
    for h in range(2):
        a(f"buffer_load_dwordx2 v[{20+4*h}:{21+4*h}], v{18+h}, s[{SWS}:{SWS+3}], s62 offen sc1")
    a(f"v_lshlrev_b32 v1, 4, v{VL}\nv_add_u32 v1, {L_STAT}, v1\nv_lshlrev_b32 v2, 2, v{VL}\nv_add_u32 v2, {L_RSTD}, v2\ns_waitcnt vmcnt(0)\ns_barrier")
    for h in range(2):
        b=20+4*h
        a(f"v_rcp_f32 v{b+3}, v{b+1}\nv_mul_f32 v{b+2}, v{b+1}, v{b+1}\nv_mul_f32 v{b+1}, {hex(f2u(-LOG2E))}, v{b+3}")
        a(f"ds_write_b128 v1, v[{b}:{b+3}] offset:{1024*h}\nds_write_b32 v2, v{b+3} offset:{256*h}")
    a(f"s_branch {done}\n{w1}:")
    a(f"s_cmp_lg_u32 s74, 1\ns_cbranch_scc1 {none}\ns_cmp_ge_u32 s{S_J}, 14\ns_cbranch_scc1 {none}")
    a(f"v_and_b32 v1, 31, v{VL}\nv_lshlrev_b32 v1, 4, v1\nv_lshrrev_b32 v2, 5, v{VL}\nv_mul_u32_u24 v2, {1792*4}, v2\nv_add_u32 v1, v1, v2\ns_lshl_b32 s62, s{S_J}, 9\ns_add_u32 s62, s62, {WS_CS}")
    for kq in range(4):
        a(f"buffer_load_dwordx4 {vr(20+4*kq,4)}, v1, s[{SWS}:{SWS+3}], s62 offen sc1\ns_add_u32 s62, s62, {3584*4}")
    a(f"v_lshlrev_b32 v1, 4, v{VL}\nv_add_u32 v1, {L_CS}, v1\ns_waitcnt vmcnt(0)\ns_barrier")
    for j in range(4):
        a(f"v_add_f32 v{20+j}, v{20+j}, v{24+j}\nv_add_f32 v{28+j}, v{28+j}, v{32+j}\nv_add_f32 v{20+j}, v{20+j}, v{28+j}")
    a("ds_write_b128 v1, v[20:23]")
    a(f"s_branch {done}\n{none}:\ns_waitcnt vmcnt(0)\ns_barrier")
    a(f"{done}:\ns_waitcnt lgkmcnt(0)\ns_barrier")

XA,XB,WA,WB=128,160,192,208
AX0,AX1,AW0,AW1=224,225,226,227

def mainloop1(a,spec):
    def reads(k,xb,wb):
        xs=[f"ds_read_b128 {vr(xb+4*t,4)}, v{AX0+k} offset:{t*2048}" for t in range(8)]
        ws=[]
        for g in range(4):
            if spec:
                ws.append(f"ds_read_b128 {vr(wb+4*g,4)}, v{AW0+k} offset:{16384+(g>>1)*16384+(g&1)*2048}")
            else:
                for rho in range(2):
                    ws.append(f"ds_read_b64_tr_b16 {vr(wb+4*g+2*rho,2)}, v{AW0+(g&1)} offset:{16384+(g>>1)*16384+k*8192+rho*1024}")
        return ws+xs
    def mfmas(xb,wb):
        out=[]
        for t in range(8):
            for gg in range(4):
                g=gg if t%2==0 else 3-gg
                d=(t*4+g)*4
                x=vr(xb+4*t,4); w=vr(wb+4*g,4)
                p,q=(x,w) if spec else (w,x)
                out.append(f"{MF} {vr(d,4)}, {p}, {q}, {vr(d,4)}")
        return out
    a("s_barrier")
    stamp(a,3)
    for l in reads(0,XA,WA): a(l)
    a(f"s_mov_b32 s70, 0\ns_mov_b32 s72, 8")
    loop=a.lab('loop')
    a(f".p2align 6\n{loop}:")
    a("s_waitcnt lgkmcnt(0)")
    r=reads(1,XB,WB)
    extra={17:f"s_add_u32 s70, s70, 1\ns_cmp_eq_u32 s70, 3",18:f"s_cselect_b32 s71, {-2*SLOT}, {SLOT}".replace(f", {SLOT}",", s73")+"\ns_cselect_b32 s70, 0, s70",
           20:f"v_add_u32 v{AX0}, s71, v{AX0}",21:f"v_add_u32 v{AX1}, s71, v{AX1}",22:f"v_add_u32 v{AW0}, s71, v{AW0}",23:f"v_add_u32 v{AW1}, s71, v{AW1}"}
    for i,m in enumerate(mfmas(XA,WA)):
        a(m)
        if i<len(r): a(r[i])
        if i in extra: a(extra[i])
    a("s_waitcnt lgkmcnt(0)\ns_barrier")
    r=reads(0,XA,WA)
    for i,m in enumerate(mfmas(XB,WB)):
        a(m)
        if i<len(r): a(r[i])
        if i==20: a("s_sub_u32 s72, s72, 1\ns_cmp_lg_u32 s72, 0")
    a(f"s_cbranch_scc1 {loop}")

def compute1_setup(a,spec):
    a(f"""
    v_and_b32 v1, 15, v{VL}
    v_lshrrev_b32 v2, 4, v{VL}
    v_lshrrev_b32 v3, 1, v1
    v_xor_b32 v3, v3, v2
    v_lshlrev_b32 v3, 4, v3
    v_lshl_add_u32 v{AX0}, v1, 7, v3
    v_xor_b32 v{AX1}, 64, v{AX0}
    s_mov_b32 s73, {SLOT}
    """)
    if spec:
        a(f"s_lshl_b32 s62, s{S_WAVE}, 12\nv_add_u32 v{AW0}, s62, v{AX0}\nv_add_u32 v{AW1}, s62, v{AX1}")
    else:
        a(f"""
        v_lshrrev_b32 v3, 2, v1
        v_and_b32 v4, 3, v1
        v_and_b32 v5, 1, v2
        v_lshl_or_b32 v5, v5, 2, v3
        s_lshl_b32 s62, s{S_WAVE}, 1
        v_xor_b32 v5, s62, v5
        v_lshlrev_b32 v5, 5, v5
        v_lshl_add_u32 v5, v4, 3, v5
        v_lshl_add_u32 v3, v2, 3, v3
        v_lshl_add_u32 v{AW0}, v3, 8, v5
        v_xor_b32 v{AW1}, 32, v{AW0}
        """)

FC,FS,FN=228,236,244
def dft32_consts(a):
    a(f"v_and_b32 v1, 15, v{VL}\nv_lshrrev_b32 v2, 4, v{VL}\nv_lshlrev_b32 v2, 2, v2")
    for tb in range(2):
        a(f"v_add_u32 v3, {16*tb}, v1\nv_cvt_f32_u32 v3, v3\nv_mul_f32 v3, {hex(f2u(1/32.))}, v3")
        for j in range(8):
            a(f"v_add_u32 v4, {16*(j>>2)+(j&3)}, v2\nv_cvt_f32_u32 v4, v4\nv_mul_f32 v4, v4, v3\nv_fract_f32 v4, v4\nv_cos_f32 v{8+j}, v4\nv_sin_f32 v{16+j}, v4")
        a("s_nop 0")
        for p in range(4):
            a(f"v_cvt_pk_bf16_f32 v{FC+4*tb+p}, v{8+2*p}, v{9+2*p}\nv_cvt_pk_bf16_f32 v{FS+4*tb+p}, v{16+2*p}, v{17+2*p}")
            a(f"v_xor_b32 v{FN+4*tb+p}, 0x80008000, v{FS+4*tb+p}")

def zero_acc(a,n=128):
    for r in range(n): a(f"v_mov_b32 v{r}, 0")

def epilogue_ffn(a):
    ST=128
    a(f"""
    s_waitcnt lgkmcnt(0)
    v_and_b32 v200, 15, v{VL}
    v_lshlrev_b32 v201, 4, v200
    v_add_u32 v201, {L_STAT}, v201
    v_bfe_u32 v202, v{VL}, 4, 1
    v_lshl_add_u32 v200, v202, 4, v200
    v_lshrrev_b32 v202, 5, v{VL}
    v_lshl_add_u32 v200, v202, 7, v200
    s_lshl_b32 s62, s{S_WAVE}, 5
    v_add_u32 v200, s62, v200
    v_lshlrev_b32 v200, 2, v200
    v_add_u32 v200, {L_CS}, v200
    ds_read_b32 v203, v200
    """)
    for t in range(8): a(f"ds_read_b128 {vr(ST+4*t,4)}, v201 offset:{256*t}")
    a(f"""
    s_mul_i32 s62, s{S_I}, {8*56}
    s_lshl_b32 s63, s{S_J}, 2
    s_add_u32 s62, s62, s63
    s_add_u32 s62, s62, s{S_WAVE}
    s_lshl_b32 s62, s62, 10
    v_lshlrev_b32 v204, 4, v{VL}
    s_waitcnt lgkmcnt(0)
    """)
    for t in range(8):
        a(f"v_mfma_f32_16x16x1_4b_f32 {vr(16*t,16)}, v203, v{ST+4*t}, {vr(16*t,16)}")
    a("s_nop 7")
    T=160
    for t in range(8):
        b=16*t; s=ST+4*t; o=208+4*(t&1)
        for p in range(4):
            a(f"v_pk_mul_f32 {vr(T+2*p,2)}, {vr(b+2*p,2)}, {vr(s,2)} op_sel:[0,1] op_sel_hi:[1,1]")
        for p in range(8): a(f"v_exp_f32 v{T+p}, v{T+p}")
        for p in range(4):
            a(f"v_pk_mul_f32 {vr(b+2*p,2)}, {vr(b+2*p,2)}, {vr(b+8+2*p,2)}")
        for p in range(4):
            a(f"v_pk_fma_f32 {vr(T+2*p,2)}, {vr(T+2*p,2)}, {vr(s+2,2)}, {vr(s+2,2)} op_sel:[0,0,0] op_sel_hi:[1,0,0]")
        for p in range(8): a(f"v_rcp_f32 v{T+p}, v{T+p}")
        a("s_nop 0")
        for p in range(4):
            a(f"v_pk_mul_f32 {vr(b+2*p,2)}, {vr(b+2*p,2)}, {vr(T+2*p,2)}")
        for p in range(4):
            a(f"v_cvt_pk_bf16_f32 v{o+p}, v{b+2*p}, v{b+2*p+1}")
        a(f"buffer_store_dwordx4 {vr(o,4)}, v204, s[{SWS}:{SWS+3}], s62 offen")
        if t<7: a(f"s_add_u32 s62, s62, {56*1024}")

def epilogue_spec(a):
    R=128; Z=160
    a(f"s_waitcnt lgkmcnt(0)\nv_lshrrev_b32 v252, 4, v{VL}\nv_lshlrev_b32 v253, 4, v252\nv_add_u32 v253, {L_RSTD}, v253")
    for t in range(8): a(f"ds_read_b128 {vr(R+4*t,4)}, v253 offset:{64*t}")
    a(f"""
    v_and_b32 v253, 15, v{VL}
    v_lshlrev_b32 v253, 4, v253
    v_lshl_add_u32 v253, v252, 18, v253
    s_sub_u32 s62, s{S_J}, 14
    s_lshl_b32 s62, s62, 11
    s_lshl_b32 s63, s{S_WAVE}, 9
    s_add_u32 s62, s62, s63
    s_lshl_b32 s63, s{S_I}, 12
    s_add_u32 s62, s62, s63
    s_add_u32 s62, s62, {WS_G}
    s_waitcnt lgkmcnt(0)
    """)
    for t in range(8):
        for g in range(4):
            d=(t*4+g)*4
            for p in range(2):
                a(f"v_pk_mul_f32 {vr(d+2*p,2)}, {vr(d+2*p,2)}, {vr(R+4*t+2*p,2)}")
        for g in range(4):
            d=(t*4+g)*4
            z=Z+((t>>1)*4+g)*4+(t&1)*2
            for p in range(2):
                a(f"v_cvt_pk_bf16_f32 v{z+p}, v{d+2*p}, v{d+2*p+1}")
    a("s_nop 1")
    def acc(tb,eb,b,ri): return (((tb*2+eb)*4+b)*2+ri)*4
    for tb in range(2):
        for eb in range(2):
            for b in range(4):
                zr=vr(Z+(b*4+eb)*4,4); zi=vr(Z+(b*4+2+eb)*4,4)
                a(f"{MF} {vr(acc(tb,eb,b,0),4)}, {vr(FC+4*tb,4)}, {zr}, 0")
                a(f"{MF} {vr(acc(tb,eb,b,1),4)}, {vr(FC+4*tb,4)}, {zi}, 0")
                a(f"{MF} {vr(acc(tb,eb,b,0),4)}, {vr(FS+4*tb,4)}, {zi}, {vr(acc(tb,eb,b,0),4)}")
                a(f"{MF} {vr(acc(tb,eb,b,1),4)}, {vr(FN+4*tb,4)}, {zr}, {vr(acc(tb,eb,b,1),4)}")
    a("s_nop 7")
    n=0
    for tb in range(2):
        for eb in range(2):
            for j in range(4):
                o=128+4*(n%8); n+=1
                for b in range(4):
                    a(f"v_cvt_pk_bf16_f32 v{o+b}, v{acc(tb,eb,b,0)+j}, v{acc(tb,eb,b,1)+j}")
                a(f"s_add_u32 s63, s62, {(16*tb+j)*65536}")
                a(f"buffer_store_dwordx4 {vr(o,4)}, v253, s[{SWS}:{SWS+3}], s63 offen offset:{eb*256}")

def kernel_s1(a,cfg):
    name='s1_kernel'
    kbegin(a,name)
    end=a.lab('end')
    prologue(a,end)
    tile_map(a,cfg.get('map','2x16'))
    ld=a.lab('ld'); sp=a.lab('sp')
    a(f"s_cmp_ge_u32 s{S_WAVE}, 4\ns_cbranch_scc1 {ld}")
    a(f"s_cmp_ge_u32 s{S_J}, 14\ns_cbranch_scc1 {sp}")
    stamp(a,2,True)
    compute1_setup(a,False); zero_acc(a); mainloop1(a,False); stamp(a,4); epilogue_ffn(a)
    if CFG.get('probe'): a("s_waitcnt vmcnt(0)")
    stamp(a,5)
    a(f"s_endpgm\n{sp}:")
    stamp(a,2,True)
    compute1_setup(a,True); dft32_consts(a); zero_acc(a); mainloop1(a,True); stamp(a,4); epilogue_spec(a)
    if CFG.get('probe'): a("s_waitcnt vmcnt(0)")
    stamp(a,5)
    a(f"s_endpgm\n{ld}:")
    loader1(a,cfg)
    a(f"{end}:\ns_endpgm")
    return name

S_T1=57; S_NB=58
SL2=32768
L_Y=4*SL2; L_RED=L_Y+16384; LDS2=L_RED+16384

def loader2(a,cfg):
    a(f"s_sub_u32 s74, s{S_WAVE}, 4")
    srd(a,SWD,P_WD,1792*512*2)
    a(f"""
    v_and_b32 v1, 15, v{VL}
    v_lshrrev_b32 v2, 4, v{VL}
    s_lshl_b32 s60, s{S_NB}, 6
    s_lshl_b32 s61, s74, 4
    s_add_u32 s60, s60, s61
    v_add_u32 v3, s60, v1
    v_sub_u32 v4, 512, v3
    s_sub_u32 s61, 32, s{S_T1}
    s_and_b32 s61, s61, 31
    s_cmp_ge_u32 s{S_NB}, 4
    s_cselect_b32 s61, s61, s{S_T1}
    s_cselect_b64 vcc, -1, 0
    s_mov_b32 s63, {hex(f2u(1/2048.))}
    s_mov_b32 s64, {hex(f2u(-1/2048.))}
    s_cselect_b32 s63, s64, s63
    v_cndmask_b32 v4, v3, v4, vcc
    v_subrev_u32 v4, 1, v4
    v_lshlrev_b32 v4, 4, v4
    v_lshl_add_u32 v4, v2, 12, v4
    v_cmp_eq_u32 vcc, 0, v3
    v_mov_b32 v5, 0x40000000
    s_lshl_b32 s61, s61, 16
    v_cndmask_b32 v4, v4, v5, vcc
    s_add_u32 s61, s61, {WS_G}
    """)
    GA=16
    for k in range(4):
        a(f"buffer_load_dwordx4 {vr(GA+4*k,4)}, v4, s[{SWS}:{SWS+3}], s61 offen sc1\ns_add_u32 s61, s61, {4*4096}")
    a(f"""
    v_lshrrev_b32 v5, 3, v{VL}
    v_and_b32 v6, 7, v{VL}
    v_lshlrev_b32 v7, 1, v2
    v_xor_b32 v6, v6, v7
    v_lshlrev_b32 v6, 4, v6
    v_lshl_add_u32 v6, v5, 10, v6
    s_lshl_b32 s60, s{S_NB}, 7
    s_lshl_b32 s61, s74, 15
    s_add_u32 s60, s60, s61
    v_add_u32 v10, s60, v6
    s_lshl_b32 s73, s74, 12
    """)
    stage_rot(a,cfg,76)
    def issue(sg):
        slot=sg%4
        a("s_lshl_b32 s70, s76, 17\ns_add_u32 s76, s76, 1\ns_cmp_eq_u32 s76, 7\ns_cselect_b32 s76, 0, s76")
        for kh in range(2):
            for p in range(4):
                a(f"s_add_u32 m0, s73, {slot*SL2+kh*16384+p*1024}\ns_add_u32 s71, s70, {(kh*896+8*p)*1024}\nbuffer_load_dwordx4 v10, s[{SWD}:{SWD+3}], s71 offen lds")
    for sg in range(4): issue(sg)
    CB=64
    a(f"v_lshlrev_b32 v2, 2, v2\nv_cvt_f32_u32 v2, v2")
    def consts(tb):
        a(f"v_add_u32 v3, {16*tb}, v1\nv_lshlrev_b32 v3, 5, v3\nv_add_u32 v3, s{S_T1}, v3\nv_cvt_f32_u32 v3, v3\nv_mul_f32 v3, s63, v3")
        for k in range(4):
            for b in range(4):
                a(f"v_add_f32 v{40+b}, {hex(f2u(16.0*k+b))}, v2\nv_mul_f32 v{40+b}, v{40+b}, v3\nv_fract_f32 v{40+b}, v{40+b}")
            for b in range(4):
                a(f"v_cos_f32 v{44+b}, v{40+b}\nv_sin_f32 v{48+b}, v{40+b}")
            a("s_nop 0")
            for b in range(4):
                a(f"v_cvt_pk_bf16_f32 v{CB+(tb*4+k)*4+b}, v{44+b}, v{48+b}")
    for sg in range(7):
        n={0:24,1:16,2:16,3:16,4:16,5:8,6:0}[sg]
        a(f"s_waitcnt vmcnt({n})\ns_barrier")
        if 1<=sg<=3: issue(sg+3)
        if sg<4: consts(sg)
    YA=128
    a("s_nop 1")
    for tb in range(4):
        for k in range(4):
            a(f"{MF} {vr(YA+4*tb,4)}, {vr(GA+4*k,4)}, {vr(CB+(tb*4+k)*4,4)}, {'0' if k==0 else vr(YA+4*tb,4)}")
    a(f"v_lshlrev_b32 v1, 4, v{VL}\ns_add_u32 s60, s73, {L_Y}\nv_add_u32 v1, s60, v1\ns_nop 7")
    for tb in range(4):
        a(f"ds_write_b128 v1, {vr(YA+4*tb,4)} offset:{1024*tb}")
    a("s_waitcnt lgkmcnt(0)\ns_barrier")

def stage_rot(a,cfg,s):
    if cfg.get('rot2',1):
        a(f"s_cmp_eq_u32 s{S_NB}, 7\ns_cselect_b32 s{s}, 0, s{S_NB}")
    else:
        a(f"s_mov_b32 s{s}, 0")

def compute2(a,cfg):
    PF=cfg.get('pf2',8)
    ACC=0; WF=32; HF=64; XR=160; AW=200; AH=204
    srd(a,SOUT,P_OUT,2048*512*2)
    a(f"""
    s_lshr_b32 s60, s{S_WAVE}, 1
    s_and_b32 s61, s{S_WAVE}, 1
    s_lshl_b32 s62, s{S_T1}, 2
    s_lshl_b32 s63, s61, 1
    s_add_u32 s62, s62, s63
    s_mul_i32 s62, s62, 56
    s_mul_i32 s63, s60, 28
    s_add_u32 s62, s62, s63
    s_lshl_b32 s62, s62, 10
    v_lshlrev_b32 v1, 4, v{VL}
    v_add_u32 v{AH}, s62, v1
    v_add_u32 v{AH+1}, {56*1024}, v{AH}
    """)
    stage_rot(a,cfg,76)
    for sg in range(7):
        a(f"s_lshl_b32 s{80+sg}, s76, 12\ns_add_u32 s76, s76, 1\ns_cmp_eq_u32 s76, 7\ns_cselect_b32 s76, 0, s76")
    def hload(n):
        sg,k=divmod(n,4); b=HF+8*(n%PF)
        return [f"buffer_load_dwordx4 {vr(b+4*t,4)}, v{AH+t}, s[{SWS}:{SWS+3}], s{80+sg} offen offset:{k*1024} sc1" for t in range(2)]
    a(f"""
    v_and_b32 v1, 15, v{VL}
    v_lshrrev_b32 v2, 4, v{VL}
    s_lshl_b32 s62, s61, 10
    s_add_u32 s62, s62, s{S_T1}
    s_lshl_b32 s62, s62, 10
    s_lshl_b32 s63, s{S_NB}, 7
    s_add_u32 s62, s62, s63
    s_lshl_b32 s63, s60, 6
    s_add_u32 s77, s62, s63
    s_add_u32 s78, s77, {16*32*1024}
    v_lshlrev_b32 v3, 15, v1
    v_lshl_add_u32 v206, v2, 3, v3
    """)
    for t in range(2):
        for eb in range(2):
            a(f"buffer_load_dwordx2 {vr(XR+16+(t*2+eb)*2,2)}, v206, s[{SX}:{SX+3}], s{77+t} offen offset:{32*eb}")
    for n in range(PF):
        for l in hload(n): a(l)
    a(f"""
    v_and_b32 v4, 1, v2
    v_lshlrev_b32 v4, 5, v4
    v_lshrrev_b32 v5, 1, v2
    v_lshl_add_u32 v4, v5, 4, v4
    v_add_u32 v207, v3, v4
    """)
    a(f"""
    v_lshrrev_b32 v3, 2, v1
    v_and_b32 v4, 3, v1
    v_lshl_add_u32 v3, v2, 2, v3
    v_bfe_u32 v5, v3, 1, 2
    s_lshl_b32 s62, s60, 1
    v_xor_b32 v5, s62, v5
    v_lshlrev_b32 v5, 5, v5
    v_lshl_add_u32 v5, v4, 3, v5
    v_lshl_add_u32 v5, v3, 7, v5
    s_lshl_b32 s62, s60, 14
    v_add_u32 v{AW}, s62, v5
    """)
    for eb in range(1,4): a(f"v_xor_b32 v{AW+eb}, {eb<<5}, v{AW}")
    for eb in range(4): a(f"v_add_u32 v{210+eb}, {2*SL2}, v{AW+eb}")
    def wreads(n):
        sg,k=divmod(n,4); b=WF+16*(n&1); slot=sg%4
        base=AW if slot<2 else 210
        return [f"ds_read_b64_tr_b16 {vr(b+4*eb+2*rho,2)}, v{base+eb} offset:{(slot&1)*SL2+k*4096+rho*2048}" for eb in range(4) for rho in range(2)]
    a("s_barrier")
    for l in wreads(0): a(l)
    a(f"s_waitcnt vmcnt({2*PF})")
    for i in range(8):
        a(f"v_lshlrev_b32 v{XR+2*i}, 16, v{XR+16+i}\nv_and_b32 v{XR+2*i+1}, 0xffff0000, v{XR+16+i}")
    for n in range(28):
        outstanding=2*(min(28,n+PF)-(n+1))
        a(f"s_waitcnt vmcnt({outstanding}) lgkmcnt(0)")
        if n%4==3 and n<27: a("s_barrier")
        r=wreads(n+1) if n<27 else []
        hb=HF+8*(n%PF); wb=WF+16*(n&1)
        i=0
        for t in range(2):
            for ee in range(4):
                eb=ee if t==0 else 3-ee
                d=ACC+(t*4+eb)*4
                a(f"{MF} {vr(d,4)}, {vr(wb+4*eb,4)}, {vr(hb+4*t,4)}, {'0' if n==0 else vr(d,4)}")
                if i<len(r): a(r[i])
                i+=1
        if n+PF<28:
            for l in hload(n+PF): a(l)
    a(f"""
    v_lshlrev_b32 v40, 4, v{VL}
    s_lshl_b32 s62, s{S_WAVE}, 12
    s_add_u32 s62, s62, {L_RED}
    v_add_u32 v41, s62, v40
    v_xor_b32 v42, 8192, v41
    s_lshl_b32 s62, s60, 13
    s_lshl_b32 s63, s61, 11
    s_add_u32 s62, s62, s63
    s_add_u32 s62, s62, {L_Y}
    v_add_u32 v43, s62, v40
    s_nop 1
    """)
    for t in range(2):
        for eb in range(2):
            a(f"ds_write_b128 v41, {vr(ACC+(t*4+2+eb)*4,4)} offset:{(t*2+eb)*1024}")
    a("s_waitcnt lgkmcnt(0)\ns_barrier")
    RD=64; Y=80; T=96
    for t in range(2):
        for eb in range(2):
            a(f"ds_read_b128 {vr(RD+(t*2+eb)*4,4)}, v42 offset:{(t*2+eb)*1024}")
    for t in range(2):
        for eb in range(2):
            a(f"ds_read_b128 {vr(Y+(t*2+eb)*4,4)}, v43 offset:{eb*4096+t*1024}")
    a(f"s_mov_b32 s64, {hex(f2u(-LOG2E))}\ns_mov_b32 s65, s64\ns_waitcnt lgkmcnt(0)")
    for t in range(2):
        b=ACC+t*16
        for p in range(4): a(f"v_pk_add_f32 {vr(b+2*p,2)}, {vr(b+2*p,2)}, {vr(RD+t*8+2*p,2)}")
        for p in range(4): a(f"v_pk_mul_f32 {vr(T+2*p,2)}, {vr(b+2*p,2)}, s[64:65]")
        for p in range(8): a(f"v_exp_f32 v{T+p}, v{T+p}")
        for p in range(4): a(f"v_pk_mul_f32 {vr(b+2*p,2)}, {vr(b+2*p,2)}, {vr(Y+t*8+2*p,2)}")
        for p in range(4): a(f"v_pk_add_f32 {vr(T+2*p,2)}, {vr(T+2*p,2)}, 1.0 op_sel_hi:[1,0]")
        for p in range(8): a(f"v_rcp_f32 v{T+p}, v{T+p}")
        a("s_nop 0")
        for p in range(4): a(f"v_pk_fma_f32 {vr(b+2*p,2)}, {vr(b+2*p,2)}, {vr(T+2*p,2)}, {vr(XR+t*8+2*p,2)}")
        o=112+4*t
        for p in range(4): a(f"v_cvt_pk_bf16_f32 v{o+p}, v{b+2*p}, v{b+2*p+1}")
        a(f"s_nop 1\nv_permlane16_swap_b32 v{o}, v{o+2}\nv_permlane16_swap_b32 v{o+1}, v{o+3}")
        a(f"buffer_store_dwordx4 {vr(o,4)}, v207, s[{SOUT}:{SOUT+3}], s{77+t} offen")

def kernel_s2(a,cfg):
    name='s2_kernel'
    kbegin(a,name)
    end=a.lab('end')
    prologue(a,end)
    a(f"s_and_b32 s60, s2, 7\ns_lshr_b32 s61, s2, 3\ns_lshl_b32 s60, s60, 2\ns_and_b32 s62, s61, 3\ns_add_u32 s{S_T1}, s60, s62\ns_lshr_b32 s{S_NB}, s61, 2")
    ld=a.lab('ld')
    a(f"s_cmp_ge_u32 s{S_WAVE}, 4\ns_cbranch_scc1 {ld}")
    compute2(a,cfg)
    if CFG.get('probe'): a("s_waitcnt vmcnt(0)")
    stamp(a,8)
    a(f"s_endpgm\n{ld}:")
    stamp(a,6,True)
    if CFG.get('probe'): a("s_waitcnt vmcnt(0)")
    loader2(a,cfg)
    stamp(a,7)
    a(f"{end}:\ns_endpgm")
    return name

def build(cfg):
    a=Asm()
    a(f"; @launch kernel=st_kernel grid=(256,1,1) block=(256,1,1) lds=0")
    a(f"; @launch kernel=s1_kernel grid=(256,1,1) block=(512,1,1) lds={LDS1}")
    a(f"; @launch kernel=s2_kernel grid=(256,1,1) block=(512,1,1) lds={LDS2}")
    for n in range(cfg.get('dummy',0)):
        a(f"; @launch kernel=nop_kernel grid=(256,1,1) block=(64,1,1) lds=0")
    CFG.update(cfg)
    if cfg.get('probe'): a(f"; @launch kernel=probe_kernel grid=(1,1,1) block=(64,1,1) lds=0")
    a('.amdgcn_target "amdgcn-amd-amdhsa--gfx950"\n.text')
    names=[kernel_stats(a),kernel_s1(a,cfg),kernel_s2(a,cfg)]
    if cfg.get('probe'): names.append(kernel_probe(a))
    if cfg.get('dummy',0):
        kbegin(a,'nop_kernel'); a("s_endpgm"); names.append('nop_kernel')
    a('.section .rodata,"a"')
    for n in names:
        a('.p2align 6')
        a.l.append(kd(n,256,102,256))
    return a.text()

if __name__=='__main__':
    cfg={}
    for kv in sys.argv[2:]:
        k,v=kv.split('='); cfg[k]=int(v) if v.lstrip('-').isdigit() else v
    open(sys.argv[1],'w').write(build(cfg))
```

```python
import sys, struct
NAME='recurrent_scan__spectral_fnet__swiglu_ffn__prompt'
LOG2E=1.4426950408889634
def f2u(x): return struct.unpack('<I',struct.pack('<f',x))[0]
def hx(x): return hex(f2u(x))

WS_H=0; WS_G=0x700000; WS_ST=0x900000; WS_CS=0x904000; WS_FL=0x920000
WS_STAMP=0x930000; WS_TRACE=0x940000
CFG={}
def ws_end(): return 0xA40000 if (CFG.get('probe') or CFG.get('trace')) else 0x930000
OOB=0x40000000

class Asm:
    def __init__(self): self.l=[]; self.n=0
    def __call__(self,s):
        for line in s.split('\n'):
            line=line.strip()
            if line: self.l.append(('' if line.endswith(':') or line.startswith('.') or line.startswith(';') else '    ')+line)
    def lab(self,b): self.n+=1; return f"L_{b}_{self.n}"
    def text(self): return '\n'.join(self.l)+'\n'

class VM:
    def __init__(self): self.ops=[]
    def op(self,tag): self.ops.append(tag)
    def need(self,*tags):
        last=max(i for i,t in enumerate(self.ops) if t in tags)
        n=len(self.ops)-1-last
        assert n<=63, n
        return n

def kd(name,vgpr,sgpr,accum):
    return f""".amdhsa_kernel {name}
  .amdhsa_next_free_vgpr {vgpr}
  .amdhsa_next_free_sgpr {sgpr}
  .amdhsa_accum_offset {accum}
  .amdhsa_group_segment_fixed_size 0
  .amdhsa_kernarg_size 96
  .amdhsa_user_sgpr_count 2
  .amdhsa_user_sgpr_kernarg_segment_ptr 1
  .amdhsa_system_sgpr_workgroup_id_x 1
  .amdhsa_float_denorm_mode_32 3
.end_amdhsa_kernel
"""
def kbegin(a,name): a(f".globl {name}\n.p2align 8\n.type {name},@function\n{name}:")
def srd(a,d,base,nbytes):
    a(f"s_mov_b32 s{d}, s{base}\ns_mov_b32 s{d+1}, s{base+1}\ns_mov_b32 s{d+2}, {nbytes}\ns_mov_b32 s{d+3}, 0x00020000")
def vr(b,n): return f"v[{b}:{b+n-1}]" if n>1 else f"v{b}"
def sr(b): return f"s[{b}:{b+3}]"
MF="v_mfma_f32_16x16x32_bf16"

P_X,P_HRE,P_HIM,P_WG,P_WU,P_WD,P_OUT,P_DBG,P_WS=32,38,40,44,46,48,50,52,54
SDBG,SX,SB0,SB1,SWS,SWD,SOUT=4,8,12,16,20,24,28
S_WAVE=56; S_I=57; S_J=58; S_T1=59; S_NB=3
VL=255
SPIN=200000

def ls(a,idx):
    if not (CFG.get('trace') or CFG.get('probe')): return
    a(f"s_memrealtime s[96:97]\ns_waitcnt lgkmcnt(0)\nv_writelane_b32 v254, s96, {idx}")
def ls_first(a):
    if not (CFG.get('trace') or CFG.get('probe')): return
    a(f"v_writelane_b32 v254, s94, 0")
def ls_dump(a):
    if not (CFG.get('trace') or CFG.get('probe')): return
    a(f"s_lshl_b32 s98, s2, 11\ns_lshl_b32 s99, s{S_WAVE}, 8\ns_add_u32 s98, s98, s99\ns_add_u32 s98, s98, {WS_TRACE}\nv_lshlrev_b32 v253, 2, v{VL}\nbuffer_store_dword v254, v253, {sr(SWS)}, s98 offen")
def kernel_probe(a):
    pa,pb=CFG['probe'].split(':'); K=CFG.get('K',10)
    name='probe_kernel'; kbegin(a,name); end=a.lab('end')
    a(f"s_cmp_ge_u32 s2, 1\ns_cbranch_scc1 {end}")
    a("s_load_dwordx2 s[54:55], s[0:1], 88\ns_waitcnt lgkmcnt(0)")
    srd(a,SWS,P_WS,ws_end())
    a("v_lshlrev_b32 v1, 11, v0")
    for r,p in ((4,pa),(8,pb)):
        w,i=p[3:].split('.')
        for q in range(4):
            a(f"s_mov_b32 s60, {WS_TRACE+int(w)*256+int(i)*4+q*64*2048}\nbuffer_load_dword v{r+q}, v1, {sr(SWS)}, s60 offen")
    a("s_waitcnt vmcnt(0)\ns_nop 0\nv_readfirstlane_b32 s61, v4\ns_nop 3")
    for r in range(4,12): a(f"v_subrev_u32 v{r}, s61, v{r}")
    for r,p,sd in ((4,pa,62),(8,pb,63)):
        op=p[:3]
        vop={'min':'v_min_i32','max':'v_max_i32','avg':'v_add_u32'}[op]; sop={'min':'s_min_i32','max':'s_max_i32','avg':'s_add_u32'}[op]
        a(f"{vop} v{r}, v{r}, v{r+1}\n{vop} v{r+2}, v{r+2}, v{r+3}\n{vop} v{r}, v{r}, v{r+2}\ns_nop 0")
        a(f"v_readlane_b32 s{sd}, v{r}, 0")
        for l in range(1,64): a(f"v_readlane_b32 s64, v{r}, {l}\ns_nop 0\n{sop} s{sd}, s{sd}, s64")
        a(f"s_mul_i32 s{sd}, s{sd}, {K}")
        if op=='avg': a(f"s_ashr_i32 s{sd}, s{sd}, 8")
    a("s_sub_u32 s62, s63, s62\ns_max_i32 s62, s62, 0\ns_min_i32 s62, s62, 100000")
    a("s_memrealtime s[66:67]\ns_waitcnt lgkmcnt(0)")
    lp=a.lab('spin')
    a(f"{lp}:\ns_memrealtime s[68:69]\ns_waitcnt lgkmcnt(0)\ns_sub_u32 s68, s68, s66\ns_cmp_lt_u32 s68, s62\ns_cbranch_scc1 {lp}")
    a(f"{end}:\ns_endpgm")
    return name

SLOT=49152
L_STAT=3*SLOT; L_RSTD=L_STAT+2048; L_CS=L_RSTD+512
L_Y=3*SLOT; L_RED=32768; LDS=163840
def unit_base(n):
    n%=18
    return (2*SLOT,0,SLOT)[n//6]+(n%6)*8192

def tile_map(a):
    mapping=CFG.get('map','2x16')
    a("s_and_b32 s60, s2, 7\ns_lshr_b32 s61, s2, 3")
    if mapping=='2x16':
        a(f"s_lshl_b32 s{S_I}, s60, 1\ns_and_b32 s62, s61, 1\ns_add_u32 s{S_I}, s{S_I}, s62\ns_lshr_b32 s{S_J}, s61, 1")
    elif mapping=='8x4':
        a(f"s_and_b32 s{S_I}, s60, 1\ns_lshl_b32 s{S_I}, s{S_I}, 3\ns_and_b32 s62, s61, 7\ns_add_u32 s{S_I}, s{S_I}, s62")
        a(f"s_lshr_b32 s{S_J}, s60, 1\ns_lshl_b32 s{S_J}, s{S_J}, 2\ns_lshr_b32 s62, s61, 3\ns_add_u32 s{S_J}, s{S_J}, s62")
    elif mapping=='4x8':
        a(f"s_and_b32 s{S_I}, s60, 3\ns_lshl_b32 s{S_I}, s{S_I}, 2\ns_and_b32 s62, s61, 3\ns_add_u32 s{S_I}, s{S_I}, s62")
        a(f"s_lshr_b32 s{S_J}, s60, 2\ns_lshl_b32 s{S_J}, s{S_J}, 3\ns_lshr_b32 s62, s61, 2\ns_add_u32 s{S_J}, s{S_J}, s62")
    a(f"s_lshl_b32 s60, s60, 2\ns_and_b32 s62, s61, 3\ns_add_u32 s{S_T1}, s60, s62\ns_lshr_b32 s{S_NB}, s61, 2")
    if CFG.get('nbx'): a(f"s_xor_b32 s{S_NB}, s{S_NB}, {CFG['nbx']}")

def token_row(a,spec,vt,vd,tmp):
    if not spec:
        a(f"v_and_b32 v{vd}, 63, v{vt}\nv_lshlrev_b32 v{vd}, 5, v{vd}\nv_lshrrev_b32 v{tmp}, 6, v{vt}\ns_lshl_b32 s62, s{S_I}, 1\nv_add3_u32 v{vd}, v{vd}, v{tmp}, s62")
    else:
        a(f"v_and_b32 v{vd}, 31, v{vt}\nv_lshlrev_b32 v{vd}, 6, v{vd}\nv_lshrrev_b32 v{tmp}, 5, v{vt}\ns_lshl_b32 s62, s{S_I}, 2\nv_add3_u32 v{vd}, v{vd}, v{tmp}, s62")

def stats_colsum(a):
    a(f"""
    s_lshr_b32 s60, s2, 2
    s_and_b32 s61, s2, 3
    s_cmp_ge_u32 s60, 28
    s_cselect_b32 s64, s{P_WU}, s{P_WG}
    s_cselect_b32 s65, s{P_WU+1}, s{P_WG+1}
    s_cselect_b32 s62, 28, 0
    s_mov_b32 s66, {512*1792*2}
    s_mov_b32 s67, 0x00020000
    s_sub_u32 s62, s60, s62
    s_lshl_b32 s62, s62, 7
    s_mul_i32 s63, s61, {128*3584}
    s_add_u32 s62, s62, s63
    v_lshrrev_b32 v1, 3, v{VL}
    v_mul_u32_u24 v1, 3584, v1
    v_and_b32 v2, 7, v{VL}
    v_lshl_add_u32 v1, v2, 4, v1
    """)
    for n in range(16):
        a(f"buffer_load_dwordx4 {vr(144+4*n,4)}, v1, s[64:67], s62 offen")
        if n<15: a(f"s_add_u32 s62, s62, {8*3584}")
    a(f"""
    v_and_b32 v2, 15, v{VL}
    v_and_b32 v3, 1, v2
    v_lshlrev_b32 v3, 4, v3
    v_mov_b32 v8, 0x3f80
    v_lshlrev_b32 v3, v3, v8
    v_lshrrev_b32 v2, 1, v2
    """)
    for p in range(4):
        a(f"v_cmp_eq_u32 vcc, {p}, v2\ns_nop 1\nv_cndmask_b32 v{132+p}, 0, v3, vcc")
    a(f"""
    s_mul_i32 s61, s61, {3584*4}
    s_lshl_b32 s60, s60, 8
    s_add_u32 s60, s60, s61
    s_add_u32 s68, s60, {WS_CS}
    v_and_b32 v2, 7, v{VL}
    v_lshlrev_b32 v2, 5, v2
    v_and_b32 v3, 16, v{VL}
    v_add_u32 v128, v2, v3
    """)
def stats_colsum2(a):
    for n in range(16):
        a(f"s_waitcnt vmcnt({15-n})")
        a(f"{MF} v[136:139], v[132:135], {vr(144+4*n,4)}, {'0' if n==0 else 'v[136:139]'}")
    a("s_nop 7\ns_nop 1")
    for j in range(4):
        a(f"v_add_f32_dpp v{140+j}, v{136+j}, v{136+j} row_ror:8 row_mask:0xf bank_mask:0xf")
    a(f"s_mov_b64 exec, 0x00ff00ff")
    a(f"buffer_store_dwordx4 v[140:143], v128, {sr(SWS)}, s68 offen sc1")
    a("s_mov_b64 exec, -1")

def stats_rows(a):
    a(f"""
    s_sub_u32 s60, s{S_WAVE}, 1
    s_lshr_b32 s61, s2, 3
    s_and_b32 s62, s2, 7
    s_lshl_b32 s63, s61, 1
    s_add_u32 s63, s63, s60
    s_lshl_b32 s64, s62, 8
    s_add_u32 s63, s63, s64
    s_lshl_b32 s63, s63, 10
    v_lshrrev_b32 v1, 4, v{VL}
    v_and_b32 v2, 15, v{VL}
    v_lshlrev_b32 v2, 4, v2
    v_lshl_add_u32 v2, v1, 16, v2
    """)
    for p in range(4):
        a(f"buffer_load_dwordx4 {vr(144+4*p,4)}, v2, {sr(SX)}, s63 offen offset:{256*p}")
    a(f"""
    s_lshl_b32 s61, s61, 9
    s_lshl_b32 s62, s62, 6
    s_add_u32 s61, s61, s62
    s_lshl_b32 s60, s60, 3
    s_add_u32 s61, s61, s60
    s_add_u32 s68, s61, {WS_ST}
    v_lshlrev_b32 v128, 4, v1
    """)
def stats_rows2(a):
    a(f"""
    v_mov_b32 v131, 0x3f803f80
    v_mov_b32 v132, 0
    v_mov_b32 v133, 0
    v_mov_b32 v134, 0x00003f80
    v_mov_b32 v135, 0x3f800000
    v_mov_b32 v136, 0
    v_mov_b32 v137, 0
    """)
    for p in range(4):
        a(f"s_waitcnt vmcnt({3-p})")
        for r in range(4):
            a(f"v_dot2c_f32_bf16 v{132+(r&1)}, v{144+4*p+r}, v131")
    a("s_nop 2\nv_add_f32 v132, v132, v133")
    def red(v):
        for s in (8,4,2,1):
            a(f"s_nop 1\nv_add_f32_dpp v{v}, v{v}, v{v} row_ror:{s} row_mask:0xf bank_mask:0xf")
    red(132)
    a(f"v_mul_f32 v132, {hx(-1.0/512)}, v132")
    for p in range(4):
        for r in range(4):
            a(f"v_dot2_f32_bf16 v{160+2*r}, v{144+4*p+r}, v134, v132\nv_dot2_f32_bf16 v{161+2*r}, v{144+4*p+r}, v135, v132")
        for r in range(8):
            a(f"v_fmac_f32 v{136+(r&1)}, v{160+r}, v{160+r}")
    a("v_add_f32 v136, v136, v137")
    red(136)
    a(f"""
    v_mul_f32 v136, {hx(1.0/512)}, v136
    v_cvt_pk_bf16_f32 v136, v136, v132
    v_and_b32 v138, 0xffff0000, v136
    v_lshlrev_b32 v136, 16, v136
    v_add_f32 v136, {hx(1e-5)}, v136
    v_cvt_pk_bf16_f32 v136, v136, v136
    v_lshlrev_b32 v136, 16, v136
    v_sqrt_f32 v136, v136
    s_nop 0
    v_cvt_pk_bf16_f32 v136, v136, v136
    v_lshlrev_b32 v139, 16, v136
    s_mov_b32 exec_lo, 0x00010001
    s_mov_b32 exec_hi, 0x00010001
    buffer_store_dwordx2 v[138:139], v128, {sr(SWS)}, s68 offen sc1
    s_mov_b64 exec, -1
    """)

def flag_addr(a,sd):
    a(f"s_lshl_b32 s{sd}, s{S_I}, 4\ns_add_u32 s{sd}, s{sd}, s{S_J}\ns_lshl_b32 s{sd}, s{sd}, 7\ns_add_u32 s{sd}, s{sd}, {WS_FL}")

XA,XB,WA,WB=128,160,192,208
AX0,AX1,AW0,AW1=224,225,226,227
FC,FS,FN=228,236,244

def compute1_setup(a,spec):
    a(f"""
    v_and_b32 v1, 15, v{VL}
    v_lshrrev_b32 v2, 4, v{VL}
    v_lshrrev_b32 v3, 1, v1
    v_xor_b32 v3, v3, v2
    v_lshlrev_b32 v3, 4, v3
    v_lshl_add_u32 v{AX0}, v1, 7, v3
    v_xor_b32 v{AX1}, 64, v{AX0}
    s_mov_b32 s73, {SLOT}
    """)
    if spec:
        a(f"s_lshl_b32 s62, s{S_WAVE}, 12\nv_add_u32 v{AW0}, s62, v{AX0}\nv_add_u32 v{AW1}, s62, v{AX1}")
    else:
        a(f"""
        v_lshrrev_b32 v3, 2, v1
        v_and_b32 v4, 3, v1
        v_and_b32 v5, 1, v2
        v_lshl_or_b32 v5, v5, 2, v3
        s_lshl_b32 s62, s{S_WAVE}, 1
        v_xor_b32 v5, s62, v5
        v_lshlrev_b32 v5, 5, v5
        v_lshl_add_u32 v5, v4, 3, v5
        v_lshl_add_u32 v3, v2, 3, v3
        v_lshl_add_u32 v{AW0}, v3, 8, v5
        v_xor_b32 v{AW1}, 32, v{AW0}
        """)

def dft32_consts(a):
    a(f"v_and_b32 v1, 15, v{VL}\nv_lshrrev_b32 v2, 4, v{VL}\nv_lshlrev_b32 v2, 2, v2\nv_cvt_f32_u32 v2, v2\nv_cvt_f32_u32 v1, v1")
    for tb in range(2):
        a(f"v_add_f32 v3, {hx(16.0*tb)}, v1\nv_mul_f32 v3, {hx(1/32.)}, v3")
        for j in range(8):
            a(f"v_add_f32 v4, {hx(16.0*(j>>2)+(j&3))}, v2\nv_mul_f32 v4, v4, v3\nv_cos_f32 v{8+j}, v4\nv_sin_f32 v{16+j}, v4")
        a("s_nop 0")
        for p in range(4):
            a(f"v_cvt_pk_bf16_f32 v{FC+4*tb+p}, v{8+2*p}, v{9+2*p}\nv_cvt_pk_bf16_f32 v{FS+4*tb+p}, v{16+2*p}, v{17+2*p}")
            a(f"v_xor_b32 v{FN+4*tb+p}, 0x80008000, v{FS+4*tb+p}")

def zero_acc(a):
    for r in range(0,128,2): a(f"v_mov_b64 v[{r}:{r+1}], 0")

def mainloop1(a,spec):
    def reads(k,xb,wb):
        xs=[f"ds_read_b128 {vr(xb+4*t,4)}, v{AX0+k} offset:{t*2048}" for t in range(8)]
        ws=[]
        for g in range(4):
            if spec:
                ws.append(f"ds_read_b128 {vr(wb+4*g,4)}, v{AW0+k} offset:{16384+(g>>1)*16384+(g&1)*2048}")
            else:
                for rho in range(2):
                    ws.append(f"ds_read_b64_tr_b16 {vr(wb+4*g+2*rho,2)}, v{AW0+(g&1)} offset:{16384+(g>>1)*16384+k*8192+rho*1024}")
        return ws+xs
    def mfmas(xb,wb):
        out=[]
        for t in range(8):
            for gg in range(4):
                g=gg if t%2==0 else 3-gg
                d=(t*4+g)*4
                x=vr(xb+4*t,4); w=vr(wb+4*g,4)
                p,q=(x,w) if spec else (w,x)
                out.append(f"{MF} {vr(d,4)}, {p}, {q}, {vr(d,4)}")
        return out
    ls(a,1)
    a("s_barrier")
    ls(a,2)
    for l in reads(0,XA,WA): a(l)
    a(f"s_mov_b32 s70, 0\ns_mov_b32 s72, 8")
    loop=a.lab('loop')
    a(f".p2align 6\n{loop}:")
    a("s_waitcnt lgkmcnt(0)")
    r=reads(1,XB,WB)
    extra={17:f"s_add_u32 s70, s70, 1\ns_cmp_eq_u32 s70, 3",18:f"s_cselect_b32 s71, {-2*SLOT}, s73\ns_cselect_b32 s70, 0, s70",
           20:f"v_add_u32 v{AX0}, s71, v{AX0}",21:f"v_add_u32 v{AX1}, s71, v{AX1}",22:f"v_add_u32 v{AW0}, s71, v{AW0}",23:f"v_add_u32 v{AW1}, s71, v{AW1}"}
    for i,m in enumerate(mfmas(XA,WA)):
        a(m)
        if i<len(r): a(r[i])
        if i in extra: a(extra[i])
    a("s_waitcnt vmcnt(0) lgkmcnt(0)\ns_barrier")
    r=reads(0,XA,WA)
    for i,m in enumerate(mfmas(XB,WB)):
        a(m)
        if i<len(r): a(r[i])
        if i==20: a("s_sub_u32 s72, s72, 1\ns_cmp_lg_u32 s72, 0")
    a(f"s_cbranch_scc1 {loop}")

def epilogue_ffn(a):
    ST=128
    a(f"""
    s_waitcnt lgkmcnt(0)
    v_and_b32 v200, 15, v{VL}
    v_lshlrev_b32 v201, 4, v200
    v_add_u32 v201, {L_STAT}, v201
    v_bfe_u32 v202, v{VL}, 4, 1
    v_lshl_add_u32 v200, v202, 4, v200
    v_lshrrev_b32 v202, 5, v{VL}
    v_lshl_add_u32 v200, v202, 7, v200
    s_lshl_b32 s62, s{S_WAVE}, 5
    v_add_u32 v200, s62, v200
    v_lshlrev_b32 v200, 2, v200
    v_add_u32 v200, {L_CS}, v200
    ds_read_b32 v203, v200
    """)
    for t in range(8): a(f"ds_read_b128 {vr(ST+4*t,4)}, v201 offset:{256*t}")
    a(f"""
    s_mul_i32 s62, s{S_I}, {8*56}
    s_lshl_b32 s63, s{S_J}, 2
    s_add_u32 s62, s62, s63
    s_add_u32 s62, s62, s{S_WAVE}
    s_lshl_b32 s62, s62, 10
    v_lshlrev_b32 v204, 4, v{VL}
    s_waitcnt lgkmcnt(0)
    """)
    for t in range(8):
        a(f"v_mfma_f32_16x16x1_4b_f32 {vr(16*t,16)}, v203, v{ST+4*t}, {vr(16*t,16)}")
    a("s_nop 3")
    T=160
    for t in range(8):
        b=16*t; s=ST+4*t; o=208+4*(t&1)
        for p in range(4):
            a(f"v_pk_mul_f32 {vr(T+2*p,2)}, {vr(b+2*p,2)}, {vr(s,2)} op_sel:[0,1] op_sel_hi:[1,1]")
        for p in range(8): a(f"v_exp_f32 v{T+p}, v{T+p}")
        for p in range(4):
            a(f"v_pk_mul_f32 {vr(b+2*p,2)}, {vr(b+2*p,2)}, {vr(b+8+2*p,2)}")
        for p in range(4):
            a(f"v_pk_fma_f32 {vr(T+2*p,2)}, {vr(T+2*p,2)}, {vr(s+2,2)}, {vr(s+2,2)} op_sel:[0,0,0] op_sel_hi:[1,0,0]")
        for p in range(8): a(f"v_rcp_f32 v{T+p}, v{T+p}")
        for p in range(4):
            a(f"v_pk_mul_f32 {vr(b+2*p,2)}, {vr(b+2*p,2)}, {vr(T+2*p,2)}")
        for p in range(4):
            a(f"v_cvt_pk_bf16_f32 v{o+p}, v{b+2*p}, v{b+2*p+1}")
        a(f"buffer_store_dwordx4 {vr(o,4)}, v204, {sr(SWS)}, s62 offen sc1")
        if t<7: a(f"s_add_u32 s62, s62, {56*1024}")

def epilogue_spec(a):
    R=128; Z=160
    a(f"s_waitcnt lgkmcnt(0)\nv_lshrrev_b32 v252, 4, v{VL}\nv_lshlrev_b32 v253, 4, v252\nv_add_u32 v253, {L_RSTD}, v253")
    for t in range(8): a(f"ds_read_b128 {vr(R+4*t,4)}, v253 offset:{64*t}")
    a(f"""
    v_and_b32 v253, 15, v{VL}
    v_lshlrev_b32 v253, 4, v253
    v_lshl_add_u32 v253, v252, 18, v253
    s_sub_u32 s62, s{S_J}, 14
    s_lshl_b32 s62, s62, 11
    s_lshl_b32 s63, s{S_WAVE}, 9
    s_add_u32 s62, s62, s63
    s_lshl_b32 s63, s{S_I}, 12
    s_add_u32 s62, s62, s63
    s_add_u32 s62, s62, {WS_G}
    s_waitcnt lgkmcnt(0)
    """)
    for t in range(8):
        for g in range(4):
            d=(t*4+g)*4
            for p in range(2):
                a(f"v_pk_mul_f32 {vr(d+2*p,2)}, {vr(d+2*p,2)}, {vr(R+4*t+2*p,2)}")
        for g in range(4):
            d=(t*4+g)*4
            z=Z+((t>>1)*4+g)*4+(t&1)*2
            for p in range(2):
                a(f"v_cvt_pk_bf16_f32 v{z+p}, v{d+2*p}, v{d+2*p+1}")
    a("s_nop 1")
    def acc(tb,eb,b,ri): return (((tb*2+eb)*4+b)*2+ri)*4
    def group(tb,eb):
        out=[]
        for b in range(4):
            zr=vr(Z+(b*4+eb)*4,4); zi=vr(Z+(b*4+2+eb)*4,4)
            out+=[f"{MF} {vr(acc(tb,eb,b,0),4)}, {vr(FC+4*tb,4)}, {zr}, 0",
                  f"{MF} {vr(acc(tb,eb,b,1),4)}, {vr(FC+4*tb,4)}, {zi}, 0",
                  f"{MF} {vr(acc(tb,eb,b,0),4)}, {vr(FS+4*tb,4)}, {zi}, {vr(acc(tb,eb,b,0),4)}",
                  f"{MF} {vr(acc(tb,eb,b,1),4)}, {vr(FN+4*tb,4)}, {zr}, {vr(acc(tb,eb,b,1),4)}"]
        return out
    def pack(tb,eb,n0):
        out=[]
        for j in range(4):
            o=128+4*((n0+j)%8)
            for b in range(4):
                out.append(f"v_cvt_pk_bf16_f32 v{o+b}, v{acc(tb,eb,b,0)+j}, v{acc(tb,eb,b,1)+j}")
            out.append(f"s_add_u32 s63, s62, {(16*tb+j)*65536}\nbuffer_store_dwordx4 {vr(o,4)}, v253, {sr(SWS)}, s63 offen offset:{eb*256} sc1")
        return out
    gs=[(0,0),(0,1),(1,0),(1,1)]
    for gi,(tb,eb) in enumerate(gs):
        m=group(tb,eb)
        pk=pack(*gs[gi-1],4*(gi-1)) if gi>0 else []
        for i,x in enumerate(m):
            a(x)
            if i>=8 and pk:
                for _ in range(3):
                    if pk: a(pk.pop(0))
        for x in pk: a(x)
    a("s_nop 7")
    for x in pack(1,1,12): a(x)

def stage_rot(a,s):
    if CFG.get('rot2',1): a(f"s_cmp_eq_u32 s{S_NB}, 7\ns_cselect_b32 s{s}, 0, s{S_NB}")
    else: a(f"s_mov_b32 s{s}, 0")

def compute2(a):
    PF=CFG.get('pf2',8)
    ACC=0; WF=32; HF=80; XR=176; AW=200; AH=204
    assert HF+8*PF<=XR
    ls(a,4)
    flag_addr(a,64)
    a(f"""
    s_lshl_b32 s65, s{S_WAVE}, 2
    s_add_u32 s64, s64, s65
    v_mov_b32 v1, 1
    s_lshr_b32 s60, s{S_WAVE}, 1
    s_and_b32 s61, s{S_WAVE}, 1
    """)
    srd(a,SOUT,P_OUT,2048*512*2)
    a(f"""
    v_and_b32 v6, 15, v{VL}
    v_lshrrev_b32 v2, 4, v{VL}
    s_lshl_b32 s62, s61, 10
    s_add_u32 s62, s62, s{S_T1}
    s_lshl_b32 s62, s62, 10
    s_lshl_b32 s63, s{S_NB}, 7
    s_add_u32 s62, s62, s63
    s_lshl_b32 s63, s60, 6
    s_add_u32 s77, s62, s63
    s_add_u32 s78, s77, {16*32*1024}
    v_lshlrev_b32 v3, 15, v6
    v_lshl_add_u32 v206, v2, 3, v3
    v_and_b32 v4, 1, v2
    v_lshlrev_b32 v4, 5, v4
    v_lshrrev_b32 v5, 1, v2
    v_lshl_add_u32 v4, v5, 4, v4
    v_add_u32 v207, v3, v4
    """)
    a(f"""
    s_lshl_b32 s62, s{S_T1}, 2
    s_lshl_b32 s63, s61, 1
    s_add_u32 s62, s62, s63
    s_mul_i32 s62, s62, 56
    s_mul_i32 s63, s60, 28
    s_add_u32 s62, s62, s63
    s_lshl_b32 s62, s62, 10
    v_lshlrev_b32 v7, 4, v{VL}
    v_add_u32 v{AH}, s62, v7
    v_add_u32 v{AH+1}, {56*1024}, v{AH}
    """)
    stage_rot(a,76)
    for sg in range(7):
        a(f"s_lshl_b32 s{80+sg}, s76, 12\ns_add_u32 s76, s76, 1\ns_cmp_eq_u32 s76, 7\ns_cselect_b32 s76, 0, s76")
    a(f"""
    v_lshrrev_b32 v3, 2, v6
    v_and_b32 v4, 3, v6
    v_lshl_add_u32 v3, v2, 2, v3
    v_bfe_u32 v5, v3, 1, 2
    s_lshl_b32 s62, s60, 1
    v_xor_b32 v5, s62, v5
    v_lshlrev_b32 v5, 5, v5
    v_lshl_add_u32 v5, v4, 3, v5
    v_lshl_add_u32 v5, v3, 7, v5
    s_lshl_b32 s62, s60, 12
    v_add_u32 v{AW}, s62, v5
    """)
    for eb in range(1,4): a(f"v_xor_b32 v{AW+eb}, {eb<<5}, v{AW}")
    for eb in range(4): a(f"v_add_u32 v{210+eb}, {SLOT}, v{AW+eb}\nv_add_u32 v{214+eb}, {2*SLOT}, v{AW+eb}")
    a(f"""
    s_mul_i32 s62, s60, 28
    v_min_u32 v3, 27, v{VL}
    v_add_u32 v3, s62, v3
    v_lshrrev_b32 v4, 2, v3
    v_and_b32 v3, 3, v3
    v_lshlrev_b32 v3, 2, v3
    v_lshl_add_u32 v208, v4, 7, v3
    s_lshr_b32 s62, s{S_T1}, 1
    s_lshl_b32 s62, s62, 11
    s_add_u32 s66, s62, {WS_FL}
    s_waitcnt vmcnt(0)
    s_mov_b64 exec, 1
    buffer_store_dword v1, off, {sr(SWS)}, s64 sc1
    s_mov_b64 exec, -1
    """)
    ls(a,5)
    for t in range(2):
        for eb in range(2):
            a(f"buffer_load_dwordx2 {vr(XR+16+(t*2+eb)*2,2)}, v206, {sr(SX)}, s{77+t} offen offset:{32*eb}")
    def wreads(n):
        b=WF+16*(n%3); u=unit_base(n); k=u//SLOT; base=(AW,210,214)[k]
        return [f"ds_read_b64_tr_b16 {vr(b+4*eb+2*rho,2)}, v{base+eb} offset:{u-k*SLOT+rho*2048}" for eb in range(4) for rho in range(2)]
    a("s_barrier")
    for l in wreads(0)+wreads(1): a(l)
    ls(a,6)
    lp=a.lab('poll'); ok=a.lab('ok')
    a(f"s_mov_b32 s67, {SPIN}\n{lp}:")
    a(f"buffer_load_dword v3, v208, {sr(SWS)}, s66 offen sc1\ns_waitcnt vmcnt(0)\nv_cmp_ne_u32 vcc, 1, v3\ns_cbranch_vccz {ok}")
    a(f"s_sub_u32 s67, s67, 1\ns_cmp_lg_u32 s67, 0\ns_cbranch_scc1 {lp}\n{ok}:")
    hfl=CFG.get('hfl','sc1').replace('none','')
    def hload(n):
        sg,k=divmod(n,4); b=HF+8*(n%PF)
        return [f"buffer_load_dwordx4 {vr(b+4*t,4)}, v{AH+t}, {sr(SWS)}, s{80+sg} offen offset:{k*1024} {hfl}" for t in range(2)]
    for n in range(PF):
        for l in hload(n): a(l)
    ls(a,7)
    for i in range(8):
        a(f"v_lshlrev_b32 v{XR+2*i}, 16, v{XR+16+i}\nv_and_b32 v{XR+2*i+1}, 0xffff0000, v{XR+16+i}")
    for n in range(28):
        outstanding=2*(min(28,n+PF)-(n+1))
        a(f"s_waitcnt vmcnt({outstanding}) lgkmcnt({8 if n<27 else 0})")
        if n in (4,9,16): a("s_barrier")
        r=wreads(n+2) if n<26 else []
        hb=HF+8*(n%PF); wb=WF+16*(n%3)
        hl=hload(n+PF) if n+PF<28 else []
        i=0
        for t in range(2):
            for ee in range(4):
                eb=ee if t==0 else 3-ee
                d=ACC+(t*4+eb)*4
                a(f"{MF} {vr(d,4)}, {vr(wb+4*eb,4)}, {vr(hb+4*t,4)}, {'0' if n==0 else vr(d,4)}")
                if i<len(r): a(r[i])
                i+=1
            if hl: a(hl[t])
    ls(a,8)
    a(f"""
    v_lshlrev_b32 v40, 4, v{VL}
    s_lshl_b32 s62, s{S_WAVE}, 12
    s_add_u32 s62, s62, {L_RED}
    v_add_u32 v41, s62, v40
    v_xor_b32 v42, 8192, v41
    s_lshl_b32 s62, s60, 13
    s_lshl_b32 s63, s61, 11
    s_add_u32 s62, s62, s63
    s_add_u32 s62, s62, {L_Y}
    v_add_u32 v43, s62, v40
    """)
    for t in range(2):
        for eb in range(2):
            a(f"ds_write_b128 v41, {vr(ACC+(t*4+2+eb)*4,4)} offset:{(t*2+eb)*1024}")
    a("s_waitcnt lgkmcnt(0)\ns_barrier")
    RD=64; Y=80; T=96
    for t in range(2):
        for eb in range(2):
            a(f"ds_read_b128 {vr(RD+(t*2+eb)*4,4)}, v42 offset:{(t*2+eb)*1024}")
        for eb in range(2):
            a(f"ds_read_b128 {vr(Y+(t*2+eb)*4,4)}, v43 offset:{eb*4096+t*1024}")
    a(f"s_mov_b32 s64, {hx(-LOG2E)}\ns_mov_b32 s65, s64")
    ofl=CFG.get('ofl','none').replace('none','').replace('+',' ')
    for t in range(2):
        b=ACC+t*16
        a(f"s_waitcnt lgkmcnt({6-4*t})")
        for p in range(4): a(f"v_pk_add_f32 {vr(b+2*p,2)}, {vr(b+2*p,2)}, {vr(RD+t*8+2*p,2)}")
        for p in range(4): a(f"v_pk_mul_f32 {vr(T+2*p,2)}, {vr(b+2*p,2)}, s[64:65]")
        for p in range(8): a(f"v_exp_f32 v{T+p}, v{T+p}")
        a(f"s_waitcnt lgkmcnt({4-4*t})")
        for p in range(4): a(f"v_pk_mul_f32 {vr(b+2*p,2)}, {vr(b+2*p,2)}, {vr(Y+t*8+2*p,2)}")
        for p in range(4): a(f"v_pk_add_f32 {vr(T+2*p,2)}, {vr(T+2*p,2)}, 1.0 op_sel_hi:[1,0]")
        for p in range(8): a(f"v_rcp_f32 v{T+p}, v{T+p}")
        for p in range(4): a(f"v_pk_fma_f32 {vr(b+2*p,2)}, {vr(b+2*p,2)}, {vr(T+2*p,2)}, {vr(XR+t*8+2*p,2)}")
        o=112+4*t
        for p in range(4): a(f"v_cvt_pk_bf16_f32 v{o+p}, v{b+2*p}, v{b+2*p+1}")
        a(f"s_nop 1\nv_permlane16_swap_b32 v{o}, v{o+2}\nv_permlane16_swap_b32 v{o+1}, v{o+3}")
        a(f"buffer_store_dwordx4 {vr(o,4)}, v207, {sr(SOUT)}, s{77+t} offen {ofl}")
    ls(a,9)
    if CFG.get('trace') or CFG.get('probe'):
        a("s_waitcnt vmcnt(0)"); ls(a,10)
    ls_dump(a)

def loader(a):
    vm=VM()
    CB=64; WR=128; GA=208; YA=224
    spec=a.lab('lspec'); join=a.lab('ljoin')
    a(f"s_sub_u32 s74, s{S_WAVE}, 4")
    a(f"v_lshrrev_b32 v1, 3, v{VL}\nv_and_b32 v2, 7, v{VL}\ns_lshl_b32 s75, s74, 5")
    a(f"s_cmp_ge_u32 s{S_J}, 14\ns_cbranch_scc1 {spec}")
    for sp in (False,True):
        if sp: a(f"{spec}:")
        for p in range(4):
            a(f"v_add3_u32 v3, v1, s75, {8*p}")
            a(f"v_bfe_u32 v4, v3, 1, 3\nv_xor_b32 v4, v4, v2\nv_lshlrev_b32 v4, 4, v4")
            token_row(a,sp,3,5,6)
            a(f"v_lshl_add_u32 v{10+p}, v5, 10, v4")
            if sp:
                a(f"s_sub_u32 s62, s{S_J}, 14\ns_lshl_b32 s62, s62, 7\ns_add_u32 s62, s62, 1\nv_add_u32 v5, s62, v3\nv_lshl_add_u32 v{14+p}, v5, 10, v4")
        if not sp:
            a(f"v_lshrrev_b32 v3, 4, v{VL}\nv_and_b32 v4, 15, v{VL}\ns_lshl_b32 s62, s74, 4\ns_lshl_b32 s63, s{S_J}, 8")
            for p in range(4):
                a(f"v_or_b32 v5, {(p>>1)<<2}, v3\nv_lshlrev_b32 v5, 1, v5\nv_xor_b32 v5, v5, v4\nv_lshl_add_u32 v5, v5, 4, s63")
                a(f"v_add3_u32 v6, v3, s62, {4*p}\nv_mul_u32_u24 v6, 3584, v6\nv_add_u32 v{14+p}, v5, v6")
            a("s_waitcnt lgkmcnt(0)")
            srd(a,SB0,P_WG,512*1792*2); srd(a,SB1,P_WU,512*1792*2)
            a(f"s_mov_b32 s72, {64*3584}\ns_branch {join}")
        else:
            a("s_waitcnt lgkmcnt(0)")
            srd(a,SB0,P_HRE,512*512*2); srd(a,SB1,P_HIM,512*512*2)
            a("s_mov_b32 s72, 128")
    a(f"{join}:")
    srd(a,SX,P_X,2048*512*2)
    ls_first(a)
    a("s_lshl_b32 s73, s74, 12")
    if CFG.get('rot'): a(f"s_add_u32 s76, s{S_I}, s{S_J}\ns_and_b32 s76, s76, 7")
    else: a("s_mov_b32 s76, 0")

    side=[]
    def S(s):
        for l in s.split('\n'):
            if l.strip(): side.append(l.strip())
    tmp=Asm()
    srd(tmp,SWS,P_WS,ws_end()); srd(tmp,SDBG,P_DBG,256); srd(tmp,SWD,P_WD,1792*512*2)
    tmp(f"""
    s_and_b32 s79, s2, 1
    s_lshl_b32 s79, s79, 7
    s_cmp_eq_u32 s74, 0
    s_cselect_b32 s79, s79, 0x1000
    v_mov_b32 v9, 1
    v_mov_b32 v52, s79
    v_and_b32 v8, 1, v{VL}
    v_lshlrev_b32 v8, 7, v8
    """)
    tmp(f"""
    v_lshrrev_b32 v5, 3, v{VL}
    v_and_b32 v6, 7, v{VL}
    v_lshrrev_b32 v7, 4, v{VL}
    v_lshlrev_b32 v7, 1, v7
    v_xor_b32 v6, v6, v7
    v_lshlrev_b32 v6, 4, v6
    v_lshl_add_u32 v6, v5, 10, v6
    s_lshl_b32 s60, s{S_NB}, 7
    s_lshl_b32 s61, s74, 13
    s_add_u32 s60, s60, s61
    v_add_u32 v18, s60, v6
    s_lshl_b32 s92, s74, 10
    """)
    stage_rot(tmp,60)
    for sg in range(7):
        tmp(f"s_lshl_b32 s{80+sg}, s60, 17\ns_add_u32 s60, s60, 1\ns_cmp_eq_u32 s60, 7\ns_cselect_b32 s60, 0, s60")
    tmp(f"""
    v_and_b32 v1, 15, v{VL}
    v_lshrrev_b32 v2, 4, v{VL}
    s_lshl_b32 s60, s{S_NB}, 6
    s_lshl_b32 s61, s74, 4
    s_add_u32 s60, s60, s61
    v_add_u32 v3, s60, v1
    v_sub_u32 v4, 512, v3
    s_sub_u32 s61, 32, s{S_T1}
    s_and_b32 s61, s61, 31
    s_mov_b32 s63, {hx(1/2048.)}
    s_mov_b32 s64, {hx(-1/2048.)}
    s_cmp_ge_u32 s{S_NB}, 4 | s_cselect_b32 s61, s61, s{S_T1} | s_cselect_b64 vcc, -1, 0 | s_cselect_b32 s90, s64, s63
    v_cndmask_b32 v4, v3, v4, vcc
    v_subrev_u32 v4, 1, v4
    v_lshlrev_b32 v4, 4, v4
    v_lshl_add_u32 v4, v2, 12, v4
    v_cmp_eq_u32 vcc, 0, v3
    v_mov_b32 v5, {OOB}
    s_lshl_b32 s61, s61, 16
    v_cndmask_b32 v19, v4, v5, vcc
    s_add_u32 s91, s61, {WS_G}
    v_lshlrev_b32 v2, 2, v2
    v_cvt_f32_u32 v2, v2
    """)
    for tb in range(4):
        tmp(f"v_add_u32 v3, {16*tb}, v1\nv_lshlrev_b32 v3, 5, v3\nv_add_u32 v3, s{S_T1}, v3\nv_cvt_f32_u32 v3, v3\nv_mul_f32 v3, s90, v3")
        for k in range(4):
            tmp(f"v_add_f32 v40, {hx(16.0*k)}, v2\nv_mul_f32 v40, v40, v3\nv_add_f32 v41, v40, v3\nv_add_f32 v42, v41, v3\nv_add_f32 v43, v42, v3")
            for b in range(4): tmp(f"v_cos_f32 v{44+b}, v{40+b}\nv_sin_f32 v{48+b}, v{40+b}")
            for b in range(4): tmp(f"v_cvt_pk_bf16_f32 v{CB+(tb*4+k)*4+b}, v{44+b}, v{48+b}")
    lines=[l.strip() for l in tmp.l]
    i=0
    while i<len(lines):
        l=lines[i]
        if l.startswith('s_cmp') and '|' not in l:
            side.append(l+'\n'+lines[i+1]); i+=2
        else:
            side.append(l.replace(' | ','\n')); i+=1
    def feed(n):
        for _ in range(n):
            if side: a(side.pop(0))

    def dma(m0expr,vaddr,srdn,soff,tag,nfeed):
        a(f"s_add_u32 m0, {m0expr}\ns_nop 0\nbuffer_load_dwordx4 v{vaddr}, {sr(srdn)}, {soff} offen lds"); vm.op(tag)
        feed(nfeed)
    def issue(c,lo=0,hi=4,nfeed=0):
        slot=c%3
        if lo==0: a("s_lshl_b32 s70, s76, 7\ns_mul_i32 s71, s76, s72\ns_add_u32 s76, s76, 1\ns_and_b32 s76, s76, 7")
        for p in range(lo,hi):
            dma(f"s73, {slot*SLOT+p*1024}",10+p,SX,"s70",f"c{c}",nfeed)
            dma(f"s73, {slot*SLOT+16384+p*1024}",14+p,SB0,"s71",f"c{c}",nfeed)
            dma(f"s73, {slot*SLOT+32768+p*1024}",14+p,SB1,"s71",f"c{c}",nfeed)
    def wd_soff(n,kh):
        sg,k=divmod(n,4)
        a(f"s_add_u32 s71, s{80+sg}, {(kh*896+32*k)*1024}")
    def wd_dma(n):
        for kh in range(2):
            a(f"s_add_u32 m0, s92, {unit_base(n)+kh*4096}"); wd_soff(n,kh)
            a(f"buffer_load_dwordx4 v18, {sr(SWD)}, s71 offen lds"); vm.op('wd')
    def wd_reg(n):
        for kh in range(2):
            wd_soff(n,kh)
            a(f"buffer_load_dwordx4 {vr(WR+((n-18)*2+kh)*4,4)}, v18, {sr(SWD)}, s71 offen"); vm.op('wr')
    def bar(c,*tags):
        a(f"s_waitcnt vmcnt({vm.need(*tags)})")
        ls(a,2+2*c); a("s_barrier"); ls(a,3+2*c)

    ls(a,1)
    issue(0); issue(1,0,2,4)
    bar(0,'c0')
    issue(1,2,4,6); issue(2,nfeed=6)
    bar(1,'c1')
    issue(3,nfeed=6)
    a(f"s_mov_b64 exec, 1\nbuffer_atomic_add v9, v52, {sr(SDBG)}, 0 offen sc1\ns_mov_b64 exec, -1"); vm.op('at')
    bar(2,'c2')
    issue(4,nfeed=6)
    bar(3,'c3')
    issue(5,nfeed=6)
    bar(4,'c4')
    issue(6,nfeed=6)
    feed(len(side))
    sp2=a.lab('gspec'); j2=a.lab('gjoin')
    a(f"s_cmp_ge_u32 s{S_J}, 14\ns_cbranch_scc1 {sp2}")
    for sp in (False,True):
        if sp: a(f"{sp2}:")
        for h in range(2):
            a(f"v_add_u32 v3, {64*h}, v{VL}")
            token_row(a,sp,3,20+h,6)
        if not sp: a(f"s_branch {j2}")
    a(f"{j2}:")
    for h in range(2):
        a(f"v_bfe_u32 v6, v{20+h}, 1, 5\nv_lshlrev_b32 v6, 6, v6\nv_lshrrev_b32 v7, 6, v{20+h}\nv_lshl_add_u32 v6, v7, 1, v6\nv_and_b32 v7, 1, v{20+h}\nv_add_u32 v6, v6, v7\nv_lshlrev_b32 v{20+h}, 3, v6")
    a(f"""
    s_cmp_eq_u32 s74, 0
    s_cselect_b32 s87, 0, {OOB}
    v_add_u32 v20, s87, v20
    v_add_u32 v21, s87, v21
    s_mov_b32 s87, {WS_ST}
    v_and_b32 v5, 31, v{VL}
    v_lshlrev_b32 v5, 4, v5
    v_lshrrev_b32 v6, 5, v{VL}
    v_mul_u32_u24 v6, {1792*4}, v6
    s_cmp_eq_u32 s74, 1
    s_cselect_b32 s88, 0, {OOB}
    v_add3_u32 v22, v5, v6, s88
    s_lshl_b32 s88, s{S_J}, 9
    s_add_u32 s88, s88, {WS_CS}
    """)
    bar(5,'c5')
    a(f"buffer_load_dword v23, v8, {sr(SDBG)}, 0 offen sc1"); vm.op('poll')
    issue(7)
    wd_reg(18); wd_reg(19)
    lp=a.lab('poll'); ok=a.lab('ok')
    a(f"s_waitcnt vmcnt({vm.need('poll','c6')})\nv_cmp_ne_u32 vcc, 128, v23\ns_cbranch_vccz {ok}")
    a(f"s_mov_b32 s67, {SPIN}\n{lp}:")
    a(f"buffer_load_dword v23, v8, {sr(SDBG)}, 0 offen sc1\ns_waitcnt vmcnt(0)\nv_cmp_ne_u32 vcc, 128, v23\ns_cbranch_vccz {ok}")
    a(f"s_sleep 2\ns_sub_u32 s67, s67, 1\ns_cmp_lg_u32 s67, 0\ns_cbranch_scc1 {lp}\n{ok}:")
    for h in range(2):
        a(f"buffer_load_dwordx2 v[{24+4*h}:{25+4*h}], v{20+h}, {sr(SWS)}, s87 offen sc1"); vm.op('g')
    for kq in range(4):
        a(f"buffer_load_dwordx4 {vr(32+4*kq,4)}, v22, {sr(SWS)}, s88 offen sc1\ns_add_u32 s88, s88, {3584*4}"); vm.op('g')
    bar(6,'c6')
    for n in range(0,6): wd_dma(n)
    wd_reg(20); wd_reg(21)
    bar(7,'c7','g')
    w1=a.lab('lw1'); done=a.lab('ldone')
    a(f"s_cmp_lg_u32 s74, 0\ns_cbranch_scc1 {w1}")
    a(f"v_lshlrev_b32 v5, 4, v{VL}\nv_add_u32 v5, {L_STAT}, v5\nv_lshlrev_b32 v6, 2, v{VL}\nv_add_u32 v6, {L_RSTD}, v6")
    for h in range(2):
        b=24+4*h
        a(f"v_rcp_f32 v{b+3}, v{b+1}\nv_mul_f32 v{b+2}, v{b+1}, v{b+1}\nv_mul_f32 v{b+1}, {hx(-LOG2E)}, v{b+3}")
        a(f"ds_write_b128 v5, v[{b}:{b+3}] offset:{1024*h}\nds_write_b32 v6, v{b+3} offset:{256*h}")
    a(f"s_branch {done}\n{w1}:")
    a(f"s_cmp_lg_u32 s74, 1\ns_cbranch_scc1 {done}")
    a(f"v_lshlrev_b32 v5, 4, v{VL}\nv_add_u32 v5, {L_CS}, v5")
    for j in range(4):
        a(f"v_add_f32 v{32+j}, v{32+j}, v{36+j}\nv_add_f32 v{40+j}, v{40+j}, v{44+j}\nv_add_f32 v{32+j}, v{32+j}, v{40+j}")
    a("ds_write_b128 v5, v[32:35]")
    a(f"{done}:")
    for n in range(6,12): wd_dma(n)
    wd_reg(22); wd_reg(23)
    a("s_waitcnt lgkmcnt(0)")
    ls(a,18); a("s_barrier"); ls(a,19)
    for n in range(12,18): wd_dma(n)
    for n in range(24,28): wd_reg(n)
    a(f"""
    v_lshrrev_b32 v5, 2, v{VL}
    v_lshlrev_b32 v5, 11, v5
    v_bfe_u32 v6, v{VL}, 1, 1
    v_lshl_add_u32 v5, v6, 7, v5
    v_and_b32 v6, 1, v{VL}
    v_lshl_add_u32 v20, v6, 3, v5
    s_mov_b32 s87, {WS_FL+14*128}
    v_lshlrev_b32 v21, 4, v{VL}
    v_add_u32 v21, s92, v21
    v_add_u32 v22, {2*SLOT}, v21
    """)
    a(f"s_waitcnt vmcnt({vm.need('wd')})")
    ls(a,20); a("s_barrier"); ls(a,21)
    def wd_put(n):
        u=unit_base(n)
        for kh in range(2):
            base,off=(22,u-2*SLOT) if u>=2*SLOT else (21,u)
            a(f"ds_write_b128 v{base}, {vr(WR+((n-18)*2+kh)*4,4)} offset:{off+kh*4096}")
    a("s_waitcnt vmcnt(0)\ns_barrier")
    ls(a,22)
    a(f"buffer_load_dwordx2 v[24:25], v20, {sr(SWS)}, s87 offen sc1")
    for n in range(18,23): wd_put(n)
    lp=a.lab('poll'); ok=a.lab('ok')
    a(f"s_mov_b32 s67, {SPIN}\n{lp}:")
    a(f"s_waitcnt vmcnt(0)\nv_and_b32 v24, v24, v25\nv_cmp_ne_u32 vcc, 1, v24\ns_cbranch_vccz {ok}")
    a(f"buffer_load_dwordx2 v[24:25], v20, {sr(SWS)}, s87 offen sc1\ns_sub_u32 s67, s67, 1\ns_cmp_lg_u32 s67, 0\ns_cbranch_scc1 {lp}\n{ok}:")
    for k in range(4):
        a(f"buffer_load_dwordx4 {vr(GA+4*k,4)}, v19, {sr(SWS)}, s91 offen sc1\ns_add_u32 s91, s91, {4*4096}")
    ls(a,23)
    a("s_barrier")
    for n in range(23,28): wd_put(n)
    a("s_waitcnt lgkmcnt(0)")
    ls(a,24)
    a("s_barrier")
    a("s_waitcnt vmcnt(0)")
    for tb in range(4):
        for k in range(4):
            a(f"{MF} {vr(YA+4*tb,4)}, {vr(GA+4*k,4)}, {vr(CB+(tb*4+k)*4,4)}, {'0' if k==0 else vr(YA+4*tb,4)}")
    a(f"v_lshlrev_b32 v1, 4, v{VL}\ns_add_u32 s60, s73, {L_Y}\nv_add_u32 v1, s60, v1\ns_nop 7")
    for tb in range(4):
        a(f"ds_write_b128 v1, {vr(YA+4*tb,4)} offset:{1024*tb}")
    a("s_waitcnt lgkmcnt(0)")
    ls(a,25)
    a("s_barrier")
    ls(a,26)
    ls_dump(a)

def kernel_main(a,name):
    kbegin(a,name)
    end=a.lab('end'); ld=a.lab('ld'); sp=a.lab('sp'); s2=a.lab('stage2')
    a(f"s_cmp_ge_u32 s2, 256\ns_cbranch_scc1 {end}")
    if CFG.get('trace') or CFG.get('probe'): a("s_memrealtime s[94:95]")
    a("s_load_dwordx16 s[32:47], s[0:1], 0\ns_load_dwordx8 s[48:55], s[0:1], 64")
    a(f"v_lshrrev_b32 v1, 6, v0\nv_and_b32 v{VL}, 63, v0\nv_readfirstlane_b32 s{S_WAVE}, v1")
    tile_map(a)
    a(f"s_cmp_ge_u32 s{S_WAVE}, 4\ns_cbranch_scc1 {ld}")
    if CFG.get('prio',1): a("s_setprio 1")
    a("s_waitcnt lgkmcnt(0)")
    srd(a,SX,P_X,2048*512*2); srd(a,SWS,P_WS,ws_end())
    ls_first(a)
    r1=a.lab('r1'); r3=a.lab('r3'); rj=a.lab('rj')
    a(f"s_cmp_lg_u32 s{S_WAVE}, 0\ns_cbranch_scc1 {r1}\ns_cmp_ge_u32 s2, 224\ns_cbranch_scc1 {r3}")
    stats_colsum(a); zero_acc(a); stats_colsum2(a)
    a(f"s_branch {rj}\n{r1}:\ns_cmp_eq_u32 s{S_WAVE}, 3\ns_cbranch_scc1 {r3}")
    stats_rows(a); zero_acc(a); stats_rows2(a)
    a(f"s_branch {rj}\n{r3}:")
    flag_addr(a,64)
    zero_acc(a)
    a(f"s_mov_b64 exec, 1\nbuffer_store_dwordx4 v[0:3], off, {sr(SWS)}, s64 sc1\ns_mov_b64 exec, -1")
    a(f"{rj}:")
    a(f"s_cmp_ge_u32 s{S_J}, 14\ns_cbranch_scc1 {sp}")
    def setup_keep(spec):
        compute1_setup(a,spec)
        if spec: dft32_consts(a)
        for r in range(0,24 if spec else 6,2): a(f"v_mov_b64 v[{r}:{r+1}], 0")
    setup_keep(False); mainloop1(a,False); ls(a,3); epilogue_ffn(a)
    a(f"{s2}:")
    compute2(a)
    a(f"s_endpgm\n{sp}:")
    setup_keep(True); mainloop1(a,True); ls(a,3); epilogue_spec(a)
    a(f"s_branch {s2}\n{ld}:")
    loader(a)
    a(f"{end}:\ns_endpgm")

def build(cfg):
    CFG.clear(); CFG.update(cfg)
    a=Asm()
    name=NAME+'_kernel'
    if cfg.get('probe'):
        a(f"; @launch kernel={name} grid=(256,1,1) block=(512,1,1) lds={LDS}")
        a(f"; @launch kernel=probe_kernel grid=(1,1,1) block=(64,1,1) lds=0")
    else:
        a(f"; @launch grid=(256,1,1) block=(512,1,1) lds={LDS}")
    a('.amdgcn_target "amdgcn-amd-amdhsa--gfx950"\n.text')
    kernel_main(a,name); names=[name]
    if cfg.get('probe'): names.append(kernel_probe(a))
    a('.section .rodata,"a"')
    for n in names:
        a('.p2align 6')
        a.l.append(kd(n,256,102,256))
    return a.text()

if __name__=='__main__':
    cfg={}
    for kv in sys.argv[2:]:
        k,v=kv.split('='); cfg[k]=int(v) if v.lstrip('-').isdigit() else v
    open(sys.argv[1],'w').write(build(cfg))
```

```python
import sys, struct
NAME='recurrent_scan__spectral_fnet__swiglu_ffn__prompt'
LOG2E=1.4426950408889634
def f2u(x): return struct.unpack('<I',struct.pack('<f',x))[0]
def hx(x): return hex(f2u(x))

WS_H=0; WS_G=0x700000; WS_ST=0x900000; WS_CS=0x904000; WS_FL=0x920000
WS_STAMP=0x930000; WS_TRACE=0x940000
CFG={}
def ws_end(): return 0xA40000 if (CFG.get('probe') or CFG.get('trace')) else 0x930000
OOB=0x40000000

class Asm:
    def __init__(self): self.l=[]; self.n=0
    def __call__(self,s):
        for line in s.split('\n'):
            line=line.strip()
            if line: self.l.append(('' if line.endswith(':') or line.startswith('.') or line.startswith(';') else '    ')+line)
    def lab(self,b): self.n+=1; return f"L_{b}_{self.n}"
    def text(self): return '\n'.join(self.l)+'\n'

class VM:
    def __init__(self): self.ops=[]
    def op(self,tag): self.ops.append(tag)
    def need(self,*tags):
        last=max(i for i,t in enumerate(self.ops) if t in tags)
        n=len(self.ops)-1-last
        assert n<=63, n
        return n

def kd(name,vgpr,sgpr,accum):
    return f""".amdhsa_kernel {name}
  .amdhsa_next_free_vgpr {vgpr}
  .amdhsa_next_free_sgpr {sgpr}
  .amdhsa_accum_offset {accum}
  .amdhsa_group_segment_fixed_size 0
  .amdhsa_kernarg_size 96
  .amdhsa_user_sgpr_count 2
  .amdhsa_user_sgpr_kernarg_segment_ptr 1
  .amdhsa_system_sgpr_workgroup_id_x 1
  .amdhsa_float_denorm_mode_32 3
.end_amdhsa_kernel
"""
def kbegin(a,name): a(f".globl {name}\n.p2align 8\n.type {name},@function\n{name}:")
def srd(a,d,base,nbytes):
    a(f"s_mov_b32 s{d}, s{base}\ns_mov_b32 s{d+1}, s{base+1}\ns_mov_b32 s{d+2}, {nbytes}\ns_mov_b32 s{d+3}, 0x00020000")
def vr(b,n): return f"v[{b}:{b+n-1}]" if n>1 else f"v{b}"
def sr(b): return f"s[{b}:{b+3}]"
MF="v_mfma_f32_16x16x32_bf16"

P_X,P_HRE,P_HIM,P_WG,P_WU,P_WD,P_OUT,P_DBG,P_WS=32,38,40,44,46,48,50,52,54
SDBG,SX,SB0,SB1,SWS,SWD,SOUT=4,8,12,16,20,24,28
S_WAVE=56; S_I=57; S_J=58; S_T1=59; S_NB=3
VL=255
SPIN=200000

def ls(a,idx):
    if not (CFG.get('trace') or CFG.get('probe')): return
    a(f"s_memrealtime s[96:97]\ns_waitcnt lgkmcnt(0)\nv_writelane_b32 v254, s96, {idx}")
def ls_first(a):
    if not (CFG.get('trace') or CFG.get('probe')): return
    a(f"v_writelane_b32 v254, s94, 0")
def ls_dump(a):
    if not (CFG.get('trace') or CFG.get('probe')): return
    a(f"s_lshl_b32 s98, s2, 11\ns_lshl_b32 s99, s{S_WAVE}, 8\ns_add_u32 s98, s98, s99\ns_add_u32 s98, s98, {WS_TRACE}\nv_lshlrev_b32 v253, 2, v{VL}\nbuffer_store_dword v254, v253, {sr(SWS)}, s98 offen")
def kernel_probe(a):
    pa,pb=CFG['probe'].split(':'); K=CFG.get('K',10)
    name='probe_kernel'; kbegin(a,name); end=a.lab('end')
    a(f"s_cmp_ge_u32 s2, 1\ns_cbranch_scc1 {end}")
    a("s_load_dwordx2 s[54:55], s[0:1], 88\ns_waitcnt lgkmcnt(0)")
    srd(a,SWS,P_WS,ws_end())
    a("v_lshlrev_b32 v1, 11, v0")
    for r,p in ((4,pa),(8,pb)):
        w,i=p[3:].split('.')
        for q in range(4):
            a(f"s_mov_b32 s60, {WS_TRACE+int(w)*256+int(i)*4+q*64*2048}\nbuffer_load_dword v{r+q}, v1, {sr(SWS)}, s60 offen")
    a("s_waitcnt vmcnt(0)\ns_nop 0\nv_readfirstlane_b32 s61, v4\ns_nop 3")
    for r in range(4,12): a(f"v_subrev_u32 v{r}, s61, v{r}")
    for r,p,sd in ((4,pa,62),(8,pb,63)):
        op=p[:3]
        vop={'min':'v_min_i32','max':'v_max_i32','avg':'v_add_u32'}[op]; sop={'min':'s_min_i32','max':'s_max_i32','avg':'s_add_u32'}[op]
        a(f"{vop} v{r}, v{r}, v{r+1}\n{vop} v{r+2}, v{r+2}, v{r+3}\n{vop} v{r}, v{r}, v{r+2}\ns_nop 0")
        a(f"v_readlane_b32 s{sd}, v{r}, 0")
        for l in range(1,64): a(f"v_readlane_b32 s64, v{r}, {l}\ns_nop 0\n{sop} s{sd}, s{sd}, s64")
        a(f"s_mul_i32 s{sd}, s{sd}, {K}")
        if op=='avg': a(f"s_ashr_i32 s{sd}, s{sd}, 8")
    a("s_sub_u32 s62, s63, s62\ns_max_i32 s62, s62, 0\ns_min_i32 s62, s62, 100000")
    a("s_memrealtime s[66:67]\ns_waitcnt lgkmcnt(0)")
    lp=a.lab('spin')
    a(f"{lp}:\ns_memrealtime s[68:69]\ns_waitcnt lgkmcnt(0)\ns_sub_u32 s68, s68, s66\ns_cmp_lt_u32 s68, s62\ns_cbranch_scc1 {lp}")
    a(f"{end}:\ns_endpgm")
    return name

SLOT=49152
L_STAT=3*SLOT; L_RSTD=L_STAT+2048; L_CS=L_RSTD+512
L_Y=3*SLOT; L_RED=32768; LDS=163840
def unit_base(n):
    n%=18
    return (2*SLOT,0,SLOT)[n//6]+(n%6)*8192

S_A=100; S_G=101; S_LOC=93
def tile_map(a):
    a(f"""
    s_and_b32 s60, s2, 7
    s_lshr_b32 s{S_LOC}, s2, 3
    s_and_b32 s{S_A}, s60, 1
    s_lshr_b32 s{S_G}, s60, 1
    s_lshl_b32 s{S_J}, s{S_G}, 2
    s_lshr_b32 s62, s{S_LOC}, 3
    s_add_u32 s{S_J}, s{S_J}, s62
    s_and_b32 s62, s{S_LOC}, 7
    s_lshl_b32 s{S_I}, s{S_A}, 3
    s_add_u32 s{S_I}, s{S_I}, s62
    s_and_b32 s63, s62, 3
    s_lshr_b32 s62, s62, 2
    s_lshl_b32 s62, s62, 3
    s_add_u32 s63, s63, s62
    s_lshl_b32 s62, s{S_A}, 2
    s_add_u32 s63, s63, s62
    s_cmp_ge_u32 s{S_J}, 14
    s_cselect_b32 s{S_I}, s63, s{S_I}
    s_lshl_b32 s60, s60, 2
    s_and_b32 s62, s{S_LOC}, 3
    s_add_u32 s{S_T1}, s60, s62
    s_lshr_b32 s{S_NB}, s{S_LOC}, 2
    """)

def token_row(a,spec,vt,vd,tmp):
    if not spec:
        a(f"v_and_b32 v{vd}, 63, v{vt}\nv_lshlrev_b32 v{vd}, 5, v{vd}\nv_lshrrev_b32 v{tmp}, 6, v{vt}\ns_lshl_b32 s62, s{S_I}, 1\nv_add3_u32 v{vd}, v{vd}, v{tmp}, s62")
    else:
        a(f"v_and_b32 v{vd}, 31, v{vt}\nv_lshlrev_b32 v{vd}, 6, v{vd}\nv_lshrrev_b32 v{tmp}, 5, v{vt}\ns_lshl_b32 s62, s{S_I}, 2\nv_add3_u32 v{vd}, v{vd}, v{tmp}, s62")

def job_ids(a):
    a(f"""
    s_and_b32 s61, s{S_LOC}, 3
    s_lshl_b32 s60, s{S_A}, 1
    s_lshr_b32 s62, s{S_LOC}, 4
    s_add_u32 s60, s60, s62
    s_lshl_b32 s62, s{S_G}, 2
    s_add_u32 s60, s60, s62
    s_bfe_u32 s63, s{S_LOC}, 0x10002
    s_bfe_u32 s69, s{S_LOC}, 0x10003
    """)
def table_touch(a):
    a(f"""
    s_cmp_eq_u32 s69, 1
    s_cselect_b32 s64, s{P_HIM}, s{P_HRE}
    s_cselect_b32 s65, s{P_HIM+1}, s{P_HRE+1}
    s_mov_b32 s66, {512*512*2}
    s_mov_b32 s67, 0x00020000
    s_sub_u32 s60, s60, 14
    s_lshl_b32 s60, s60, 7
    s_lshl_b32 s63, s63, 6
    s_lshl_b32 s61, s61, 4
    s_add_u32 s60, s60, s63
    s_add_u32 s60, s60, s61
    s_add_u32 s60, s60, 1
    s_lshl_b32 s60, s60, 10
    v_lshlrev_b32 v1, 8, v{VL}
    buffer_load_dword v252, v1, s[64:67], s60 offen
    buffer_load_dword v253, v1, s[64:67], s60 offen offset:128
    """)
def stats_colsum(a):
    pfl=CFG.get('pfl','none').replace('none','')
    a(f"""
    s_cmp_eq_u32 s69, 1
    s_cselect_b32 s64, s{P_WU}, s{P_WG}
    s_cselect_b32 s65, s{P_WU+1}, s{P_WG+1}
    s_mov_b32 s66, {512*1792*2}
    s_mov_b32 s67, 0x00020000
    s_lshl_b32 s60, s60, 1
    s_add_u32 s60, s60, s63
    s_lshl_b32 s62, s60, 7
    s_mul_i32 s63, s61, 3584
    s_add_u32 s62, s62, s63
    """)
    for n in range(16):
        a(f"buffer_load_dwordx4 {vr(144+4*n,4)}, v129, s[64:67], s62 offen {pfl}")
        if n<15: a(f"s_add_u32 s62, s62, {32*3584}")
    a(f"""
    v_and_b32 v2, 15, v{VL}
    v_and_b32 v3, 1, v2
    v_lshlrev_b32 v3, 4, v3
    v_mov_b32 v8, 0x3f80
    v_lshlrev_b32 v3, v3, v8
    v_lshrrev_b32 v2, 1, v2
    """)
    for p in range(4):
        a(f"v_cmp_eq_u32 vcc, {p}, v2\ns_nop 1\nv_cndmask_b32 v{132+p}, 0, v3, vcc")
    a(f"""
    s_mul_i32 s61, s61, {3584*4}
    s_mul_i32 s69, s69, {1792*4}
    s_lshl_b32 s60, s60, 8
    s_add_u32 s60, s60, s61
    s_add_u32 s60, s60, s69
    s_add_u32 s68, s60, {WS_CS}
    v_and_b32 v2, 7, v{VL}
    v_lshlrev_b32 v2, 5, v2
    v_and_b32 v3, 16, v{VL}
    v_add_u32 v128, v2, v3
    """)
def stats_colsum2(a):
    for n in range(16):
        a(f"s_waitcnt vmcnt({15-n})")
        a(f"{MF} v[136:139], v[132:135], {vr(144+4*n,4)}, {'0' if n==0 else 'v[136:139]'}")
    a("s_nop 7\ns_nop 1")
    for j in range(4):
        a(f"v_add_f32_dpp v{140+j}, v{136+j}, v{136+j} row_ror:8 row_mask:0xf bank_mask:0xf")
    a(f"s_mov_b64 exec, 0x00ff00ff")
    a(f"buffer_store_dwordx4 v[140:143], v128, {sr(SWS)}, s68 offen sc1")
    a("s_mov_b64 exec, -1")

def stats_rows(a):
    a(f"""
    s_sub_u32 s60, s{S_WAVE}, 1
    s_and_b32 s62, s{S_LOC}, 7
    s_lshr_b32 s61, s{S_LOC}, 3
    s_and_b32 s63, s{S_G}, 1
    s_lshl_b32 s63, s63, 2
    s_add_u32 s61, s61, s63
    s_lshl_b32 s63, s{S_A}, 3
    s_add_u32 s61, s61, s63
    s_lshr_b32 s63, s{S_G}, 1
    s_lshl_b32 s63, s63, 4
    s_add_u32 s61, s61, s63
    s_lshl_b32 s63, s61, 1
    s_add_u32 s63, s63, s60
    s_lshl_b32 s64, s62, 8
    s_add_u32 s63, s63, s64
    s_lshl_b32 s63, s63, 10
    """)
    for p in range(4):
        a(f"buffer_load_dwordx4 {vr(144+4*p,4)}, v130, {sr(SX)}, s63 offen offset:{256*p}")
    a(f"""
    s_lshl_b32 s61, s61, 9
    s_lshl_b32 s62, s62, 6
    s_add_u32 s61, s61, s62
    s_lshl_b32 s60, s60, 3
    s_add_u32 s61, s61, s60
    s_add_u32 s68, s61, {WS_ST}
    v_lshrrev_b32 v1, 4, v{VL}
    v_lshlrev_b32 v128, 4, v1
    """)
def stats_rows2(a):
    a(f"""
    v_mov_b32 v131, 0x3f803f80
    v_mov_b32 v132, 0
    v_mov_b32 v133, 0
    v_mov_b32 v134, 0x00003f80
    v_mov_b32 v135, 0x3f800000
    v_mov_b32 v136, 0
    v_mov_b32 v137, 0
    """)
    for p in range(4):
        a(f"s_waitcnt vmcnt({3-p})")
        for r in range(4):
            a(f"v_dot2c_f32_bf16 v{132+(r&1)}, v{144+4*p+r}, v131")
    a("s_nop 2\nv_add_f32 v132, v132, v133")
    def red(v):
        for s in (8,4,2,1):
            a(f"s_nop 1\nv_add_f32_dpp v{v}, v{v}, v{v} row_ror:{s} row_mask:0xf bank_mask:0xf")
    red(132)
    a(f"v_mul_f32 v132, {hx(-1.0/512)}, v132")
    for p in range(4):
        for r in range(4):
            a(f"v_dot2_f32_bf16 v{160+2*r}, v{144+4*p+r}, v134, v132\nv_dot2_f32_bf16 v{161+2*r}, v{144+4*p+r}, v135, v132")
        for r in range(8):
            a(f"v_fmac_f32 v{136+(r&1)}, v{160+r}, v{160+r}")
    a("v_add_f32 v136, v136, v137")
    red(136)
    a(f"""
    v_mul_f32 v136, {hx(1.0/512)}, v136
    v_cvt_pk_bf16_f32 v136, v136, v132
    v_and_b32 v138, 0xffff0000, v136
    v_lshlrev_b32 v136, 16, v136
    v_add_f32 v136, {hx(1e-5)}, v136
    v_cvt_pk_bf16_f32 v136, v136, v136
    v_lshlrev_b32 v136, 16, v136
    v_sqrt_f32 v136, v136
    s_nop 0
    v_cvt_pk_bf16_f32 v136, v136, v136
    v_lshlrev_b32 v139, 16, v136
    s_mov_b32 exec_lo, 0x00010001
    s_mov_b32 exec_hi, 0x00010001
    buffer_store_dwordx2 v[138:139], v128, {sr(SWS)}, s68 offen sc1
    s_mov_b64 exec, -1
    """)

def flag_addr(a,sd):
    a(f"s_lshl_b32 s{sd}, s{S_I}, 4\ns_add_u32 s{sd}, s{sd}, s{S_J}\ns_lshl_b32 s{sd}, s{sd}, 7\ns_add_u32 s{sd}, s{sd}, {WS_FL}")

XA,XB,WA,WB=128,160,192,208
AX0,AX1,AW0,AW1=224,225,226,227
FC,FS,FN=228,236,244

def compute1_setup(a,spec):
    a(f"""
    v_and_b32 v1, 15, v{VL}
    v_lshrrev_b32 v2, 4, v{VL}
    v_lshrrev_b32 v3, 1, v1
    v_xor_b32 v3, v3, v2
    v_lshlrev_b32 v3, 4, v3
    v_lshl_add_u32 v{AX0}, v1, 7, v3
    v_xor_b32 v{AX1}, 64, v{AX0}
    s_mov_b32 s73, {SLOT}
    """)
    if spec:
        a(f"s_lshl_b32 s62, s{S_WAVE}, 12\nv_add_u32 v{AW0}, s62, v{AX0}\nv_add_u32 v{AW1}, s62, v{AX1}")
    else:
        a(f"""
        v_lshrrev_b32 v3, 2, v1
        v_and_b32 v4, 3, v1
        v_and_b32 v5, 1, v2
        v_lshl_or_b32 v5, v5, 2, v3
        s_lshl_b32 s62, s{S_WAVE}, 1
        v_xor_b32 v5, s62, v5
        v_lshlrev_b32 v5, 5, v5
        v_lshl_add_u32 v5, v4, 3, v5
        v_lshl_add_u32 v3, v2, 3, v3
        v_lshl_add_u32 v{AW0}, v3, 8, v5
        v_xor_b32 v{AW1}, 32, v{AW0}
        """)

def dft32_consts(a):
    a(f"v_and_b32 v1, 15, v{VL}\nv_lshrrev_b32 v2, 4, v{VL}\nv_lshlrev_b32 v2, 2, v2\nv_cvt_f32_u32 v2, v2\nv_cvt_f32_u32 v1, v1")
    for tb in range(2):
        a(f"v_add_f32 v3, {hx(16.0*tb)}, v1\nv_mul_f32 v3, {hx(1/32.)}, v3")
        for j in range(8):
            a(f"v_add_f32 v4, {hx(16.0*(j>>2)+(j&3))}, v2\nv_mul_f32 v4, v4, v3\nv_cos_f32 v{8+j}, v4\nv_sin_f32 v{16+j}, v4")
        a("s_nop 0")
        for p in range(4):
            a(f"v_cvt_pk_bf16_f32 v{FC+4*tb+p}, v{8+2*p}, v{9+2*p}\nv_cvt_pk_bf16_f32 v{FS+4*tb+p}, v{16+2*p}, v{17+2*p}")
            a(f"v_xor_b32 v{FN+4*tb+p}, 0x80008000, v{FS+4*tb+p}")

def zero_acc(a):
    for r in range(0,128,2): a(f"v_mov_b64 v[{r}:{r+1}], 0")

def mainloop1(a,spec):
    def reads(k,xb,wb):
        xs=[f"ds_read_b128 {vr(xb+4*t,4)}, v{AX0+k} offset:{t*2048}" for t in range(8)]
        ws=[]
        for g in range(4):
            if spec:
                ws.append(f"ds_read_b128 {vr(wb+4*g,4)}, v{AW0+k} offset:{16384+(g>>1)*16384+(g&1)*2048}")
            else:
                for rho in range(2):
                    ws.append(f"ds_read_b64_tr_b16 {vr(wb+4*g+2*rho,2)}, v{AW0+(g&1)} offset:{16384+(g>>1)*16384+k*8192+rho*1024}")
        return ws+xs
    def mfmas(xb,wb):
        out=[]
        for t in range(8):
            for gg in range(4):
                g=gg if t%2==0 else 3-gg
                d=(t*4+g)*4
                x=vr(xb+4*t,4); w=vr(wb+4*g,4)
                p,q=(x,w) if spec else (w,x)
                out.append(f"{MF} {vr(d,4)}, {p}, {q}, {vr(d,4)}")
        return out
    ls(a,1)
    a("s_barrier")
    ls(a,2)
    for l in reads(0,XA,WA): a(l)
    a(f"s_mov_b32 s70, 0\ns_mov_b32 s72, 8")
    loop=a.lab('loop')
    a(f".p2align 6\n{loop}:")
    a("s_waitcnt lgkmcnt(0)")
    r=reads(1,XB,WB)
    extra={17:f"s_add_u32 s70, s70, 1\ns_cmp_eq_u32 s70, 3",18:f"s_cselect_b32 s71, {-2*SLOT}, s73\ns_cselect_b32 s70, 0, s70",
           20:f"v_add_u32 v{AX0}, s71, v{AX0}",21:f"v_add_u32 v{AX1}, s71, v{AX1}",22:f"v_add_u32 v{AW0}, s71, v{AW0}",23:f"v_add_u32 v{AW1}, s71, v{AW1}"}
    for i,m in enumerate(mfmas(XA,WA)):
        a(m)
        if i<len(r): a(r[i])
        if i in extra: a(extra[i])
    a("s_waitcnt vmcnt(0) lgkmcnt(0)\ns_barrier")
    r=reads(0,XA,WA)
    for i,m in enumerate(mfmas(XB,WB)):
        a(m)
        if i<len(r): a(r[i])
        if i==20: a("s_sub_u32 s72, s72, 1\ns_cmp_lg_u32 s72, 0")
    a(f"s_cbranch_scc1 {loop}")

def epilogue_ffn(a):
    ST=128
    a(f"""
    s_waitcnt lgkmcnt(0)
    v_and_b32 v200, 15, v{VL}
    v_lshlrev_b32 v201, 4, v200
    v_add_u32 v201, {L_STAT}, v201
    v_bfe_u32 v202, v{VL}, 4, 1
    v_lshl_add_u32 v200, v202, 4, v200
    v_lshrrev_b32 v202, 5, v{VL}
    v_lshl_add_u32 v200, v202, 7, v200
    s_lshl_b32 s62, s{S_WAVE}, 5
    v_add_u32 v200, s62, v200
    v_lshlrev_b32 v200, 2, v200
    v_add_u32 v200, {L_CS}, v200
    ds_read_b32 v203, v200
    """)
    for t in range(8): a(f"ds_read_b128 {vr(ST+4*t,4)}, v201 offset:{256*t}")
    a(f"""
    s_mul_i32 s62, s{S_I}, {8*56}
    s_lshl_b32 s63, s{S_J}, 2
    s_add_u32 s62, s62, s63
    s_add_u32 s62, s62, s{S_WAVE}
    s_lshl_b32 s62, s62, 10
    v_lshlrev_b32 v204, 4, v{VL}
    s_waitcnt lgkmcnt(0)
    """)
    for t in range(8):
        a(f"v_mfma_f32_16x16x1_4b_f32 {vr(16*t,16)}, v203, v{ST+4*t}, {vr(16*t,16)}")
    a("s_nop 3")
    T=160
    for t in range(8):
        b=16*t; s=ST+4*t; o=208+4*(t&1)
        for p in range(4):
            a(f"v_pk_mul_f32 {vr(T+2*p,2)}, {vr(b+2*p,2)}, {vr(s,2)} op_sel:[0,1] op_sel_hi:[1,1]")
        for p in range(8): a(f"v_exp_f32 v{T+p}, v{T+p}")
        for p in range(4):
            a(f"v_pk_mul_f32 {vr(b+2*p,2)}, {vr(b+2*p,2)}, {vr(b+8+2*p,2)}")
        for p in range(4):
            a(f"v_pk_fma_f32 {vr(T+2*p,2)}, {vr(T+2*p,2)}, {vr(s+2,2)}, {vr(s+2,2)} op_sel:[0,0,0] op_sel_hi:[1,0,0]")
        for p in range(8): a(f"v_rcp_f32 v{T+p}, v{T+p}")
        for p in range(4):
            a(f"v_pk_mul_f32 {vr(b+2*p,2)}, {vr(b+2*p,2)}, {vr(T+2*p,2)}")
        for p in range(4):
            a(f"v_cvt_pk_bf16_f32 v{o+p}, v{b+2*p}, v{b+2*p+1}")
        a(f"buffer_store_dwordx4 {vr(o,4)}, v204, {sr(SWS)}, s62 offen sc1")
        if t<7: a(f"s_add_u32 s62, s62, {56*1024}")

def epilogue_spec(a):
    R=128; Z=160
    a(f"s_waitcnt lgkmcnt(0)\nv_lshrrev_b32 v252, 4, v{VL}\nv_lshlrev_b32 v253, 4, v252\nv_add_u32 v253, {L_RSTD}, v253")
    for t in range(8): a(f"ds_read_b128 {vr(R+4*t,4)}, v253 offset:{64*t}")
    a(f"""
    v_and_b32 v253, 15, v{VL}
    v_lshlrev_b32 v253, 4, v253
    v_lshl_add_u32 v253, v252, 18, v253
    s_sub_u32 s62, s{S_J}, 14
    s_lshl_b32 s62, s62, 11
    s_lshl_b32 s63, s{S_WAVE}, 9
    s_add_u32 s62, s62, s63
    s_lshl_b32 s63, s{S_I}, 12
    s_add_u32 s62, s62, s63
    s_add_u32 s62, s62, {WS_G}
    s_waitcnt lgkmcnt(0)
    """)
    for t in range(8):
        for g in range(4):
            d=(t*4+g)*4
            for p in range(2):
                a(f"v_pk_mul_f32 {vr(d+2*p,2)}, {vr(d+2*p,2)}, {vr(R+4*t+2*p,2)}")
        for g in range(4):
            d=(t*4+g)*4
            z=Z+((t>>1)*4+g)*4+(t&1)*2
            for p in range(2):
                a(f"v_cvt_pk_bf16_f32 v{z+p}, v{d+2*p}, v{d+2*p+1}")
    a("s_nop 1")
    def acc(tb,eb,b,ri): return (((tb*2+eb)*4+b)*2+ri)*4
    def group(tb,eb):
        out=[]
        for b in range(4):
            zr=vr(Z+(b*4+eb)*4,4); zi=vr(Z+(b*4+2+eb)*4,4)
            out+=[f"{MF} {vr(acc(tb,eb,b,0),4)}, {vr(FC+4*tb,4)}, {zr}, 0",
                  f"{MF} {vr(acc(tb,eb,b,1),4)}, {vr(FC+4*tb,4)}, {zi}, 0",
                  f"{MF} {vr(acc(tb,eb,b,0),4)}, {vr(FS+4*tb,4)}, {zi}, {vr(acc(tb,eb,b,0),4)}",
                  f"{MF} {vr(acc(tb,eb,b,1),4)}, {vr(FN+4*tb,4)}, {zr}, {vr(acc(tb,eb,b,1),4)}"]
        return out
    def pack(tb,eb,n0):
        out=[]
        for j in range(4):
            o=128+4*((n0+j)%8)
            for b in range(4):
                out.append(f"v_cvt_pk_bf16_f32 v{o+b}, v{acc(tb,eb,b,0)+j}, v{acc(tb,eb,b,1)+j}")
            out.append(f"s_add_u32 s63, s62, {(16*tb+j)*65536}\nbuffer_store_dwordx4 {vr(o,4)}, v253, {sr(SWS)}, s63 offen offset:{eb*256} sc1")
        return out
    gs=[(0,0),(0,1),(1,0),(1,1)]
    for gi,(tb,eb) in enumerate(gs):
        m=group(tb,eb)
        pk=pack(*gs[gi-1],4*(gi-1)) if gi>0 else []
        for i,x in enumerate(m):
            a(x)
            if i>=8 and pk:
                for _ in range(3):
                    if pk: a(pk.pop(0))
        for x in pk: a(x)
    a("s_nop 7")
    for x in pack(1,1,12): a(x)

def stage_rot(a,s):
    r=CFG.get('rot2',2)
    if r==2:
        a(f"s_and_b32 s{s}, s{S_T1}, 3\ns_lshl_b32 s{s}, s{s}, 1\ns_add_u32 s{s}, s{s}, s{S_NB}\ns_sub_u32 s62, s{s}, 7\ns_cmp_ge_u32 s{s}, 7\ns_cselect_b32 s{s}, s62, s{s}")
    elif r==1: a(f"s_cmp_eq_u32 s{S_NB}, 7\ns_cselect_b32 s{s}, 0, s{S_NB}")
    else: a(f"s_mov_b32 s{s}, 0")

def compute2(a):
    PF=CFG.get('pf2',8)
    ACC=0; WF=32; HF=80; XR=176; AW=200; AH=204
    assert HF+8*PF<=XR
    ls(a,4)
    flag_addr(a,64)
    a(f"""
    s_lshl_b32 s65, s{S_WAVE}, 2
    s_add_u32 s64, s64, s65
    v_mov_b32 v1, 1
    s_lshr_b32 s60, s{S_WAVE}, 1
    s_and_b32 s61, s{S_WAVE}, 1
    """)
    srd(a,SOUT,P_OUT,2048*512*2)
    a(f"""
    v_and_b32 v6, 15, v{VL}
    v_lshrrev_b32 v2, 4, v{VL}
    s_lshl_b32 s62, s61, 10
    s_add_u32 s62, s62, s{S_T1}
    s_lshl_b32 s62, s62, 10
    s_lshl_b32 s63, s{S_NB}, 7
    s_add_u32 s62, s62, s63
    s_lshl_b32 s63, s60, 6
    s_add_u32 s77, s62, s63
    s_add_u32 s78, s77, {16*32*1024}
    v_lshlrev_b32 v3, 15, v6
    v_lshl_add_u32 v206, v2, 3, v3
    v_and_b32 v4, 1, v2
    v_lshlrev_b32 v4, 5, v4
    v_lshrrev_b32 v5, 1, v2
    v_lshl_add_u32 v4, v5, 4, v4
    v_add_u32 v207, v3, v4
    """)
    a(f"""
    s_lshl_b32 s62, s{S_T1}, 2
    s_lshl_b32 s63, s61, 1
    s_add_u32 s62, s62, s63
    s_mul_i32 s62, s62, 56
    s_mul_i32 s63, s60, 28
    s_add_u32 s62, s62, s63
    s_lshl_b32 s62, s62, 10
    v_lshlrev_b32 v7, 4, v{VL}
    v_add_u32 v{AH}, s62, v7
    v_add_u32 v{AH+1}, {56*1024}, v{AH}
    """)
    stage_rot(a,76)
    for sg in range(7):
        a(f"s_lshl_b32 s{80+sg}, s76, 12\ns_add_u32 s76, s76, 1\ns_cmp_eq_u32 s76, 7\ns_cselect_b32 s76, 0, s76")
    a(f"""
    v_lshrrev_b32 v3, 2, v6
    v_and_b32 v4, 3, v6
    v_lshl_add_u32 v3, v2, 2, v3
    v_bfe_u32 v5, v3, 1, 2
    s_lshl_b32 s62, s60, 1
    v_xor_b32 v5, s62, v5
    v_lshlrev_b32 v5, 5, v5
    v_lshl_add_u32 v5, v4, 3, v5
    v_lshl_add_u32 v5, v3, 7, v5
    s_lshl_b32 s62, s60, 12
    v_add_u32 v{AW}, s62, v5
    """)
    for eb in range(1,4): a(f"v_xor_b32 v{AW+eb}, {eb<<5}, v{AW}")
    for eb in range(4): a(f"v_add_u32 v{210+eb}, {SLOT}, v{AW+eb}\nv_add_u32 v{214+eb}, {2*SLOT}, v{AW+eb}")
    a(f"""
    s_mul_i32 s62, s60, 28
    v_min_u32 v3, 27, v{VL}
    v_add_u32 v3, s62, v3
    v_lshrrev_b32 v4, 2, v3
    v_and_b32 v3, 3, v3
    v_lshlrev_b32 v3, 2, v3
    v_lshl_add_u32 v208, v4, 7, v3
    s_lshr_b32 s62, s{S_T1}, 1
    s_lshl_b32 s62, s62, 11
    s_add_u32 s66, s62, {WS_FL}
    {'s_barrier' if CFG.get('wrb') else ''}
    s_waitcnt vmcnt(0)
    s_mov_b64 exec, 1
    buffer_store_dword v1, off, {sr(SWS)}, s64 sc1
    s_mov_b64 exec, -1
    """)
    ls(a,5)
    for t in range(2):
        for eb in range(2):
            a(f"buffer_load_dwordx2 {vr(XR+16+(t*2+eb)*2,2)}, v206, {sr(SX)}, s{77+t} offen offset:{32*eb}")
    def wreads(n):
        b=WF+16*(n%3); u=unit_base(n); k=u//SLOT; base=(AW,210,214)[k]
        return [f"ds_read_b64_tr_b16 {vr(b+4*eb+2*rho,2)}, v{base+eb} offset:{u-k*SLOT+rho*2048}" for eb in range(4) for rho in range(2)]
    if not CFG.get('wrb'): a("s_barrier")
    for l in wreads(0)+wreads(1): a(l)
    ls(a,6)
    lp=a.lab('poll'); ok=a.lab('ok')
    a(f"s_mov_b32 s67, {SPIN}\n{lp}:")
    a(f"buffer_load_dword v3, v208, {sr(SWS)}, s66 offen sc1\ns_waitcnt vmcnt(0)\nv_cmp_ne_u32 vcc, 1, v3\ns_cbranch_vccz {ok}")
    a(f"s_sub_u32 s67, s67, 1\ns_cmp_lg_u32 s67, 0\ns_cbranch_scc1 {lp}\n{ok}:")
    ls(a,18)
    hfl=CFG.get('hfl','sc1').replace('none','')
    def hload(n):
        sg,k=divmod(n,4); b=HF+8*(n%PF)
        return [f"buffer_load_dwordx4 {vr(b+4*t,4)}, v{AH+t}, {sr(SWS)}, s{80+sg} offen offset:{k*1024} {hfl}" for t in range(2)]
    for n in range(PF):
        for l in hload(n): a(l)
    ls(a,7)
    for i in range(8):
        a(f"v_lshlrev_b32 v{XR+2*i}, 16, v{XR+16+i}\nv_and_b32 v{XR+2*i+1}, 0xffff0000, v{XR+16+i}")
    for n in range(28):
        outstanding=2*(min(28,n+PF)-(n+1))
        a(f"s_waitcnt vmcnt({outstanding}) lgkmcnt({8 if n<27 else 0})")
        if n==0: ls(a,11)
        if n in (4,9,16):
            q={4:12,9:14,16:16}[n]
            if CFG.get('ct'): ls(a,q)
            a("s_barrier")
            if CFG.get('ct'): ls(a,q+1)
        r=wreads(n+2) if n<26 else []
        hb=HF+8*(n%PF); wb=WF+16*(n%3)
        hl=hload(n+PF) if n+PF<28 else []
        i=0
        for t in range(2):
            for ee in range(4):
                eb=ee if t==0 else 3-ee
                d=ACC+(t*4+eb)*4
                a(f"{MF} {vr(d,4)}, {vr(wb+4*eb,4)}, {vr(hb+4*t,4)}, {'0' if n==0 else vr(d,4)}")
                if i<len(r): a(r[i])
                i+=1
            if hl: a(hl[t])
    ls(a,8)
    a(f"""
    v_lshlrev_b32 v40, 4, v{VL}
    s_lshl_b32 s62, s{S_WAVE}, 12
    s_add_u32 s62, s62, {L_RED}
    v_add_u32 v41, s62, v40
    v_xor_b32 v42, 8192, v41
    s_lshl_b32 s62, s60, 13
    s_lshl_b32 s63, s61, 11
    s_add_u32 s62, s62, s63
    s_add_u32 s62, s62, {L_Y}
    v_add_u32 v43, s62, v40
    """)
    for t in range(2):
        for eb in range(2):
            a(f"ds_write_b128 v41, {vr(ACC+(t*4+2+eb)*4,4)} offset:{(t*2+eb)*1024}")
    a("s_waitcnt lgkmcnt(0)\ns_barrier")
    RD=64; Y=80; T=96
    for t in range(2):
        for eb in range(2):
            a(f"ds_read_b128 {vr(RD+(t*2+eb)*4,4)}, v42 offset:{(t*2+eb)*1024}")
        for eb in range(2):
            a(f"ds_read_b128 {vr(Y+(t*2+eb)*4,4)}, v43 offset:{eb*4096+t*1024}")
    a(f"s_mov_b32 s64, {hx(-LOG2E)}\ns_mov_b32 s65, s64")
    ofl=CFG.get('ofl','none').replace('none','').replace('+',' ')
    for t in range(2):
        b=ACC+t*16
        a(f"s_waitcnt lgkmcnt({6-4*t})")
        for p in range(4): a(f"v_pk_add_f32 {vr(b+2*p,2)}, {vr(b+2*p,2)}, {vr(RD+t*8+2*p,2)}")
        for p in range(4): a(f"v_pk_mul_f32 {vr(T+2*p,2)}, {vr(b+2*p,2)}, s[64:65]")
        for p in range(8): a(f"v_exp_f32 v{T+p}, v{T+p}")
        a(f"s_waitcnt lgkmcnt({4-4*t})")
        for p in range(4): a(f"v_pk_mul_f32 {vr(b+2*p,2)}, {vr(b+2*p,2)}, {vr(Y+t*8+2*p,2)}")
        for p in range(4): a(f"v_pk_add_f32 {vr(T+2*p,2)}, {vr(T+2*p,2)}, 1.0 op_sel_hi:[1,0]")
        for p in range(8): a(f"v_rcp_f32 v{T+p}, v{T+p}")
        for p in range(4): a(f"v_pk_fma_f32 {vr(b+2*p,2)}, {vr(b+2*p,2)}, {vr(T+2*p,2)}, {vr(XR+t*8+2*p,2)}")
        o=112+4*t
        for p in range(4): a(f"v_cvt_pk_bf16_f32 v{o+p}, v{b+2*p}, v{b+2*p+1}")
        a(f"s_nop 1\nv_permlane16_swap_b32 v{o}, v{o+2}\nv_permlane16_swap_b32 v{o+1}, v{o+3}")
        a(f"buffer_store_dwordx4 {vr(o,4)}, v207, {sr(SOUT)}, s{77+t} offen {ofl}")
    ls(a,9)
    if CFG.get('trace') or CFG.get('probe'):
        a("s_waitcnt vmcnt(0)"); ls(a,10)
    ls_dump(a)

def loader(a):
    vm=VM()
    CB=64; WR=128; GA=208; YA=224
    spec=a.lab('lspec'); join=a.lab('ljoin')
    a(f"s_sub_u32 s74, s{S_WAVE}, 4")
    a(f"v_lshrrev_b32 v1, 3, v{VL}\nv_and_b32 v2, 7, v{VL}\ns_lshl_b32 s75, s74, 5")
    a(f"s_cmp_ge_u32 s{S_J}, 14\ns_cbranch_scc1 {spec}")
    for sp in (False,True):
        if sp: a(f"{spec}:")
        for p in range(4):
            a(f"v_add3_u32 v3, v1, s75, {8*p}")
            a(f"v_bfe_u32 v4, v3, 1, 3\nv_xor_b32 v4, v4, v2\nv_lshlrev_b32 v4, 4, v4")
            token_row(a,sp,3,5,6)
            a(f"v_lshl_add_u32 v{10+p}, v5, 10, v4")
            if sp:
                a(f"s_sub_u32 s62, s{S_J}, 14\ns_lshl_b32 s62, s62, 7\ns_add_u32 s62, s62, 1\nv_add_u32 v5, s62, v3\nv_lshl_add_u32 v{14+p}, v5, 10, v4")
        if not sp:
            a(f"v_lshrrev_b32 v3, 4, v{VL}\nv_and_b32 v4, 15, v{VL}\ns_lshl_b32 s62, s74, 4\ns_lshl_b32 s63, s{S_J}, 8")
            for p in range(4):
                a(f"v_or_b32 v5, {(p>>1)<<2}, v3\nv_lshlrev_b32 v5, 1, v5\nv_xor_b32 v5, v5, v4\nv_lshl_add_u32 v5, v5, 4, s63")
                a(f"v_add3_u32 v6, v3, s62, {4*p}\nv_mul_u32_u24 v6, 3584, v6\nv_add_u32 v{14+p}, v5, v6")
            a("s_waitcnt lgkmcnt(0)")
            srd(a,SB0,P_WG,512*1792*2); srd(a,SB1,P_WU,512*1792*2)
            a(f"s_mov_b32 s72, {64*3584}\ns_branch {join}")
        else:
            a("s_waitcnt lgkmcnt(0)")
            srd(a,SB0,P_HRE,512*512*2); srd(a,SB1,P_HIM,512*512*2)
            a("s_mov_b32 s72, 128")
    a(f"{join}:")
    srd(a,SX,P_X,2048*512*2)
    ls_first(a)
    a("s_lshl_b32 s73, s74, 12")
    if CFG.get('rot'): a(f"s_add_u32 s76, s{S_I}, s{S_J}\ns_and_b32 s76, s76, 7")
    else: a("s_mov_b32 s76, 0")

    side=[]
    def S(s):
        for l in s.split('\n'):
            if l.strip(): side.append(l.strip())
    tmp=Asm()
    srd(tmp,SWS,P_WS,ws_end()); srd(tmp,SDBG,P_DBG,256); srd(tmp,SWD,P_WD,1792*512*2)
    tmp(f"""
    s_and_b32 s79, s2, 1
    s_lshl_b32 s79, s79, 7
    s_cmp_eq_u32 s74, 0
    s_cselect_b32 s79, s79, 0x1000
    v_mov_b32 v9, 1
    v_mov_b32 v52, s79
    v_and_b32 v8, 1, v{VL}
    v_lshlrev_b32 v8, 7, v8
    """)
    tmp(f"""
    v_lshrrev_b32 v5, 3, v{VL}
    v_and_b32 v6, 7, v{VL}
    v_lshrrev_b32 v7, 4, v{VL}
    v_lshlrev_b32 v7, 1, v7
    v_xor_b32 v6, v6, v7
    v_lshlrev_b32 v6, 4, v6
    v_lshl_add_u32 v6, v5, 10, v6
    s_lshl_b32 s60, s{S_NB}, 7
    s_lshl_b32 s61, s74, 13
    s_add_u32 s60, s60, s61
    v_add_u32 v18, s60, v6
    s_lshl_b32 s92, s74, 10
    """)
    stage_rot(tmp,60)
    for sg in range(7):
        tmp(f"s_lshl_b32 s{80+sg}, s60, 17\ns_add_u32 s60, s60, 1\ns_cmp_eq_u32 s60, 7\ns_cselect_b32 s60, 0, s60")
    tmp(f"""
    v_and_b32 v1, 15, v{VL}
    v_lshrrev_b32 v2, 4, v{VL}
    s_lshl_b32 s60, s{S_NB}, 6
    s_lshl_b32 s61, s74, 4
    s_add_u32 s60, s60, s61
    v_add_u32 v3, s60, v1
    v_sub_u32 v4, 512, v3
    s_sub_u32 s61, 32, s{S_T1}
    s_and_b32 s61, s61, 31
    s_mov_b32 s63, {hx(1/2048.)}
    s_mov_b32 s64, {hx(-1/2048.)}
    s_cmp_ge_u32 s{S_NB}, 4 | s_cselect_b32 s61, s61, s{S_T1} | s_cselect_b64 vcc, -1, 0 | s_cselect_b32 s90, s64, s63
    v_cndmask_b32 v4, v3, v4, vcc
    v_subrev_u32 v4, 1, v4
    v_lshlrev_b32 v4, 4, v4
    v_lshl_add_u32 v4, v2, 12, v4
    v_cmp_eq_u32 vcc, 0, v3
    v_mov_b32 v5, {OOB}
    s_lshl_b32 s61, s61, 16
    v_cndmask_b32 v19, v4, v5, vcc
    s_add_u32 s91, s61, {WS_G}
    v_lshlrev_b32 v2, 2, v2
    v_cvt_f32_u32 v2, v2
    """)
    for tb in range(4):
        tmp(f"v_add_u32 v3, {16*tb}, v1\nv_lshlrev_b32 v3, 5, v3\nv_add_u32 v3, s{S_T1}, v3\nv_cvt_f32_u32 v3, v3\nv_mul_f32 v3, s90, v3")
        for k in range(4):
            tmp(f"v_add_f32 v40, {hx(16.0*k)}, v2\nv_mul_f32 v40, v40, v3\nv_add_f32 v41, v40, v3\nv_add_f32 v42, v41, v3\nv_add_f32 v43, v42, v3")
            for b in range(4): tmp(f"v_cos_f32 v{44+b}, v{40+b}\nv_sin_f32 v{48+b}, v{40+b}")
            for b in range(4): tmp(f"v_cvt_pk_bf16_f32 v{CB+(tb*4+k)*4+b}, v{44+b}, v{48+b}")
    lines=[l.strip() for l in tmp.l]
    i=0
    while i<len(lines):
        l=lines[i]
        if l.startswith('s_cmp') and '|' not in l:
            side.append(l+'\n'+lines[i+1]); i+=2
        else:
            side.append(l.replace(' | ','\n')); i+=1
    def feed(n):
        for _ in range(n):
            if side: a(side.pop(0))

    def dma(m0expr,vaddr,srdn,soff,tag,nfeed):
        a(f"s_add_u32 m0, {m0expr}\ns_nop 0\nbuffer_load_dwordx4 v{vaddr}, {sr(srdn)}, {soff} offen lds"); vm.op(tag)
        feed(nfeed)
    def issue(c,lo=0,hi=4,nfeed=0):
        slot=c%3
        if lo==0: a("s_lshl_b32 s70, s76, 7\ns_mul_i32 s71, s76, s72\ns_add_u32 s76, s76, 1\ns_and_b32 s76, s76, 7")
        for p in range(lo,hi):
            dma(f"s73, {slot*SLOT+p*1024}",10+p,SX,"s70",f"c{c}",nfeed)
            dma(f"s73, {slot*SLOT+16384+p*1024}",14+p,SB0,"s71",f"c{c}",nfeed)
            dma(f"s73, {slot*SLOT+32768+p*1024}",14+p,SB1,"s71",f"c{c}",nfeed)
    def wd_soff(n,kh):
        sg,k=divmod(n,4)
        a(f"s_add_u32 s71, s{80+sg}, {(kh*896+32*k)*1024}")
    def wd_dma(n):
        for kh in range(2):
            a(f"s_add_u32 m0, s92, {unit_base(n)+kh*4096}"); wd_soff(n,kh)
            a(f"buffer_load_dwordx4 v18, {sr(SWD)}, s71 offen lds"); vm.op('wd')
    def wd_reg(n):
        for kh in range(2):
            wd_soff(n,kh)
            a(f"buffer_load_dwordx4 {vr(WR+((n-18)*2+kh)*4,4)}, v18, {sr(SWD)}, s71 offen"); vm.op('wr')
    def bar(c,*tags):
        a(f"s_waitcnt vmcnt({vm.need(*tags)})")
        if CFG.get('lt',1) or c in (0,1): ls(a,2+2*c)
        a("s_barrier")
        if CFG.get('lt',1) or c in (0,1): ls(a,3+2*c)

    wr=list(range(18,28))
    sched=[int(c) for c in str(CFG.get('wrs','0002222')).zfill(7)]
    def wregs(rnd):
        for _ in range(sched[rnd-1]):
            if wr: wd_reg(wr.pop(0))
    def spf(rnd):
        if not CFG.get('spf',1): return
        if rnd in (1,2):
            for q in range(14): a(f"s_load_dword s95, s[64:65], {((rnd-1)*14+q)*64}")
        if rnd in (3,4):
            for q in range(14): a(f"s_load_dword s95, s[66:67], {((rnd-3)*7+q//2)*1024+(q&1)*64}")
    feed(CFG.get('ldelay',40))
    ls(a,1)
    issue(0,0,3,0); issue(0,3,4,30); issue(1,0,2,30)
    feed(len(side))
    a(f"""
    s_mul_i32 s60, s2, 7168
    s_mul_i32 s61, s74, 1792
    s_add_u32 s60, s60, s61
    s_add_u32 s64, s{P_WD}, s60
    s_addc_u32 s65, s{P_WD+1}, 0
    s_mul_i32 s60, s{S_LOC}, {56*1024}
    s_mul_i32 s61, s74, {14*1024}
    s_add_u32 s60, s60, s61
    s_add_u32 s60, s60, 384
    s_add_u32 s66, s{P_WD}, s60
    s_addc_u32 s67, s{P_WD+1}, 0
    """)
    sp2=a.lab('gspec'); j2=a.lab('gjoin')
    a(f"s_cmp_ge_u32 s{S_J}, 14\ns_cbranch_scc1 {sp2}")
    for sp in (False,True):
        if sp: a(f"{sp2}:")
        for h in range(2):
            a(f"v_add_u32 v3, {64*h}, v{VL}")
            token_row(a,sp,3,20+h,6)
        if not sp: a(f"s_branch {j2}")
    a(f"{j2}:")
    for h in range(2):
        a(f"v_bfe_u32 v6, v{20+h}, 1, 5\nv_lshlrev_b32 v6, 6, v6\nv_lshrrev_b32 v7, 6, v{20+h}\nv_lshl_add_u32 v6, v7, 1, v6\nv_and_b32 v7, 1, v{20+h}\nv_add_u32 v6, v6, v7\nv_lshlrev_b32 v{20+h}, 3, v6")
    a(f"""
    s_mov_b32 s87, {WS_ST}
    v_and_b32 v5, 31, v{VL}
    v_lshlrev_b32 v5, 4, v5
    v_lshrrev_b32 v6, 5, v{VL}
    v_mul_u32_u24 v6, {1792*4}, v6
    v_add_u32 v22, v5, v6
    s_lshl_b32 s88, s{S_J}, 9
    s_add_u32 s88, s88, {WS_CS}
    """)
    bar(0,'c0')
    issue(1,2,4); issue(2)
    bar(1,'c1')
    spf(1); issue(3); wregs(1)
    a(f"s_mov_b64 exec, 1\nbuffer_atomic_add v9, v52, {sr(SDBG)}, 0 offen sc1\ns_mov_b64 exec, -1"); vm.op('at')
    bar(2,'c2')
    spf(2); issue(4); wregs(2)
    bar(3,'c3')
    spf(3); issue(5); wregs(3)
    bar(4,'c4')
    spf(4); issue(6); wregs(4)
    bar(5,'c5')
    a(f"buffer_load_dword v23, v8, {sr(SDBG)}, 0 offen sc1"); vm.op('poll')
    issue(7); wregs(5)
    lp=a.lab('poll'); ok=a.lab('ok')
    a(f"s_waitcnt vmcnt({vm.need('poll','c6')})\nv_cmp_gt_u32 vcc, 128, v23\ns_cbranch_vccz {ok}")
    a(f"s_mov_b32 s89, {SPIN}\n{lp}:")
    a(f"buffer_load_dword v23, v8, {sr(SDBG)}, 0 offen sc1\ns_waitcnt vmcnt(0)\nv_cmp_gt_u32 vcc, 128, v23\ns_cbranch_vccz {ok}")
    a(f"s_sleep 2\ns_sub_u32 s89, s89, 1\ns_cmp_lg_u32 s89, 0\ns_cbranch_scc1 {lp}\n{ok}:")
    bar(6,'c6')
    g1=a.lab('g1'); g2=a.lab('g2')
    a(f"s_cmp_lg_u32 s74, 0\ns_cbranch_scc1 {g1}")
    for h in range(2):
        a(f"buffer_load_dwordx2 v[{24+4*h}:{25+4*h}], v{20+h}, {sr(SWS)}, s87 offen sc1")
    a(f"{g1}:\ns_cmp_lg_u32 s74, 1\ns_cbranch_scc1 {g2}")
    for kq in range(4):
        a(f"buffer_load_dwordx4 {vr(32+4*kq,4)}, v22, {sr(SWS)}, s88 offen sc1\ns_add_u32 s88, s88, {3584*4}")
    a(f"{g2}:"); vm.op('g')
    for n in range(0,6): wd_dma(n)
    wregs(6)
    bar(7,'c7','g')
    w1=a.lab('lw1'); done=a.lab('ldone')
    a(f"s_cmp_lg_u32 s74, 0\ns_cbranch_scc1 {w1}")
    a(f"v_lshlrev_b32 v5, 4, v{VL}\nv_add_u32 v5, {L_STAT}, v5\nv_lshlrev_b32 v6, 2, v{VL}\nv_add_u32 v6, {L_RSTD}, v6")
    for h in range(2):
        b=24+4*h
        a(f"v_rcp_f32 v{b+3}, v{b+1}\nv_mul_f32 v{b+2}, v{b+1}, v{b+1}\nv_mul_f32 v{b+1}, {hx(-LOG2E)}, v{b+3}")
        a(f"ds_write_b128 v5, v[{b}:{b+3}] offset:{1024*h}\nds_write_b32 v6, v{b+3} offset:{256*h}")
    a(f"s_branch {done}\n{w1}:")
    a(f"s_cmp_lg_u32 s74, 1\ns_cbranch_scc1 {done}")
    a(f"v_lshlrev_b32 v5, 4, v{VL}\nv_add_u32 v5, {L_CS}, v5")
    for j in range(4):
        a(f"v_add_f32 v{32+j}, v{32+j}, v{36+j}\nv_add_f32 v{40+j}, v{40+j}, v{44+j}\nv_add_f32 v{32+j}, v{32+j}, v{40+j}")
    a("ds_write_b128 v5, v[32:35]")
    a(f"{done}:")
    for n in range(6,12): wd_dma(n)
    wregs(7)
    a("s_waitcnt lgkmcnt(0)")
    ls(a,18); a("s_barrier"); ls(a,19)
    for n in range(12,18): wd_dma(n)
    if not CFG.get('wrb'):
        for n in wr: wd_reg(n)
    a(f"""
    v_lshrrev_b32 v5, 2, v{VL}
    v_lshlrev_b32 v5, 11, v5
    v_bfe_u32 v6, v{VL}, 1, 1
    v_lshl_add_u32 v5, v6, 7, v5
    v_and_b32 v6, 1, v{VL}
    v_lshl_add_u32 v20, v6, 3, v5
    s_mov_b32 s87, {WS_FL+14*128}
    v_lshlrev_b32 v21, 4, v{VL}
    v_add_u32 v21, s92, v21
    v_add_u32 v22, {2*SLOT}, v21
    """)
    a(f"s_waitcnt vmcnt({vm.need('wd')})")
    ls(a,20); a("s_barrier"); ls(a,21)
    if CFG.get('wrb'):
        for n in wr: wd_reg(n)
    def wd_put(n):
        u=unit_base(n)
        for kh in range(2):
            base,off=(22,u-2*SLOT) if u>=2*SLOT else (21,u)
            a(f"ds_write_b128 v{base}, {vr(WR+((n-18)*2+kh)*4,4)} offset:{off+kh*4096}")
    a("s_waitcnt vmcnt(0)\ns_barrier")
    ls(a,22)
    a(f"buffer_load_dwordx2 v[24:25], v20, {sr(SWS)}, s87 offen sc1")
    for n in range(18,23): wd_put(n)
    lp=a.lab('poll'); ok=a.lab('ok')
    a(f"s_mov_b32 s89, {SPIN}\n{lp}:")
    a(f"s_waitcnt vmcnt(0)\nv_and_b32 v24, v24, v25\nv_cmp_ne_u32 vcc, 1, v24\ns_cbranch_vccz {ok}")
    a(f"buffer_load_dwordx2 v[24:25], v20, {sr(SWS)}, s87 offen sc1\ns_sub_u32 s89, s89, 1\ns_cmp_lg_u32 s89, 0\ns_cbranch_scc1 {lp}\n{ok}:")
    for k in range(4):
        a(f"buffer_load_dwordx4 {vr(GA+4*k,4)}, v19, {sr(SWS)}, s91 offen sc1\ns_add_u32 s91, s91, {4*4096}")
    ls(a,23)
    a("s_barrier")
    for n in range(23,28): wd_put(n)
    a("s_waitcnt lgkmcnt(0)")
    ls(a,24)
    a("s_barrier")
    a("s_waitcnt vmcnt(0)")
    for tb in range(4):
        for k in range(4):
            a(f"{MF} {vr(YA+4*tb,4)}, {vr(GA+4*k,4)}, {vr(CB+(tb*4+k)*4,4)}, {'0' if k==0 else vr(YA+4*tb,4)}")
    a(f"v_lshlrev_b32 v1, 4, v{VL}\ns_add_u32 s60, s73, {L_Y}\nv_add_u32 v1, s60, v1\ns_nop 7")
    for tb in range(4):
        a(f"ds_write_b128 v1, {vr(YA+4*tb,4)} offset:{1024*tb}")
    a("s_waitcnt lgkmcnt(0)")
    ls(a,25)
    a("s_barrier")
    ls(a,26)
    ls_dump(a)

def kernel_main(a,name):
    kbegin(a,name)
    end=a.lab('end'); ld=a.lab('ld'); sp=a.lab('sp'); s2=a.lab('stage2')
    a(f"s_cmp_ge_u32 s2, 256\ns_cbranch_scc1 {end}")
    if CFG.get('trace') or CFG.get('probe'): a("s_memrealtime s[94:95]")
    a("s_load_dwordx16 s[32:47], s[0:1], 0\ns_load_dwordx8 s[48:55], s[0:1], 64")
    a(f"v_lshrrev_b32 v1, 6, v0\nv_and_b32 v{VL}, 63, v0\nv_readfirstlane_b32 s{S_WAVE}, v1")
    tile_map(a)
    a(f"s_cmp_ge_u32 s{S_WAVE}, 4\ns_cbranch_scc1 {ld}")
    if CFG.get('prio',1): a("s_setprio 1")
    r1=a.lab('r1'); r3=a.lab('r3'); rj=a.lab('rj'); rt=a.lab('rt'); rz=a.lab('rz')
    a(f"s_cmp_eq_u32 s{S_WAVE}, 3\ns_cbranch_scc1 {r3}")
    a(f"""
    v_lshrrev_b32 v1, 3, v{VL}
    v_mul_u32_u24 v1, {4*3584}, v1
    v_and_b32 v2, 7, v{VL}
    v_lshl_add_u32 v129, v2, 4, v1
    v_lshrrev_b32 v1, 4, v{VL}
    v_and_b32 v2, 15, v{VL}
    v_lshlrev_b32 v2, 4, v2
    v_lshl_add_u32 v130, v1, 16, v2
    """)
    job_ids(a)
    a("s_waitcnt lgkmcnt(0)")
    srd(a,SX,P_X,2048*512*2); srd(a,SWS,P_WS,ws_end())
    ls_first(a)
    a(f"s_cmp_lg_u32 s{S_WAVE}, 0\ns_cbranch_scc1 {r1}\ns_cmp_ge_u32 s60, 14\ns_cbranch_scc1 {rt}")
    stats_colsum(a); zero_acc(a); stats_colsum2(a)
    a(f"s_branch {rj}\n{r1}:")
    stats_rows(a); zero_acc(a); stats_rows2(a)
    a(f"s_branch {rj}\n{rt}:")
    table_touch(a)
    a(f"s_branch {rz}\n{r3}:")
    if CFG.get('cpf',1):
        a(f"""
        s_getpc_b64 s[64:65]
        L_pc_here:
        s_and_b32 s62, s{S_LOC}, 3
        s_lshl_b32 s62, s62, 13
        v_lshlrev_b32 v1, 7, v{VL}
        v_add_u32 v1, s62, v1
        v_min_u32 v1, L_code_end-{name}-4, v1
        s_sub_u32 s64, s64, L_pc_here-{name}
        s_subb_u32 s65, s65, 0
        global_load_dword v252, v1, s[64:65]
        """)
    flag_addr(a,68)
    a("s_waitcnt lgkmcnt(0)")
    srd(a,SX,P_X,2048*512*2); srd(a,SWS,P_WS,ws_end())
    ls_first(a)
    a(f"v_mov_b64 v[132:133], 0\nv_mov_b64 v[134:135], 0\ns_mov_b64 exec, 1\nbuffer_store_dwordx4 v[132:135], off, {sr(SWS)}, s68 sc1\ns_mov_b64 exec, -1")
    if CFG.get('tlb',1):
        srd(a,SOUT,P_OUT,2048*512*2)
        a(f"""
        v_lshlrev_b32 v1, {CFG.get('tlbsh',20)}, v{VL}
        s_mov_b64 exec, {hex((1<<(ws_end()>>CFG.get('tlbsh',20))+1)-1)}
        buffer_load_dword v253, v1, {sr(SWS)}, 0 offen sc1
        s_mov_b64 exec, {hex((1<<(0x200000>>CFG.get('tlbsh',20)))-1)}
        buffer_load_dword v253, v1, {sr(SOUT)}, 0 offen sc1
        s_mov_b64 exec, -1
        """)
    a(f"{rz}:")
    zero_acc(a)
    a(f"{rj}:")
    a(f"s_cmp_ge_u32 s{S_J}, 14\ns_cbranch_scc1 {sp}")
    def setup_keep(spec):
        compute1_setup(a,spec)
        if spec: dft32_consts(a)
        for r in range(0,24 if spec else 6,2): a(f"v_mov_b64 v[{r}:{r+1}], 0")
    setup_keep(False); mainloop1(a,False); ls(a,3); epilogue_ffn(a)
    a(f"{s2}:")
    compute2(a)
    a(f"s_endpgm\n{sp}:")
    setup_keep(True); mainloop1(a,True); ls(a,3); epilogue_spec(a)
    a(f"s_branch {s2}\n{ld}:")
    loader(a)
    a(f"{end}:\ns_endpgm\nL_code_end:")

def build(cfg):
    CFG.clear(); CFG.update(cfg)
    a=Asm()
    name=NAME+'_kernel'
    if cfg.get('probe'):
        a(f"; @launch kernel={name} grid=(256,1,1) block=(512,1,1) lds={LDS}")
        a(f"; @launch kernel=probe_kernel grid=(1,1,1) block=(64,1,1) lds=0")
    else:
        a(f"; @launch grid=(256,1,1) block=(512,1,1) lds={LDS}")
    a('.amdgcn_target "amdgcn-amd-amdhsa--gfx950"\n.text')
    kernel_main(a,name); names=[name]
    if cfg.get('probe'): names.append(kernel_probe(a))
    a('.section .rodata,"a"')
    for n in names:
        a('.p2align 6')
        a.l.append(kd(n,256,102,256))
    return a.text()

if __name__=='__main__':
    cfg={}
    for kv in sys.argv[2:]:
        k,v=kv.split('='); cfg[k]=int(v) if v.lstrip('-').isdigit() else v
    open(sys.argv[1],'w').write(build(cfg))
```

```python
import sys, struct
NAME='recurrent_scan__spectral_fnet__swiglu_ffn__prompt'
LOG2E=1.4426950408889634
def f2u(x): return struct.unpack('<I',struct.pack('<f',x))[0]
def hx(x): return hex(f2u(x))

WS_H=0; WS_G=0x700000; WS_ST=0x900000; WS_CS=0x904000; WS_FL=0x920000
WS_STAMP=0x930000; WS_TRACE=0x940000
CFG={}
def ws_end(): return 0xA40000 if (CFG.get('probe') or CFG.get('trace')) else 0x930000
OOB=0x40000000

class Asm:
    def __init__(self): self.l=[]; self.n=0
    def __call__(self,s):
        for line in s.split('\n'):
            line=line.strip()
            if line: self.l.append(('' if line.endswith(':') or line.startswith('.') or line.startswith(';') else '    ')+line)
    def lab(self,b): self.n+=1; return f"L_{b}_{self.n}"
    def text(self): return '\n'.join(self.l)+'\n'

class VM:
    def __init__(self): self.ops=[]
    def op(self,tag): self.ops.append(tag)
    def need(self,*tags):
        last=max(i for i,t in enumerate(self.ops) if t in tags)
        n=len(self.ops)-1-last
        assert n<=63, n
        return n

def kd(name,vgpr,sgpr,accum):
    return f""".amdhsa_kernel {name}
  .amdhsa_next_free_vgpr {vgpr}
  .amdhsa_next_free_sgpr {sgpr}
  .amdhsa_accum_offset {accum}
  .amdhsa_group_segment_fixed_size 0
  .amdhsa_kernarg_size 96
  .amdhsa_user_sgpr_count 2
  .amdhsa_user_sgpr_kernarg_segment_ptr 1
  .amdhsa_system_sgpr_workgroup_id_x 1
  .amdhsa_float_denorm_mode_32 3
.end_amdhsa_kernel
"""
def kbegin(a,name): a(f".globl {name}\n.p2align 8\n.type {name},@function\n{name}:")
def srd(a,d,base,nbytes):
    a(f"s_mov_b32 s{d}, s{base}\ns_mov_b32 s{d+1}, s{base+1}\ns_mov_b32 s{d+2}, {nbytes}\ns_mov_b32 s{d+3}, 0x00020000")
def vr(b,n): return f"v[{b}:{b+n-1}]" if n>1 else f"v{b}"
def sr(b): return f"s[{b}:{b+3}]"
MF="v_mfma_f32_16x16x32_bf16"

P_X,P_HRE,P_HIM,P_WG,P_WU,P_WD,P_OUT,P_DBG,P_WS=32,38,40,44,46,48,50,52,54
SDBG,SX,SB0,SB1,SWS,SWD,SOUT=4,8,12,16,20,24,28
S_WAVE=56; S_I=57; S_J=58; S_T1=59; S_NB=3
VL=255
SPIN=200000

def ls(a,idx):
    if not (CFG.get('trace') or CFG.get('probe')): return
    a(f"s_memrealtime s[96:97]\ns_waitcnt lgkmcnt(0)\nv_writelane_b32 v254, s96, {idx}")
def ls_first(a):
    if not (CFG.get('trace') or CFG.get('probe')): return
    a(f"v_writelane_b32 v254, s94, 0")
def ls_dump(a):
    if not (CFG.get('trace') or CFG.get('probe')): return
    a(f"s_lshl_b32 s98, s2, 11\ns_lshl_b32 s99, s{S_WAVE}, 8\ns_add_u32 s98, s98, s99\ns_add_u32 s98, s98, {WS_TRACE}\nv_lshlrev_b32 v253, 2, v{VL}\nbuffer_store_dword v254, v253, {sr(SWS)}, s98 offen")
def kernel_probe(a):
    pa,pb=CFG['probe'].split(':'); K=CFG.get('K',10)
    name='probe_kernel'; kbegin(a,name); end=a.lab('end')
    a(f"s_cmp_ge_u32 s2, 1\ns_cbranch_scc1 {end}")
    a("s_load_dwordx2 s[54:55], s[0:1], 88\ns_waitcnt lgkmcnt(0)")
    srd(a,SWS,P_WS,ws_end())
    a("v_lshlrev_b32 v1, 11, v0")
    for r,p in ((4,pa),(8,pb)):
        w,i=p[3:].split('.')
        for q in range(4):
            a(f"s_mov_b32 s60, {WS_TRACE+int(w)*256+int(i)*4+q*64*2048}\nbuffer_load_dword v{r+q}, v1, {sr(SWS)}, s60 offen")
    a("s_waitcnt vmcnt(0)\ns_nop 0\nv_readfirstlane_b32 s61, v4\ns_nop 3")
    for r in range(4,12): a(f"v_subrev_u32 v{r}, s61, v{r}")
    for r,p,sd in ((4,pa,62),(8,pb,63)):
        op=p[:3]
        vop={'min':'v_min_i32','max':'v_max_i32','avg':'v_add_u32'}[op]; sop={'min':'s_min_i32','max':'s_max_i32','avg':'s_add_u32'}[op]
        a(f"{vop} v{r}, v{r}, v{r+1}\n{vop} v{r+2}, v{r+2}, v{r+3}\n{vop} v{r}, v{r}, v{r+2}\ns_nop 0")
        a(f"v_readlane_b32 s{sd}, v{r}, 0")
        for l in range(1,64): a(f"v_readlane_b32 s64, v{r}, {l}\ns_nop 0\n{sop} s{sd}, s{sd}, s64")
        a(f"s_mul_i32 s{sd}, s{sd}, {K}")
        if op=='avg': a(f"s_ashr_i32 s{sd}, s{sd}, 8")
    a("s_sub_u32 s62, s63, s62\ns_max_i32 s62, s62, 0\ns_min_i32 s62, s62, 100000")
    a("s_memrealtime s[66:67]\ns_waitcnt lgkmcnt(0)")
    lp=a.lab('spin')
    a(f"{lp}:\ns_memrealtime s[68:69]\ns_waitcnt lgkmcnt(0)\ns_sub_u32 s68, s68, s66\ns_cmp_lt_u32 s68, s62\ns_cbranch_scc1 {lp}")
    a(f"{end}:\ns_endpgm")
    return name

SLOT=49152
L_STAT=3*SLOT; L_RSTD=L_STAT+2048; L_CS=L_RSTD+512
L_Y=3*SLOT; L_RED=32768; LDS=163840
def unit_base(n):
    n%=18
    return (2*SLOT,0,SLOT)[n//6]+(n%6)*8192

S_A=100; S_G=101; S_LOC=93
def tile_map(a):
    a(f"""
    s_and_b32 s60, s2, 7
    s_lshr_b32 s{S_LOC}, s2, 3
    s_and_b32 s{S_A}, s60, 1
    s_lshr_b32 s{S_G}, s60, 1
    s_lshl_b32 s{S_J}, s{S_G}, 2
    s_lshr_b32 s62, s{S_LOC}, 3
    s_add_u32 s{S_J}, s{S_J}, s62
    s_and_b32 s62, s{S_LOC}, 7
    s_lshl_b32 s{S_I}, s{S_A}, 3
    s_add_u32 s{S_I}, s{S_I}, s62
    s_and_b32 s63, s62, 3
    s_lshr_b32 s62, s62, 2
    s_lshl_b32 s62, s62, 3
    s_add_u32 s63, s63, s62
    s_lshl_b32 s62, s{S_A}, 2
    s_add_u32 s63, s63, s62
    s_cmp_ge_u32 s{S_J}, 14
    s_cselect_b32 s{S_I}, s63, s{S_I}
    s_lshl_b32 s60, s60, 2
    s_and_b32 s62, s{S_LOC}, 3
    s_add_u32 s{S_T1}, s60, s62
    s_lshr_b32 s{S_NB}, s{S_LOC}, 2
    """)

def token_row(a,spec,vt,vd,tmp):
    if not spec:
        a(f"v_and_b32 v{vd}, 63, v{vt}\nv_lshlrev_b32 v{vd}, 5, v{vd}\nv_lshrrev_b32 v{tmp}, 6, v{vt}\ns_lshl_b32 s62, s{S_I}, 1\nv_add3_u32 v{vd}, v{vd}, v{tmp}, s62")
    else:
        a(f"v_and_b32 v{vd}, 31, v{vt}\nv_lshlrev_b32 v{vd}, 6, v{vd}\nv_lshrrev_b32 v{tmp}, 5, v{vt}\ns_lshl_b32 s62, s{S_I}, 2\nv_add3_u32 v{vd}, v{vd}, v{tmp}, s62")

def job_ids(a):
    a(f"""
    s_and_b32 s61, s{S_LOC}, 3
    s_lshl_b32 s60, s{S_A}, 1
    s_lshr_b32 s62, s{S_LOC}, 4
    s_add_u32 s60, s60, s62
    s_lshl_b32 s62, s{S_G}, 2
    s_add_u32 s60, s60, s62
    s_bfe_u32 s63, s{S_LOC}, 0x10002
    s_bfe_u32 s69, s{S_LOC}, 0x10003
    """)
def table_touch(a):
    a(f"""
    s_cmp_eq_u32 s69, 1
    s_cselect_b32 s64, s{P_HIM}, s{P_HRE}
    s_cselect_b32 s65, s{P_HIM+1}, s{P_HRE+1}
    s_mov_b32 s66, {512*512*2}
    s_mov_b32 s67, 0x00020000
    s_sub_u32 s60, s60, 14
    s_lshl_b32 s60, s60, 7
    s_lshl_b32 s63, s63, 6
    s_lshl_b32 s61, s61, 4
    s_add_u32 s60, s60, s63
    s_add_u32 s60, s60, s61
    s_add_u32 s60, s60, 1
    s_lshl_b32 s60, s60, 10
    v_lshlrev_b32 v1, 8, v{VL}
    buffer_load_dword v252, v1, s[64:67], s60 offen
    buffer_load_dword v253, v1, s[64:67], s60 offen offset:128
    """)
def stats_colsum(a):
    pfl=CFG.get('pfl','none').replace('none','')
    a(f"""
    s_cmp_eq_u32 s69, 1
    s_cselect_b32 s64, s{P_WU}, s{P_WG}
    s_cselect_b32 s65, s{P_WU+1}, s{P_WG+1}
    s_mov_b32 s66, {512*1792*2}
    s_mov_b32 s67, 0x00020000
    s_lshl_b32 s60, s60, 1
    s_add_u32 s60, s60, s63
    s_lshl_b32 s62, s60, 7
    s_mul_i32 s63, s61, 3584
    s_add_u32 s62, s62, s63
    """)
    for n in range(16):
        a(f"buffer_load_dwordx4 {vr(144+4*n,4)}, v129, s[64:67], s62 offen {pfl}")
        if n<15: a(f"s_add_u32 s62, s62, {32*3584}")
    a(f"""
    v_and_b32 v2, 15, v{VL}
    v_and_b32 v3, 1, v2
    v_lshlrev_b32 v3, 4, v3
    v_mov_b32 v8, 0x3f80
    v_lshlrev_b32 v3, v3, v8
    v_lshrrev_b32 v2, 1, v2
    """)
    for p in range(4):
        a(f"v_cmp_eq_u32 vcc, {p}, v2\ns_nop 1\nv_cndmask_b32 v{132+p}, 0, v3, vcc")
    a(f"""
    s_mul_i32 s61, s61, {3584*4}
    s_mul_i32 s69, s69, {1792*4}
    s_lshl_b32 s60, s60, 8
    s_add_u32 s60, s60, s61
    s_add_u32 s60, s60, s69
    s_add_u32 s68, s60, {WS_CS}
    v_and_b32 v2, 7, v{VL}
    v_lshlrev_b32 v2, 5, v2
    v_and_b32 v3, 16, v{VL}
    v_add_u32 v128, v2, v3
    """)
def stats_colsum2(a):
    for n in range(16):
        a(f"s_waitcnt vmcnt({15-n})")
        a(f"{MF} v[136:139], v[132:135], {vr(144+4*n,4)}, {'0' if n==0 else 'v[136:139]'}")
    a("s_nop 7\ns_nop 1")
    for j in range(4):
        a(f"v_add_f32_dpp v{140+j}, v{136+j}, v{136+j} row_ror:8 row_mask:0xf bank_mask:0xf")
    a(f"s_mov_b64 exec, 0x00ff00ff")
    a(f"buffer_store_dwordx4 v[140:143], v128, {sr(SWS)}, s68 offen sc1")
    a("s_mov_b64 exec, -1")

def stats_rows(a):
    a(f"""
    s_sub_u32 s60, s{S_WAVE}, 1
    s_and_b32 s62, s{S_LOC}, 7
    s_lshr_b32 s61, s{S_LOC}, 3
    s_and_b32 s63, s{S_G}, 1
    s_lshl_b32 s63, s63, 2
    s_add_u32 s61, s61, s63
    s_lshl_b32 s63, s{S_A}, 3
    s_add_u32 s61, s61, s63
    s_lshr_b32 s63, s{S_G}, 1
    s_lshl_b32 s63, s63, 4
    s_add_u32 s61, s61, s63
    s_lshl_b32 s63, s61, 1
    s_add_u32 s63, s63, s60
    s_lshl_b32 s64, s62, 8
    s_add_u32 s63, s63, s64
    s_lshl_b32 s63, s63, 10
    """)
    for p in range(4):
        a(f"buffer_load_dwordx4 {vr(144+4*p,4)}, v130, {sr(SX)}, s63 offen offset:{256*p}")
    a(f"""
    s_lshl_b32 s61, s61, 9
    s_lshl_b32 s62, s62, 6
    s_add_u32 s61, s61, s62
    s_lshl_b32 s60, s60, 3
    s_add_u32 s61, s61, s60
    s_add_u32 s68, s61, {WS_ST}
    v_lshrrev_b32 v1, 4, v{VL}
    v_lshlrev_b32 v128, 4, v1
    """)
def stats_rows2(a):
    a(f"""
    v_mov_b32 v131, 0x3f803f80
    v_mov_b32 v132, 0
    v_mov_b32 v133, 0
    v_mov_b32 v134, 0x00003f80
    v_mov_b32 v135, 0x3f800000
    v_mov_b32 v136, 0
    v_mov_b32 v137, 0
    """)
    for p in range(4):
        a(f"s_waitcnt vmcnt({3-p})")
        for r in range(4):
            a(f"v_dot2c_f32_bf16 v{132+(r&1)}, v{144+4*p+r}, v131")
    a("s_nop 2\nv_add_f32 v132, v132, v133")
    def red(v):
        for s in (8,4,2,1):
            a(f"s_nop 1\nv_add_f32_dpp v{v}, v{v}, v{v} row_ror:{s} row_mask:0xf bank_mask:0xf")
    red(132)
    a(f"v_mul_f32 v132, {hx(-1.0/512)}, v132")
    for p in range(4):
        for r in range(4):
            a(f"v_dot2_f32_bf16 v{160+2*r}, v{144+4*p+r}, v134, v132\nv_dot2_f32_bf16 v{161+2*r}, v{144+4*p+r}, v135, v132")
        for r in range(8):
            a(f"v_fmac_f32 v{136+(r&1)}, v{160+r}, v{160+r}")
    a("v_add_f32 v136, v136, v137")
    red(136)
    a(f"""
    v_mul_f32 v136, {hx(1.0/512)}, v136
    v_cvt_pk_bf16_f32 v136, v136, v132
    v_and_b32 v138, 0xffff0000, v136
    v_lshlrev_b32 v136, 16, v136
    v_add_f32 v136, {hx(1e-5)}, v136
    v_cvt_pk_bf16_f32 v136, v136, v136
    v_lshlrev_b32 v136, 16, v136
    v_sqrt_f32 v136, v136
    s_nop 0
    v_cvt_pk_bf16_f32 v136, v136, v136
    v_lshlrev_b32 v139, 16, v136
    s_mov_b32 exec_lo, 0x00010001
    s_mov_b32 exec_hi, 0x00010001
    buffer_store_dwordx2 v[138:139], v128, {sr(SWS)}, s68 offen sc1
    s_mov_b64 exec, -1
    """)

def flag_addr(a,sd):
    a(f"s_lshl_b32 s{sd}, s{S_I}, 4\ns_add_u32 s{sd}, s{sd}, s{S_J}\ns_lshl_b32 s{sd}, s{sd}, 7\ns_add_u32 s{sd}, s{sd}, {WS_FL}")

XA,XB,WA,WB=128,160,192,208
AX0,AX1,AW0,AW1=224,225,226,227
FC,FS,FN=228,236,244

def compute1_setup(a,spec):
    a(f"""
    v_and_b32 v1, 15, v{VL}
    v_lshrrev_b32 v2, 4, v{VL}
    v_lshrrev_b32 v3, 1, v1
    v_xor_b32 v3, v3, v2
    v_lshlrev_b32 v3, 4, v3
    v_lshl_add_u32 v{AX0}, v1, 7, v3
    v_xor_b32 v{AX1}, 64, v{AX0}
    s_mov_b32 s73, {SLOT}
    """)
    if spec:
        a(f"s_lshl_b32 s62, s{S_WAVE}, 12\nv_add_u32 v{AW0}, s62, v{AX0}\nv_add_u32 v{AW1}, s62, v{AX1}")
    else:
        a(f"""
        v_lshrrev_b32 v3, 2, v1
        v_and_b32 v4, 3, v1
        v_and_b32 v5, 1, v2
        v_lshl_or_b32 v5, v5, 2, v3
        s_lshl_b32 s62, s{S_WAVE}, 1
        v_xor_b32 v5, s62, v5
        v_lshlrev_b32 v5, 5, v5
        v_lshl_add_u32 v5, v4, 3, v5
        v_lshl_add_u32 v3, v2, 3, v3
        v_lshl_add_u32 v{AW0}, v3, 8, v5
        v_xor_b32 v{AW1}, 32, v{AW0}
        """)

def dft32_consts(a):
    a(f"v_and_b32 v1, 15, v{VL}\nv_lshrrev_b32 v2, 4, v{VL}\nv_lshlrev_b32 v2, 2, v2\nv_cvt_f32_u32 v2, v2\nv_cvt_f32_u32 v1, v1")
    for tb in range(2):
        a(f"v_add_f32 v3, {hx(16.0*tb)}, v1\nv_mul_f32 v3, {hx(1/32.)}, v3")
        for j in range(8):
            a(f"v_add_f32 v4, {hx(16.0*(j>>2)+(j&3))}, v2\nv_mul_f32 v4, v4, v3\nv_cos_f32 v{8+j}, v4\nv_sin_f32 v{16+j}, v4")
        a("s_nop 0")
        for p in range(4):
            a(f"v_cvt_pk_bf16_f32 v{FC+4*tb+p}, v{8+2*p}, v{9+2*p}\nv_cvt_pk_bf16_f32 v{FS+4*tb+p}, v{16+2*p}, v{17+2*p}")
            a(f"v_xor_b32 v{FN+4*tb+p}, 0x80008000, v{FS+4*tb+p}")

def zero_acc(a):
    for r in range(0,128,2): a(f"v_mov_b64 v[{r}:{r+1}], 0")

def mainloop1(a,spec):
    def reads(k,xb,wb):
        xs=[f"ds_read_b128 {vr(xb+4*t,4)}, v{AX0+k} offset:{t*2048}" for t in range(8)]
        ws=[]
        for g in range(4):
            if spec:
                ws.append(f"ds_read_b128 {vr(wb+4*g,4)}, v{AW0+k} offset:{16384+(g>>1)*16384+(g&1)*2048}")
            else:
                for rho in range(2):
                    ws.append(f"ds_read_b64_tr_b16 {vr(wb+4*g+2*rho,2)}, v{AW0+(g&1)} offset:{16384+(g>>1)*16384+k*8192+rho*1024}")
        return ws+xs
    def mfmas(xb,wb):
        out=[]
        for t in range(8):
            for gg in range(4):
                g=gg if t%2==0 else 3-gg
                d=(t*4+g)*4
                x=vr(xb+4*t,4); w=vr(wb+4*g,4)
                p,q=(x,w) if spec else (w,x)
                out.append(f"{MF} {vr(d,4)}, {p}, {q}, {vr(d,4)}")
        return out
    ls(a,1)
    a("s_barrier")
    ls(a,2)
    for l in reads(0,XA,WA): a(l)
    a(f"s_mov_b32 s70, 0\ns_mov_b32 s72, 8")
    loop=a.lab('loop')
    a(f".p2align 6\n{loop}:")
    a("s_waitcnt lgkmcnt(0)")
    r=reads(1,XB,WB)
    extra={17:f"s_add_u32 s70, s70, 1\ns_cmp_eq_u32 s70, 3",18:f"s_cselect_b32 s71, {-2*SLOT}, s73\ns_cselect_b32 s70, 0, s70",
           20:f"v_add_u32 v{AX0}, s71, v{AX0}",21:f"v_add_u32 v{AX1}, s71, v{AX1}",22:f"v_add_u32 v{AW0}, s71, v{AW0}",23:f"v_add_u32 v{AW1}, s71, v{AW1}"}
    for i,m in enumerate(mfmas(XA,WA)):
        a(m)
        if i<len(r): a(r[i])
        if i in extra: a(extra[i])
    a("s_waitcnt vmcnt(0) lgkmcnt(0)\ns_barrier")
    r=reads(0,XA,WA)
    for i,m in enumerate(mfmas(XB,WB)):
        a(m)
        if i<len(r): a(r[i])
        if i==20: a("s_sub_u32 s72, s72, 1\ns_cmp_lg_u32 s72, 0")
    a(f"s_cbranch_scc1 {loop}")

def epilogue_ffn(a):
    ST=128
    a(f"""
    s_waitcnt lgkmcnt(0)
    v_and_b32 v200, 15, v{VL}
    v_lshlrev_b32 v201, 4, v200
    v_add_u32 v201, {L_STAT}, v201
    v_bfe_u32 v202, v{VL}, 4, 1
    v_lshl_add_u32 v200, v202, 4, v200
    v_lshrrev_b32 v202, 5, v{VL}
    v_lshl_add_u32 v200, v202, 7, v200
    s_lshl_b32 s62, s{S_WAVE}, 5
    v_add_u32 v200, s62, v200
    v_lshlrev_b32 v200, 2, v200
    v_add_u32 v200, {L_CS}, v200
    ds_read_b32 v203, v200
    """)
    for t in range(8): a(f"ds_read_b128 {vr(ST+4*t,4)}, v201 offset:{256*t}")
    a(f"""
    s_mul_i32 s62, s{S_I}, {8*56}
    s_lshl_b32 s63, s{S_J}, 2
    s_add_u32 s62, s62, s63
    s_add_u32 s62, s62, s{S_WAVE}
    s_lshl_b32 s62, s62, 10
    v_lshlrev_b32 v204, 4, v{VL}
    s_waitcnt lgkmcnt(0)
    """)
    for t in range(8):
        a(f"v_mfma_f32_16x16x1_4b_f32 {vr(16*t,16)}, v203, v{ST+4*t}, {vr(16*t,16)}")
    a("s_nop 3")
    T=160
    for t in range(8):
        b=16*t; s=ST+4*t; o=208+4*(t&1)
        for p in range(4):
            a(f"v_pk_mul_f32 {vr(T+2*p,2)}, {vr(b+2*p,2)}, {vr(s,2)} op_sel:[0,1] op_sel_hi:[1,1]")
        for p in range(8): a(f"v_exp_f32 v{T+p}, v{T+p}")
        for p in range(4):
            a(f"v_pk_mul_f32 {vr(b+2*p,2)}, {vr(b+2*p,2)}, {vr(b+8+2*p,2)}")
        for p in range(4):
            a(f"v_pk_fma_f32 {vr(T+2*p,2)}, {vr(T+2*p,2)}, {vr(s+2,2)}, {vr(s+2,2)} op_sel:[0,0,0] op_sel_hi:[1,0,0]")
        for p in range(8): a(f"v_rcp_f32 v{T+p}, v{T+p}")
        for p in range(4):
            a(f"v_pk_mul_f32 {vr(b+2*p,2)}, {vr(b+2*p,2)}, {vr(T+2*p,2)}")
        for p in range(4):
            a(f"v_cvt_pk_bf16_f32 v{o+p}, v{b+2*p}, v{b+2*p+1}")
        a(f"buffer_store_dwordx4 {vr(o,4)}, v204, {sr(SWS)}, s62 offen sc1")
        if t<7: a(f"s_add_u32 s62, s62, {56*1024}")

def epilogue_spec(a):
    R=128; Z=160
    a(f"s_waitcnt lgkmcnt(0)\nv_lshrrev_b32 v252, 4, v{VL}\nv_lshlrev_b32 v253, 4, v252\nv_add_u32 v253, {L_RSTD}, v253")
    for t in range(8): a(f"ds_read_b128 {vr(R+4*t,4)}, v253 offset:{64*t}")
    a(f"""
    v_and_b32 v253, 15, v{VL}
    v_lshlrev_b32 v253, 4, v253
    v_lshl_add_u32 v253, v252, 18, v253
    s_sub_u32 s62, s{S_J}, 14
    s_lshl_b32 s62, s62, 11
    s_lshl_b32 s63, s{S_WAVE}, 9
    s_add_u32 s62, s62, s63
    s_lshl_b32 s63, s{S_I}, 12
    s_add_u32 s62, s62, s63
    s_add_u32 s62, s62, {WS_G}
    s_waitcnt lgkmcnt(0)
    """)
    for t in range(8):
        for g in range(4):
            d=(t*4+g)*4
            for p in range(2):
                a(f"v_pk_mul_f32 {vr(d+2*p,2)}, {vr(d+2*p,2)}, {vr(R+4*t+2*p,2)}")
        for g in range(4):
            d=(t*4+g)*4
            z=Z+((t>>1)*4+g)*4+(t&1)*2
            for p in range(2):
                a(f"v_cvt_pk_bf16_f32 v{z+p}, v{d+2*p}, v{d+2*p+1}")
    a("s_nop 1")
    def acc(tb,eb,b,ri): return (((tb*2+eb)*4+b)*2+ri)*4
    def group(tb,eb):
        out=[]
        for b in range(4):
            zr=vr(Z+(b*4+eb)*4,4); zi=vr(Z+(b*4+2+eb)*4,4)
            out+=[f"{MF} {vr(acc(tb,eb,b,0),4)}, {vr(FC+4*tb,4)}, {zr}, 0",
                  f"{MF} {vr(acc(tb,eb,b,1),4)}, {vr(FC+4*tb,4)}, {zi}, 0",
                  f"{MF} {vr(acc(tb,eb,b,0),4)}, {vr(FS+4*tb,4)}, {zi}, {vr(acc(tb,eb,b,0),4)}",
                  f"{MF} {vr(acc(tb,eb,b,1),4)}, {vr(FN+4*tb,4)}, {zr}, {vr(acc(tb,eb,b,1),4)}"]
        return out
    def pack(tb,eb,n0):
        out=[]
        for j in range(4):
            o=128+4*((n0+j)%8)
            for b in range(4):
                out.append(f"v_cvt_pk_bf16_f32 v{o+b}, v{acc(tb,eb,b,0)+j}, v{acc(tb,eb,b,1)+j}")
            out.append(f"s_add_u32 s63, s62, {(16*tb+j)*65536}\nbuffer_store_dwordx4 {vr(o,4)}, v253, {sr(SWS)}, s63 offen offset:{eb*256} sc1")
        return out
    gs=[(0,0),(0,1),(1,0),(1,1)]
    for gi,(tb,eb) in enumerate(gs):
        m=group(tb,eb)
        pk=pack(*gs[gi-1],4*(gi-1)) if gi>0 else []
        for i,x in enumerate(m):
            a(x)
            if i>=8 and pk:
                for _ in range(3):
                    if pk: a(pk.pop(0))
        for x in pk: a(x)
    a("s_nop 7")
    for x in pack(1,1,12): a(x)

def stage_rot(a,s):
    r=CFG.get('rot2',2)
    if r==2:
        a(f"s_and_b32 s{s}, s{S_T1}, 3\ns_lshl_b32 s{s}, s{s}, 1\ns_add_u32 s{s}, s{s}, s{S_NB}\ns_sub_u32 s62, s{s}, 7\ns_cmp_ge_u32 s{s}, 7\ns_cselect_b32 s{s}, s62, s{s}")
    elif r==1: a(f"s_cmp_eq_u32 s{S_NB}, 7\ns_cselect_b32 s{s}, 0, s{S_NB}")
    else: a(f"s_mov_b32 s{s}, 0")

def compute2(a):
    PF=CFG.get('pf2',8)
    ACC=0; WF=32; HF=80; XR=176; AW=200; AH=204
    assert HF+8*PF<=XR
    ls(a,4)
    flag_addr(a,64)
    a(f"""
    s_lshl_b32 s65, s{S_WAVE}, 2
    s_add_u32 s64, s64, s65
    v_mov_b32 v1, 1
    s_lshr_b32 s60, s{S_WAVE}, 1
    s_and_b32 s61, s{S_WAVE}, 1
    """)
    srd(a,SOUT,P_OUT,2048*512*2)
    a(f"""
    v_and_b32 v6, 15, v{VL}
    v_lshrrev_b32 v2, 4, v{VL}
    s_lshl_b32 s62, s61, 10
    s_add_u32 s62, s62, s{S_T1}
    s_lshl_b32 s62, s62, 10
    s_lshl_b32 s63, s{S_NB}, 7
    s_add_u32 s62, s62, s63
    s_lshl_b32 s63, s60, 6
    s_add_u32 s77, s62, s63
    s_add_u32 s78, s77, {16*32*1024}
    v_lshlrev_b32 v3, 15, v6
    v_lshl_add_u32 v206, v2, 3, v3
    v_and_b32 v4, 1, v2
    v_lshlrev_b32 v4, 5, v4
    v_lshrrev_b32 v5, 1, v2
    v_lshl_add_u32 v4, v5, 4, v4
    v_add_u32 v207, v3, v4
    """)
    a(f"""
    s_lshl_b32 s62, s{S_T1}, 2
    s_lshl_b32 s63, s61, 1
    s_add_u32 s62, s62, s63
    s_mul_i32 s62, s62, 56
    s_mul_i32 s63, s60, 28
    s_add_u32 s62, s62, s63
    s_lshl_b32 s62, s62, 10
    v_lshlrev_b32 v7, 4, v{VL}
    v_add_u32 v{AH}, s62, v7
    v_add_u32 v{AH+1}, {56*1024}, v{AH}
    """)
    stage_rot(a,76)
    for sg in range(7):
        a(f"s_lshl_b32 s{80+sg}, s76, 12\ns_add_u32 s76, s76, 1\ns_cmp_eq_u32 s76, 7\ns_cselect_b32 s76, 0, s76")
    a(f"""
    v_lshrrev_b32 v3, 2, v6
    v_and_b32 v4, 3, v6
    v_lshl_add_u32 v3, v2, 2, v3
    v_bfe_u32 v5, v3, 1, 2
    s_lshl_b32 s62, s60, 1
    v_xor_b32 v5, s62, v5
    v_lshlrev_b32 v5, 5, v5
    v_lshl_add_u32 v5, v4, 3, v5
    v_lshl_add_u32 v5, v3, 7, v5
    s_lshl_b32 s62, s60, 12
    v_add_u32 v{AW}, s62, v5
    """)
    for eb in range(1,4): a(f"v_xor_b32 v{AW+eb}, {eb<<5}, v{AW}")
    for eb in range(4): a(f"v_add_u32 v{210+eb}, {SLOT}, v{AW+eb}\nv_add_u32 v{214+eb}, {2*SLOT}, v{AW+eb}")
    a(f"""
    s_mul_i32 s62, s60, 28
    v_min_u32 v3, 27, v{VL}
    v_add_u32 v3, s62, v3
    v_lshrrev_b32 v4, 2, v3
    v_and_b32 v3, 3, v3
    v_lshlrev_b32 v3, 2, v3
    v_lshl_add_u32 v208, v4, 7, v3
    s_lshr_b32 s62, s{S_T1}, 1
    s_lshl_b32 s62, s62, 11
    s_add_u32 s66, s62, {WS_FL}
    {'s_barrier' if CFG.get('wrb') else ''}
    s_waitcnt vmcnt(0)
    s_mov_b64 exec, 1
    buffer_store_dword v1, off, {sr(SWS)}, s64 sc1
    s_mov_b64 exec, -1
    """)
    ls(a,5)
    for t in range(2):
        for eb in range(2):
            a(f"buffer_load_dwordx2 {vr(XR+16+(t*2+eb)*2,2)}, v206, {sr(SX)}, s{77+t} offen offset:{32*eb}")
    def wreads(n):
        b=WF+16*(n%3); u=unit_base(n); k=u//SLOT; base=(AW,210,214)[k]
        return [f"ds_read_b64_tr_b16 {vr(b+4*eb+2*rho,2)}, v{base+eb} offset:{u-k*SLOT+rho*2048}" for eb in range(4) for rho in range(2)]
    if not CFG.get('wrb'): a("s_barrier")
    for l in wreads(0)+wreads(1): a(l)
    ls(a,6)
    lp=a.lab('poll'); ok=a.lab('ok')
    a(f"s_mov_b32 s67, {SPIN}\n{lp}:")
    a(f"buffer_load_dword v3, v208, {sr(SWS)}, s66 offen sc1\ns_waitcnt vmcnt(0)\nv_cmp_ne_u32 vcc, 1, v3\ns_cbranch_vccz {ok}")
    a(f"s_sub_u32 s67, s67, 1\ns_cmp_lg_u32 s67, 0\ns_cbranch_scc1 {lp}\n{ok}:")
    ls(a,18)
    hfl=CFG.get('hfl','sc1').replace('none','')
    def hload(n):
        sg,k=divmod(n,4); b=HF+8*(n%PF)
        return [f"buffer_load_dwordx4 {vr(b+4*t,4)}, v{AH+t}, {sr(SWS)}, s{80+sg} offen offset:{k*1024} {hfl}" for t in range(2)]
    for n in range(PF):
        for l in hload(n): a(l)
    ls(a,7)
    for i in range(8):
        a(f"v_lshlrev_b32 v{XR+2*i}, 16, v{XR+16+i}\nv_and_b32 v{XR+2*i+1}, 0xffff0000, v{XR+16+i}")
    for n in range(28):
        outstanding=2*(min(28,n+PF)-(n+1))
        a(f"s_waitcnt vmcnt({outstanding}) lgkmcnt({8 if n<27 else 0})")
        if n==0: ls(a,11)
        if n in (4,9,16):
            q={4:12,9:14,16:16}[n]
            if CFG.get('ct'): ls(a,q)
            a("s_barrier")
            if CFG.get('ct'): ls(a,q+1)
        r=wreads(n+2) if n<26 else []
        hb=HF+8*(n%PF); wb=WF+16*(n%3)
        hl=hload(n+PF) if n+PF<28 else []
        i=0
        for t in range(2):
            for ee in range(4):
                eb=ee if t==0 else 3-ee
                d=ACC+(t*4+eb)*4
                a(f"{MF} {vr(d,4)}, {vr(wb+4*eb,4)}, {vr(hb+4*t,4)}, {'0' if n==0 else vr(d,4)}")
                if i<len(r): a(r[i])
                i+=1
            if hl: a(hl[t])
    ls(a,8)
    a(f"""
    v_lshlrev_b32 v40, 4, v{VL}
    s_lshl_b32 s62, s{S_WAVE}, 12
    s_add_u32 s62, s62, {L_RED}
    v_add_u32 v41, s62, v40
    v_xor_b32 v42, 8192, v41
    s_lshl_b32 s62, s60, 13
    s_lshl_b32 s63, s61, 11
    s_add_u32 s62, s62, s63
    s_add_u32 s62, s62, {L_Y}
    v_add_u32 v43, s62, v40
    """)
    for t in range(2):
        for eb in range(2):
            a(f"ds_write_b128 v41, {vr(ACC+(t*4+2+eb)*4,4)} offset:{(t*2+eb)*1024}")
    a("s_waitcnt lgkmcnt(0)\ns_barrier")
    RD=64; Y=80; T=96
    for t in range(2):
        for eb in range(2):
            a(f"ds_read_b128 {vr(RD+(t*2+eb)*4,4)}, v42 offset:{(t*2+eb)*1024}")
        for eb in range(2):
            a(f"ds_read_b128 {vr(Y+(t*2+eb)*4,4)}, v43 offset:{eb*4096+t*1024}")
    a(f"s_mov_b32 s64, {hx(-LOG2E)}\ns_mov_b32 s65, s64")
    ofl=CFG.get('ofl','none').replace('none','').replace('+',' ')
    for t in range(2):
        b=ACC+t*16
        a(f"s_waitcnt lgkmcnt({6-4*t})")
        for p in range(4): a(f"v_pk_add_f32 {vr(b+2*p,2)}, {vr(b+2*p,2)}, {vr(RD+t*8+2*p,2)}")
        for p in range(4): a(f"v_pk_mul_f32 {vr(T+2*p,2)}, {vr(b+2*p,2)}, s[64:65]")
        for p in range(8): a(f"v_exp_f32 v{T+p}, v{T+p}")
        a(f"s_waitcnt lgkmcnt({4-4*t})")
        for p in range(4): a(f"v_pk_mul_f32 {vr(b+2*p,2)}, {vr(b+2*p,2)}, {vr(Y+t*8+2*p,2)}")
        for p in range(4): a(f"v_pk_add_f32 {vr(T+2*p,2)}, {vr(T+2*p,2)}, 1.0 op_sel_hi:[1,0]")
        for p in range(8): a(f"v_rcp_f32 v{T+p}, v{T+p}")
        for p in range(4): a(f"v_pk_fma_f32 {vr(b+2*p,2)}, {vr(b+2*p,2)}, {vr(T+2*p,2)}, {vr(XR+t*8+2*p,2)}")
        o=112+4*t
        for p in range(4): a(f"v_cvt_pk_bf16_f32 v{o+p}, v{b+2*p}, v{b+2*p+1}")
        a(f"s_nop 1\nv_permlane16_swap_b32 v{o}, v{o+2}\nv_permlane16_swap_b32 v{o+1}, v{o+3}")
        a(f"buffer_store_dwordx4 {vr(o,4)}, v207, {sr(SOUT)}, s{77+t} offen {ofl}")
    ls(a,9)
    if CFG.get('trace') or CFG.get('probe'):
        a("s_waitcnt vmcnt(0)"); ls(a,10)
    ls_dump(a)

def loader(a):
    vm=VM()
    CB=64; WR=128; GA=208; YA=224
    spec=a.lab('lspec'); join=a.lab('ljoin')
    a(f"s_sub_u32 s74, s{S_WAVE}, 4")
    a(f"v_lshrrev_b32 v1, 3, v{VL}\nv_and_b32 v2, 7, v{VL}\ns_lshl_b32 s75, s74, 5")
    a(f"s_cmp_ge_u32 s{S_J}, 14\ns_cbranch_scc1 {spec}")
    for sp in (False,True):
        if sp: a(f"{spec}:")
        for p in range(4):
            a(f"v_add3_u32 v3, v1, s75, {8*p}")
            a(f"v_bfe_u32 v4, v3, 1, 3\nv_xor_b32 v4, v4, v2\nv_lshlrev_b32 v4, 4, v4")
            token_row(a,sp,3,5,6)
            a(f"v_lshl_add_u32 v{10+p}, v5, 10, v4")
            if sp:
                a(f"s_sub_u32 s62, s{S_J}, 14\ns_lshl_b32 s62, s62, 7\ns_add_u32 s62, s62, 1\nv_add_u32 v5, s62, v3\nv_lshl_add_u32 v{14+p}, v5, 10, v4")
        if not sp:
            a(f"v_lshrrev_b32 v3, 4, v{VL}\nv_and_b32 v4, 15, v{VL}\ns_lshl_b32 s62, s74, 4\ns_lshl_b32 s63, s{S_J}, 8")
            for p in range(4):
                a(f"v_or_b32 v5, {(p>>1)<<2}, v3\nv_lshlrev_b32 v5, 1, v5\nv_xor_b32 v5, v5, v4\nv_lshl_add_u32 v5, v5, 4, s63")
                a(f"v_add3_u32 v6, v3, s62, {4*p}\nv_mul_u32_u24 v6, 3584, v6\nv_add_u32 v{14+p}, v5, v6")
            a("s_waitcnt lgkmcnt(0)")
            srd(a,SB0,P_WG,512*1792*2); srd(a,SB1,P_WU,512*1792*2)
            a(f"s_mov_b32 s72, {64*3584}\ns_branch {join}")
        else:
            a("s_waitcnt lgkmcnt(0)")
            srd(a,SB0,P_HRE,512*512*2); srd(a,SB1,P_HIM,512*512*2)
            a("s_mov_b32 s72, 128")
    a(f"{join}:")
    srd(a,SX,P_X,2048*512*2)
    ls_first(a)
    a("s_lshl_b32 s73, s74, 12")
    if CFG.get('rot'): a(f"s_add_u32 s76, s{S_I}, s{S_J}\ns_and_b32 s76, s76, 7")
    else: a("s_mov_b32 s76, 0")

    side=[]
    def S(s):
        for l in s.split('\n'):
            if l.strip(): side.append(l.strip())
    tmp=Asm()
    srd(tmp,SWS,P_WS,ws_end()); srd(tmp,SDBG,P_DBG,256); srd(tmp,SWD,P_WD,1792*512*2)
    tmp(f"""
    s_and_b32 s79, s2, 1
    s_lshl_b32 s79, s79, 7
    s_cmp_eq_u32 s74, 0
    s_cselect_b32 s79, s79, 0x1000
    v_mov_b32 v9, 1
    v_mov_b32 v52, s79
    v_and_b32 v8, 1, v{VL}
    v_lshlrev_b32 v8, 7, v8
    """)
    tmp(f"""
    v_lshrrev_b32 v5, 3, v{VL}
    v_and_b32 v6, 7, v{VL}
    v_lshrrev_b32 v7, 4, v{VL}
    v_lshlrev_b32 v7, 1, v7
    v_xor_b32 v6, v6, v7
    v_lshlrev_b32 v6, 4, v6
    v_lshl_add_u32 v6, v5, 10, v6
    s_lshl_b32 s60, s{S_NB}, 7
    s_lshl_b32 s61, s74, 13
    s_add_u32 s60, s60, s61
    v_add_u32 v18, s60, v6
    s_lshl_b32 s92, s74, 10
    """)
    stage_rot(tmp,60)
    for sg in range(7):
        tmp(f"s_lshl_b32 s{80+sg}, s60, 17\ns_add_u32 s60, s60, 1\ns_cmp_eq_u32 s60, 7\ns_cselect_b32 s60, 0, s60")
    tmp(f"""
    v_and_b32 v1, 15, v{VL}
    v_lshrrev_b32 v2, 4, v{VL}
    s_lshl_b32 s60, s{S_NB}, 6
    s_lshl_b32 s61, s74, 4
    s_add_u32 s60, s60, s61
    v_add_u32 v3, s60, v1
    v_sub_u32 v4, 512, v3
    s_sub_u32 s61, 32, s{S_T1}
    s_and_b32 s61, s61, 31
    s_mov_b32 s63, {hx(1/2048.)}
    s_mov_b32 s64, {hx(-1/2048.)}
    s_cmp_ge_u32 s{S_NB}, 4 | s_cselect_b32 s61, s61, s{S_T1} | s_cselect_b64 vcc, -1, 0 | s_cselect_b32 s90, s64, s63
    v_cndmask_b32 v4, v3, v4, vcc
    v_subrev_u32 v4, 1, v4
    v_lshlrev_b32 v4, 4, v4
    v_lshl_add_u32 v4, v2, 12, v4
    v_cmp_eq_u32 vcc, 0, v3
    v_mov_b32 v5, {OOB}
    s_lshl_b32 s61, s61, 16
    v_cndmask_b32 v19, v4, v5, vcc
    s_add_u32 s91, s61, {WS_G}
    v_lshlrev_b32 v2, 2, v2
    v_cvt_f32_u32 v2, v2
    """)
    for tb in range(4):
        tmp(f"v_add_u32 v3, {16*tb}, v1\nv_lshlrev_b32 v3, 5, v3\nv_add_u32 v3, s{S_T1}, v3\nv_cvt_f32_u32 v3, v3\nv_mul_f32 v3, s90, v3")
        for k in range(4):
            tmp(f"v_add_f32 v40, {hx(16.0*k)}, v2\nv_mul_f32 v40, v40, v3\nv_add_f32 v41, v40, v3\nv_add_f32 v42, v41, v3\nv_add_f32 v43, v42, v3")
            for b in range(4): tmp(f"v_cos_f32 v{44+b}, v{40+b}\nv_sin_f32 v{48+b}, v{40+b}")
            for b in range(4): tmp(f"v_cvt_pk_bf16_f32 v{CB+(tb*4+k)*4+b}, v{44+b}, v{48+b}")
    lines=[l.strip() for l in tmp.l]
    i=0
    while i<len(lines):
        l=lines[i]
        if l.startswith('s_cmp') and '|' not in l:
            side.append(l+'\n'+lines[i+1]); i+=2
        else:
            side.append(l.replace(' | ','\n')); i+=1
    def feed(n):
        for _ in range(n):
            if side: a(side.pop(0))

    def dma(m0expr,vaddr,srdn,soff,tag,nfeed):
        a(f"s_add_u32 m0, {m0expr}\ns_nop 0\nbuffer_load_dwordx4 v{vaddr}, {sr(srdn)}, {soff} offen lds"); vm.op(tag)
        feed(nfeed)
    def issue(c,lo=0,hi=4,nfeed=0):
        slot=c%3
        if lo==0: a("s_lshl_b32 s70, s76, 7\ns_mul_i32 s71, s76, s72\ns_add_u32 s76, s76, 1\ns_and_b32 s76, s76, 7")
        for p in range(lo,hi):
            dma(f"s73, {slot*SLOT+p*1024}",10+p,SX,"s70",f"c{c}",nfeed)
            dma(f"s73, {slot*SLOT+16384+p*1024}",14+p,SB0,"s71",f"c{c}",nfeed)
            dma(f"s73, {slot*SLOT+32768+p*1024}",14+p,SB1,"s71",f"c{c}",nfeed)
    def wd_soff(n,kh):
        sg,k=divmod(n,4)
        a(f"s_add_u32 s71, s{80+sg}, {(kh*896+32*k)*1024}")
    def wd_dma(n):
        for kh in range(2):
            a(f"s_add_u32 m0, s92, {unit_base(n)+kh*4096}"); wd_soff(n,kh)
            a(f"buffer_load_dwordx4 v18, {sr(SWD)}, s71 offen lds"); vm.op('wd')
    def wd_reg(n):
        for kh in range(2):
            wd_soff(n,kh)
            a(f"buffer_load_dwordx4 {vr(WR+((n-18)*2+kh)*4,4)}, v18, {sr(SWD)}, s71 offen"); vm.op('wr')
    def bar(c,*tags):
        a(f"s_waitcnt vmcnt({vm.need(*tags)})")
        if CFG.get('lt',1) or c in (0,1): ls(a,2+2*c)
        a("s_barrier")
        if CFG.get('lt',1) or c in (0,1): ls(a,3+2*c)

    wr=list(range(18,28))
    sched=[int(c) for c in str(CFG.get('wrs','0002222')).zfill(7)]
    def wregs(rnd):
        for _ in range(sched[rnd-1]):
            if wr: wd_reg(wr.pop(0))
    def spf(rnd):
        if not CFG.get('spf',1): return
        if rnd in (1,2):
            for q in range(14): a(f"s_load_dword s95, s[64:65], {((rnd-1)*14+q)*64}")
        if rnd in (3,4):
            for q in range(14): a(f"s_load_dword s95, s[66:67], {((rnd-3)*7+q//2)*1024+(q&1)*64}")
    feed(CFG.get('ldelay',40))
    ls(a,1)
    issue(0,0,3,0); issue(0,3,4,30); issue(1,0,2,30)
    feed(len(side))
    a(f"""
    s_mul_i32 s60, s2, 7168
    s_mul_i32 s61, s74, 1792
    s_add_u32 s60, s60, s61
    s_add_u32 s64, s{P_WD}, s60
    s_addc_u32 s65, s{P_WD+1}, 0
    s_mul_i32 s60, s{S_LOC}, {56*1024}
    s_mul_i32 s61, s74, {14*1024}
    s_add_u32 s60, s60, s61
    s_add_u32 s60, s60, 384
    s_add_u32 s66, s{P_WD}, s60
    s_addc_u32 s67, s{P_WD+1}, 0
    """)
    sp2=a.lab('gspec'); j2=a.lab('gjoin')
    a(f"s_cmp_ge_u32 s{S_J}, 14\ns_cbranch_scc1 {sp2}")
    for sp in (False,True):
        if sp: a(f"{sp2}:")
        for h in range(2):
            a(f"v_add_u32 v3, {64*h}, v{VL}")
            token_row(a,sp,3,20+h,6)
        if not sp: a(f"s_branch {j2}")
    a(f"{j2}:")
    for h in range(2):
        a(f"v_bfe_u32 v6, v{20+h}, 1, 5\nv_lshlrev_b32 v6, 6, v6\nv_lshrrev_b32 v7, 6, v{20+h}\nv_lshl_add_u32 v6, v7, 1, v6\nv_and_b32 v7, 1, v{20+h}\nv_add_u32 v6, v6, v7\nv_lshlrev_b32 v{20+h}, 3, v6")
    a(f"""
    s_mov_b32 s87, {WS_ST}
    v_and_b32 v5, 31, v{VL}
    v_lshlrev_b32 v5, 4, v5
    v_lshrrev_b32 v6, 5, v{VL}
    v_mul_u32_u24 v6, {1792*4}, v6
    v_add_u32 v22, v5, v6
    s_lshl_b32 s88, s{S_J}, 9
    s_add_u32 s88, s88, {WS_CS}
    """)
    bar(0,'c0')
    issue(1,2,4); issue(2)
    bar(1,'c1')
    spf(1); issue(3); wregs(1)
    a(f"s_mov_b64 exec, 1\nbuffer_atomic_add v9, v52, {sr(SDBG)}, 0 offen sc1\ns_mov_b64 exec, -1"); vm.op('at')
    bar(2,'c2')
    spf(2); issue(4); wregs(2)
    bar(3,'c3')
    spf(3); issue(5); wregs(3)
    bar(4,'c4')
    spf(4); issue(6); wregs(4)
    bar(5,'c5')
    a(f"buffer_load_dword v23, v8, {sr(SDBG)}, 0 offen sc1"); vm.op('poll')
    issue(7); wregs(5)
    lp=a.lab('poll'); ok=a.lab('ok')
    a(f"s_waitcnt vmcnt({vm.need('poll','c6')})\nv_cmp_gt_u32 vcc, 128, v23\ns_cbranch_vccz {ok}")
    a(f"s_mov_b32 s89, {SPIN}\n{lp}:")
    a(f"buffer_load_dword v23, v8, {sr(SDBG)}, 0 offen sc1\ns_waitcnt vmcnt(0)\nv_cmp_gt_u32 vcc, 128, v23\ns_cbranch_vccz {ok}")
    a(f"s_sleep 2\ns_sub_u32 s89, s89, 1\ns_cmp_lg_u32 s89, 0\ns_cbranch_scc1 {lp}\n{ok}:")
    bar(6,'c6')
    g1=a.lab('g1'); g2=a.lab('g2')
    a(f"s_cmp_lg_u32 s74, 0\ns_cbranch_scc1 {g1}")
    for h in range(2):
        a(f"buffer_load_dwordx2 v[{24+4*h}:{25+4*h}], v{20+h}, {sr(SWS)}, s87 offen sc1")
    a(f"{g1}:\ns_cmp_lg_u32 s74, 1\ns_cbranch_scc1 {g2}")
    for kq in range(4):
        a(f"buffer_load_dwordx4 {vr(32+4*kq,4)}, v22, {sr(SWS)}, s88 offen sc1\ns_add_u32 s88, s88, {3584*4}")
    a(f"{g2}:"); vm.op('g')
    for n in range(0,6): wd_dma(n)
    wregs(6)
    bar(7,'c7','g')
    w1=a.lab('lw1'); done=a.lab('ldone')
    a(f"s_cmp_lg_u32 s74, 0\ns_cbranch_scc1 {w1}")
    a(f"v_lshlrev_b32 v5, 4, v{VL}\nv_add_u32 v5, {L_STAT}, v5\nv_lshlrev_b32 v6, 2, v{VL}\nv_add_u32 v6, {L_RSTD}, v6")
    for h in range(2):
        b=24+4*h
        a(f"v_rcp_f32 v{b+3}, v{b+1}\nv_mul_f32 v{b+2}, v{b+1}, v{b+1}\nv_mul_f32 v{b+1}, {hx(-LOG2E)}, v{b+3}")
        a(f"ds_write_b128 v5, v[{b}:{b+3}] offset:{1024*h}\nds_write_b32 v6, v{b+3} offset:{256*h}")
    a(f"s_branch {done}\n{w1}:")
    a(f"s_cmp_lg_u32 s74, 1\ns_cbranch_scc1 {done}")
    a(f"v_lshlrev_b32 v5, 4, v{VL}\nv_add_u32 v5, {L_CS}, v5")
    for j in range(4):
        a(f"v_add_f32 v{32+j}, v{32+j}, v{36+j}\nv_add_f32 v{40+j}, v{40+j}, v{44+j}\nv_add_f32 v{32+j}, v{32+j}, v{40+j}")
    a("ds_write_b128 v5, v[32:35]")
    a(f"{done}:")
    for n in range(6,12): wd_dma(n)
    wregs(7)
    a("s_waitcnt lgkmcnt(0)")
    ls(a,18); a("s_barrier"); ls(a,19)
    for n in range(12,18): wd_dma(n)
    if not CFG.get('wrb'):
        for n in wr: wd_reg(n)
    a(f"""
    v_lshrrev_b32 v5, 2, v{VL}
    v_lshlrev_b32 v5, 11, v5
    v_bfe_u32 v6, v{VL}, 1, 1
    v_lshl_add_u32 v5, v6, 7, v5
    v_and_b32 v6, 1, v{VL}
    v_lshl_add_u32 v20, v6, 3, v5
    s_mov_b32 s87, {WS_FL+14*128}
    v_lshlrev_b32 v21, 4, v{VL}
    v_add_u32 v21, s92, v21
    v_add_u32 v22, {2*SLOT}, v21
    """)
    a(f"s_waitcnt vmcnt({vm.need('wd')})")
    ls(a,20); a("s_barrier"); ls(a,21)
    if CFG.get('wrb'):
        for n in wr: wd_reg(n)
    def wd_put(n):
        u=unit_base(n)
        for kh in range(2):
            base,off=(22,u-2*SLOT) if u>=2*SLOT else (21,u)
            a(f"ds_write_b128 v{base}, {vr(WR+((n-18)*2+kh)*4,4)} offset:{off+kh*4096}")
    a("s_waitcnt vmcnt(0)\ns_barrier")
    ls(a,22)
    a(f"buffer_load_dwordx2 v[24:25], v20, {sr(SWS)}, s87 offen sc1")
    for n in range(18,23): wd_put(n)
    lp=a.lab('poll'); ok=a.lab('ok')
    a(f"s_mov_b32 s89, {SPIN}\n{lp}:")
    a(f"s_waitcnt vmcnt(0)\nv_and_b32 v24, v24, v25\nv_cmp_ne_u32 vcc, 1, v24\ns_cbranch_vccz {ok}")
    a(f"buffer_load_dwordx2 v[24:25], v20, {sr(SWS)}, s87 offen sc1\ns_sub_u32 s89, s89, 1\ns_cmp_lg_u32 s89, 0\ns_cbranch_scc1 {lp}\n{ok}:")
    for k in range(4):
        a(f"buffer_load_dwordx4 {vr(GA+4*k,4)}, v19, {sr(SWS)}, s91 offen sc1\ns_add_u32 s91, s91, {4*4096}")
    ls(a,23)
    a("s_barrier")
    for n in range(23,28): wd_put(n)
    a("s_waitcnt lgkmcnt(0)")
    ls(a,24)
    a("s_barrier")
    a("s_waitcnt vmcnt(0)")
    for tb in range(4):
        for k in range(4):
            a(f"{MF} {vr(YA+4*tb,4)}, {vr(GA+4*k,4)}, {vr(CB+(tb*4+k)*4,4)}, {'0' if k==0 else vr(YA+4*tb,4)}")
    a(f"v_lshlrev_b32 v1, 4, v{VL}\ns_add_u32 s60, s73, {L_Y}\nv_add_u32 v1, s60, v1\ns_nop 7")
    for tb in range(4):
        a(f"ds_write_b128 v1, {vr(YA+4*tb,4)} offset:{1024*tb}")
    a("s_waitcnt lgkmcnt(0)")
    ls(a,25)
    a("s_barrier")
    ls(a,26)
    ls_dump(a)

def kernel_main(a,name):
    kbegin(a,name)
    end=a.lab('end'); ld=a.lab('ld'); sp=a.lab('sp'); s2=a.lab('stage2')
    a(f"s_cmp_ge_u32 s2, 256\ns_cbranch_scc1 {end}")
    if CFG.get('trace') or CFG.get('probe'): a("s_memrealtime s[94:95]")
    a("s_load_dwordx16 s[32:47], s[0:1], 0\ns_load_dwordx8 s[48:55], s[0:1], 64")
    a(f"v_lshrrev_b32 v1, 6, v0\nv_and_b32 v{VL}, 63, v0\nv_readfirstlane_b32 s{S_WAVE}, v1")
    tile_map(a)
    a(f"s_cmp_ge_u32 s{S_WAVE}, 4\ns_cbranch_scc1 {ld}")
    if CFG.get('prio',1): a("s_setprio 1")
    r1=a.lab('r1'); r3=a.lab('r3'); rj=a.lab('rj'); rt=a.lab('rt'); rz=a.lab('rz')
    a(f"s_cmp_eq_u32 s{S_WAVE}, 3\ns_cbranch_scc1 {r3}")
    a(f"""
    v_lshrrev_b32 v1, 3, v{VL}
    v_mul_u32_u24 v1, {4*3584}, v1
    v_and_b32 v2, 7, v{VL}
    v_lshl_add_u32 v129, v2, 4, v1
    v_lshrrev_b32 v1, 4, v{VL}
    v_and_b32 v2, 15, v{VL}
    v_lshlrev_b32 v2, 4, v2
    v_lshl_add_u32 v130, v1, 16, v2
    """)
    job_ids(a)
    a("s_waitcnt lgkmcnt(0)")
    srd(a,SX,P_X,2048*512*2); srd(a,SWS,P_WS,ws_end())
    ls_first(a)
    a(f"s_cmp_lg_u32 s{S_WAVE}, 0\ns_cbranch_scc1 {r1}\ns_cmp_ge_u32 s60, 14\ns_cbranch_scc1 {rt}")
    stats_colsum(a); zero_acc(a); stats_colsum2(a)
    a(f"s_branch {rj}\n{r1}:")
    stats_rows(a); zero_acc(a); stats_rows2(a)
    a(f"s_branch {rj}\n{rt}:")
    table_touch(a)
    a(f"s_branch {rz}\n{r3}:")
    if CFG.get('cpf',1):
        a(f"""
        s_getpc_b64 s[64:65]
        L_pc_here:
        s_and_b32 s62, s{S_LOC}, 3
        s_lshl_b32 s62, s62, 13
        v_lshlrev_b32 v1, 7, v{VL}
        v_add_u32 v1, s62, v1
        v_min_u32 v1, L_code_end-{name}-4, v1
        s_sub_u32 s64, s64, L_pc_here-{name}
        s_subb_u32 s65, s65, 0
        global_load_dword v252, v1, s[64:65]
        """)
    flag_addr(a,68)
    a("s_waitcnt lgkmcnt(0)")
    srd(a,SX,P_X,2048*512*2); srd(a,SWS,P_WS,ws_end())
    ls_first(a)
    if CFG.get('lat'):
        p={'seq':34,'bx':42,'wd':48,'x':32,'out':50,'ws':54}[CFG['lat']]
        a(f"s_lshl_b32 s62, s2, 12\ns_add_u32 s64, s{p}, s62\ns_addc_u32 s65, s{p+1}, 0")
        ls(a,20); a("s_load_dword s62, s[64:65], 0\ns_waitcnt lgkmcnt(0)"); ls(a,21); a("s_load_dword s62, s[64:65], 2048\ns_waitcnt lgkmcnt(0)"); ls(a,22)
    a(f"v_mov_b64 v[132:133], 0\nv_mov_b64 v[134:135], 0\ns_mov_b64 exec, 1\nbuffer_store_dwordx4 v[132:135], off, {sr(SWS)}, s68 sc1\ns_mov_b64 exec, -1")
    if CFG.get('tlb',1):
        srd(a,SOUT,P_OUT,2048*512*2)
        a(f"""
        v_lshlrev_b32 v1, {CFG.get('tlbsh',20)}, v{VL}
        s_mov_b64 exec, {hex((1<<(ws_end()>>CFG.get('tlbsh',20))+1)-1)}
        buffer_load_dword v253, v1, {sr(SWS)}, 0 offen sc1
        s_mov_b64 exec, {hex((1<<(0x200000>>CFG.get('tlbsh',20)))-1)}
        buffer_load_dword v253, v1, {sr(SOUT)}, 0 offen sc1
        s_mov_b64 exec, -1
        """)
    a(f"{rz}:")
    zero_acc(a)
    a(f"{rj}:")
    a(f"s_cmp_ge_u32 s{S_J}, 14\ns_cbranch_scc1 {sp}")
    def setup_keep(spec):
        compute1_setup(a,spec)
        if spec: dft32_consts(a)
        for r in range(0,24 if spec else 6,2): a(f"v_mov_b64 v[{r}:{r+1}], 0")
    setup_keep(False); mainloop1(a,False); ls(a,3); epilogue_ffn(a)
    a(f"{s2}:")
    compute2(a)
    a(f"s_endpgm\n{sp}:")
    setup_keep(True); mainloop1(a,True); ls(a,3); epilogue_spec(a)
    a(f"s_branch {s2}\n{ld}:")
    loader(a)
    a(f"{end}:\ns_endpgm\nL_code_end:")

def build(cfg):
    CFG.clear(); CFG.update(cfg)
    a=Asm()
    name=NAME+'_kernel'
    if cfg.get('probe'):
        a(f"; @launch kernel={name} grid=(256,1,1) block=(512,1,1) lds={LDS}")
        a(f"; @launch kernel=probe_kernel grid=(1,1,1) block=(64,1,1) lds=0")
    else:
        a(f"; @launch grid=(256,1,1) block=(512,1,1) lds={LDS}")
    a('.amdgcn_target "amdgcn-amd-amdhsa--gfx950"\n.text')
    kernel_main(a,name); names=[name]
    if cfg.get('probe'): names.append(kernel_probe(a))
    a('.section .rodata,"a"')
    for n in names:
        a('.p2align 6')
        a.l.append(kd(n,256,102,256))
    return a.text()

if __name__=='__main__':
    cfg={}
    for kv in sys.argv[2:]:
        k,v=kv.split('='); cfg[k]=int(v) if v.lstrip('-').isdigit() else v
    open(sys.argv[1],'w').write(build(cfg))
```

```python
import sys, struct
NAME='recurrent_scan__spectral_fnet__swiglu_ffn__prompt'
LOG2E=1.4426950408889634
def f2u(x): return struct.unpack('<I',struct.pack('<f',x))[0]
def hx(x): return hex(f2u(x))

WS_H=0; WS_G=0x700000; WS_ST=0x900000; WS_CS=0x908000; WS_EP=0x918000; WS_FL=0x9C0000
WS_TRACE=0x940000
CFG={}
def diag(): return CFG.get('probe') or CFG.get('trace')
def ws_end(): return 0xA00000
S_TAG=6
OOB=0x40000000

class Asm:
    def __init__(self): self.l=[]; self.n=0
    def __call__(self,s):
        for line in s.split('\n'):
            line=line.strip()
            if line: self.l.append(('' if line.endswith(':') or line.startswith('.') or line.startswith(';') else '    ')+line)
    def lab(self,b): self.n+=1; return f"L_{b}_{self.n}"
    def text(self): return '\n'.join(self.l)+'\n'

class VM:
    def __init__(self): self.ops=[]
    def op(self,tag): self.ops.append(tag)
    def need(self,*tags):
        last=max(i for i,t in enumerate(self.ops) if t in tags)
        n=len(self.ops)-1-last
        assert n<=63, n
        return n

def kd(name,vgpr,sgpr,accum):
    return f""".amdhsa_kernel {name}
  .amdhsa_next_free_vgpr {vgpr}
  .amdhsa_next_free_sgpr {sgpr}
  .amdhsa_accum_offset {accum}
  .amdhsa_group_segment_fixed_size 0
  .amdhsa_kernarg_size 96
  .amdhsa_user_sgpr_count 2
  .amdhsa_user_sgpr_kernarg_segment_ptr 1
  .amdhsa_system_sgpr_workgroup_id_x 1
  .amdhsa_float_denorm_mode_32 3
.end_amdhsa_kernel
"""
def kbegin(a,name): a(f".globl {name}\n.p2align 8\n.type {name},@function\n{name}:")
def srd(a,d,base,nbytes):
    a(f"s_mov_b64 s[{d}:{d+1}], s[{base}:{base+1}]\ns_mov_b32 s{d+2}, {nbytes}\ns_mov_b32 s{d+3}, 0x00020000")
def srd_hi(a,d,nbytes): a(f"s_mov_b32 s{d+2}, {nbytes}\ns_mov_b32 s{d+3}, 0x00020000")
def srd_lo(a,d,base): a(f"s_mov_b64 s[{d}:{d+1}], s[{base}:{base+1}]")
def vr(b,n): return f"v[{b}:{b+n-1}]" if n>1 else f"v{b}"
def sr(b): return f"s[{b}:{b+3}]"
MF="v_mfma_f32_16x16x32_bf16"

P_X,P_HRE,P_HIM,P_WG,P_WU,P_WD,P_OUT,P_DBG,P_WS=32,38,40,44,46,48,50,52,54
SX,SB0,SB1,SWS,SWD,SOUT=8,12,16,20,24,28
S_WAVE=56; S_I=57; S_J=58; S_T1=59; S_NB=3; S_A=100; S_G=101; S_LOC=93
VL=255
SPIN=100000
XB_BYTES=2048*512*2; W_BYTES=512*1792*2; T_BYTES=512*512*2

def ls(a,idx):
    if diag(): a(f"s_memrealtime s[96:97]\ns_waitcnt lgkmcnt(0)\nv_writelane_b32 v254, s96, {idx}")
def ls_first(a):
    if diag(): a(f"v_writelane_b32 v254, s94, 0")
def ls_dump(a):
    if diag(): a(f"s_lshl_b32 s98, s2, 11\ns_lshl_b32 s99, s{S_WAVE}, 8\ns_add_u32 s98, s98, s99\ns_add_u32 s98, s98, {WS_TRACE}\nv_lshlrev_b32 v253, 2, v{VL}\nbuffer_store_dword v254, v253, {sr(SWS)}, s98 offen")
def kernel_probe(a):
    pa,pb=CFG['probe'].split(':'); K=CFG.get('K',10)
    name='probe_kernel'; kbegin(a,name); end=a.lab('end')
    a(f"s_cmp_ge_u32 s2, 1\ns_cbranch_scc1 {end}")
    a("s_load_dwordx2 s[54:55], s[0:1], 88\ns_waitcnt lgkmcnt(0)")
    srd(a,SWS,P_WS,ws_end())
    a("v_lshlrev_b32 v1, 11, v0")
    for r,p in ((4,pa),(8,pb)):
        w,i=p[3:].split('.')
        for q in range(4):
            a(f"s_mov_b32 s60, {WS_TRACE+int(w)*256+int(i)*4+q*64*2048}\nbuffer_load_dword v{r+q}, v1, {sr(SWS)}, s60 offen")
    a("s_waitcnt vmcnt(0)\ns_nop 0\nv_readfirstlane_b32 s61, v4\ns_nop 3")
    for r in range(4,12): a(f"v_subrev_u32 v{r}, s61, v{r}")
    for r,p,sd in ((4,pa,62),(8,pb,63)):
        op=p[:3]
        vop={'min':'v_min_i32','max':'v_max_i32','avg':'v_add_u32'}[op]; sop={'min':'s_min_i32','max':'s_max_i32','avg':'s_add_u32'}[op]
        a(f"{vop} v{r}, v{r}, v{r+1}\n{vop} v{r+2}, v{r+2}, v{r+3}\n{vop} v{r}, v{r}, v{r+2}\ns_nop 0")
        a(f"v_readlane_b32 s{sd}, v{r}, 0")
        for l in range(1,64): a(f"v_readlane_b32 s64, v{r}, {l}\ns_nop 0\n{sop} s{sd}, s{sd}, s64")
        a(f"s_mul_i32 s{sd}, s{sd}, {K}")
        if op=='avg': a(f"s_ashr_i32 s{sd}, s{sd}, 8")
    a("s_sub_u32 s62, s63, s62\ns_max_i32 s62, s62, 0\ns_min_i32 s62, s62, 100000")
    a("s_memrealtime s[66:67]\ns_waitcnt lgkmcnt(0)")
    lp=a.lab('spin')
    a(f"{lp}:\ns_memrealtime s[68:69]\ns_waitcnt lgkmcnt(0)\ns_sub_u32 s68, s68, s66\ns_cmp_lt_u32 s68, s62\ns_cbranch_scc1 {lp}")
    a(f"{end}:\ns_endpgm")
    return name

SLOT=49152
L_STAT=3*SLOT+8192; L_RSTD=L_STAT+2048; L_CS=L_RSTD+512
L_Y=24576; L_RED=49152; LDS=163840
NPRE=9
def pos(n):
    if n>=19: n-=19
    if n==18: return 3*SLOT
    return (2*SLOT,0,SLOT)[n//6]+(n%6)*8192

def tile_map(a):
    a(f"""
    s_lshr_b32 s{S_LOC}, s2, 3
    s_and_b32 s{S_A}, s2, 1
    s_bfe_u32 s{S_G}, s2, 0x20001
    s_lshr_b32 s62, s2, 6
    s_lshl2_add_u32 s{S_J}, s{S_G}, s62
    s_and_b32 s62, s{S_LOC}, 7
    s_lshl3_add_u32 s{S_I}, s{S_A}, s62
    s_and_b32 s63, s62, 3
    s_lshl2_add_u32 s63, s{S_A}, s63
    s_lshr_b32 s62, s62, 2
    s_lshl3_add_u32 s63, s62, s63
    s_cmp_ge_u32 s{S_J}, 14
    s_cselect_b32 s{S_I}, s63, s{S_I}
    """)
def tile_map2(a):
    a(f"""
    s_and_b32 s60, s2, 7
    s_and_b32 s62, s{S_LOC}, 3
    s_lshl2_add_u32 s{S_T1}, s60, s62
    s_lshr_b32 s{S_NB}, s{S_LOC}, 2
    """)

def stage_rot(a,s,sh):
    a(f"s_bfe_u32 s{s}, s{S_T1}, 0x10001\ns_mul_i32 s{s}, s{s}, 3\ns_add_u32 s{s}, s{s}, s{S_NB}\ns_sub_u32 s62, s{s}, 7\ns_cmp_ge_u32 s{s}, 7\ns_cselect_b32 s{s}, s62, s{s}")
    for sg in range(7):
        a(f"s_lshl_b32 s{80+sg}, s{s}, {sh+1}\ns_add_u32 s{s}, s{s}, 1\ns_cmp_eq_u32 s{s}, 7\ns_cselect_b32 s{s}, 0, s{s}")

def epoch_load(a,v):
    a(f"v_mov_b32 v{v}, {WS_EP}\nglobal_load_dword v{v}, v{v}, s[{P_WS}:{P_WS+1}] sc1")
def epoch_tag(a,v):
    a(f"v_readfirstlane_b32 s{S_TAG}, v{v}\ns_nop 0\ns_mul_i32 s{S_TAG}, s{S_TAG}, 0x9e3779b1\ns_add_u32 s{S_TAG}, s{S_TAG}, 0x7f4a7c15\ns_not_b32 s{S_TAG+1}, s{S_TAG}")

SD=160; SA=253
def cs_ids(a):
    a(f"""
    s_and_b32 s61, s{S_LOC}, 3
    s_lshr_b32 s62, s{S_LOC}, 4
    s_lshl1_add_u32 s60, s{S_A}, s62
    s_lshl2_add_u32 s60, s{S_G}, s60
    s_bfe_u32 s63, s{S_LOC}, 0x10002
    s_lshl1_add_u32 s63, s60, s63
    s_bfe_u32 s69, s{S_LOC}, 0x10003
    """)
def cs_addr(a,sd):
    a(f"""
    s_mul_i32 s{sd}, s61, {3584*4}
    s_mul_i32 s62, s69, {1792*4}
    s_add_u32 s{sd}, s{sd}, s62
    s_lshl_b32 s62, s63, 8
    s_add_u32 s{sd}, s{sd}, s62
    s_add_u32 s{sd}, s{sd}, {WS_CS}
    """)
def row_ids(a):
    a(f"""
    s_and_b32 s71, s{S_LOC}, 7
    s_lshr_b32 s70, s{S_LOC}, 3
    s_and_b32 s62, s{S_G}, 1
    s_lshl2_add_u32 s70, s62, s70
    s_lshl3_add_u32 s70, s{S_A}, s70
    s_lshr_b32 s62, s{S_G}, 1
    s_lshl4_add_u32 s70, s62, s70
    """)
def st_addr(a,sd):
    a(f"s_lshl3_add_u32 s{sd}, s70, s71\ns_lshl_b32 s{sd}, s{sd}, 7\ns_add_u32 s{sd}, s{sd}, {WS_ST}")
def flag_addr(a,sd):
    a(f"s_lshl4_add_u32 s{sd}, s{S_I}, s{S_J}\ns_lshl_b32 s{sd}, s{sd}, 10\ns_add_u32 s{sd}, s{sd}, {WS_FL}")

def colsum_loads(a):
    a(f"""
    v_lshrrev_b32 v1, 3, v{VL}
    v_mul_u32_u24 v1, {4*3584}, v1
    v_and_b32 v2, 7, v{VL}
    v_lshl_add_u32 v1, v2, 4, v1
    s_mul_i32 s72, s61, 3584
    s_lshl_b32 s62, s63, 7
    s_add_u32 s72, s72, s62
    s_mov_b32 s73, {32*3584}
    """)
    srd_hi(a,64,W_BYTES)
    a(f"s_cmp_eq_u32 s69, 1\ns_waitcnt lgkmcnt(0)\ns_cselect_b64 s[64:65], s[{P_WU}:{P_WU+1}], s[{P_WG}:{P_WG+1}]")
    epoch_load(a,128)
    for n in range(16):
        a(f"buffer_load_dwordx4 {vr(160+4*n,4)}, v1, s[64:67], s72 offen")
        if n<15: a(f"s_add_u32 s72, s72, s73")
def colsum_finish(a):
    a(f"""
    v_and_b32 v140, 15, v{VL}
    v_and_b32 v141, 1, v140
    v_lshlrev_b32 v141, 4, v141
    v_mov_b32 v142, 0x3f80
    v_lshlrev_b32 v141, v141, v142
    v_lshrrev_b32 v140, 1, v140
    """)
    for p in range(4):
        a(f"v_cmp_eq_u32 vcc, {p}, v140\ns_nop 1\nv_cndmask_b32 v{132+p}, 0, v141, vcc")
    a(f"""
    v_and_b32 v140, 7, v{VL}
    v_lshlrev_b32 v140, 5, v140
    v_and_b32 v141, 16, v{VL}
    v_add3_u32 v140, v140, v141, s68
    v_and_b32 v141, 0x28, v{VL}
    v_cmp_eq_u32 vcc, 0, v141
    s_nop 1
    v_cndmask_b32 v{SA}, v{SA}, v140, vcc
    v_mov_b32 v140, 0x07060500
    v_mov_b32 v141, 0x07060501
    v_mov_b32 v142, 0x07060502
    v_mov_b32 v143, 0x07060503
    """)
    a("s_waitcnt vmcnt(16)"); epoch_tag(a,128)
    for n in range(16):
        a(f"s_waitcnt vmcnt({15-n})")
        a(f"{MF} v[136:139], v[132:135], {vr(160+4*n,4)}, {'0' if n==0 else 'v[136:139]'}")
    a("s_nop 7\ns_nop 1")
    for j in range(4):
        a(f"v_add_f32_dpp v{SD+j}, v{136+j}, v{136+j} row_ror:8 row_mask:0xf bank_mask:0xf")
    for j in range(4):
        a(f"v_perm_b32 v{SD+j}, v{SD+j}, s{S_TAG}, v{140+j}")
def table_touch(a):
    a(f"""
    s_sub_u32 s63, s63, 28
    s_lshl2_add_u32 s63, s63, s61
    s_lshl_b32 s63, s63, 14
    s_add_u32 s63, s63, 1024
    v_lshlrev_b32 v1, 8, v{VL}
    """)
    srd_hi(a,64,T_BYTES)
    a(f"s_cmp_eq_u32 s69, 1\ns_waitcnt lgkmcnt(0)\ns_cselect_b64 s[64:65], s[{P_HIM}:{P_HIM+1}], s[{P_HRE}:{P_HRE+1}]")
    epoch_load(a,128)
    a(f"buffer_load_dword v252, v1, s[64:67], s63 offen\nbuffer_load_dword v252, v1, s[64:67], s63 offen offset:128")

def rows_loads(a):
    a(f"""
    s_sub_u32 s60, s{S_WAVE}, 1
    s_lshl1_add_u32 s63, s70, s60
    s_lshl_b32 s62, s71, 8
    s_add_u32 s63, s63, s62
    s_lshl_b32 s63, s63, 10
    v_lshrrev_b32 v1, 4, v{VL}
    v_and_b32 v2, 15, v{VL}
    v_lshlrev_b32 v3, 4, v2
    v_lshl_add_u32 v3, v1, 16, v3
    s_waitcnt lgkmcnt(0)
    """)
    srd_lo(a,SX,P_X)
    epoch_load(a,128)
    for p in range(4):
        a(f"buffer_load_dwordx4 {vr(168+4*p,4)}, v3, {sr(SX)}, s63 offen offset:{256*p}")
def rows_finish(a):
    a(f"""
    v_and_b32 v141, 15, v{VL}
    v_cmp_eq_u32 vcc, 0, v141
    v_lshl_add_u32 v140, v{VL}, 1, s68
    v_mov_b32 v131, 0x3f803f80
    v_cndmask_b32 v{SA}, v{SA}, v140, vcc
    v_mov_b32 v132, 0
    v_mov_b32 v133, 0
    v_mov_b32 v134, 0x00003f80
    v_mov_b32 v135, 0x3f800000
    v_mov_b32 v136, 0
    v_mov_b32 v137, 0
    """)
    a("s_waitcnt vmcnt(4)"); epoch_tag(a,128)
    for p in range(4):
        a(f"s_waitcnt vmcnt({3-p})")
        for r in range(4):
            a(f"v_dot2c_f32_bf16 v{132+(r&1)}, v{168+4*p+r}, v131")
    a("s_nop 2\nv_add_f32 v132, v132, v133")
    def red(v):
        for s in (8,4,2,1):
            a(f"s_nop 1\nv_add_f32_dpp v{v}, v{v}, v{v} row_ror:{s} row_mask:0xf bank_mask:0xf")
    red(132)
    a(f"v_mul_f32 v132, {hx(-1.0/512)}, v132")
    for p in range(4):
        for r in range(4):
            a(f"v_dot2_f32_bf16 v{144+2*r}, v{168+4*p+r}, v134, v132\nv_dot2_f32_bf16 v{145+2*r}, v{168+4*p+r}, v135, v132")
        for r in range(8):
            a(f"v_fmac_f32 v{136+(r&1)}, v{144+r}, v{144+r}")
    a("v_add_f32 v136, v136, v137")
    red(136)
    a(f"""
    v_mul_f32 v136, {hx(1.0/512)}, v136
    v_cvt_pk_bf16_f32 v136, v136, v132
    v_and_b32 v{SD}, 0xffff0000, v136
    v_lshlrev_b32 v136, 16, v136
    v_add_f32 v136, {hx(1e-5)}, v136
    v_cvt_pk_bf16_f32 v136, v136, v136
    v_lshlrev_b32 v136, 16, v136
    v_sqrt_f32 v136, v136
    s_nop 0
    v_cvt_pk_bf16_f32 v136, v136, v136
    v_lshlrev_b32 v136, 16, v136
    v_rcp_f32 v{SD+3}, v136
    v_mul_f32 v{SD+2}, v136, v136
    v_mov_b32 v{SD+1}, s{S_TAG}
    """)

XA,XB,WA,WB=128,160,192,208
AX0,AX1,AW0,AW1=224,225,226,227
FC,FS,FN=228,236,244

def compute1_setup(a,spec):
    a(f"""
    v_and_b32 v129, 15, v{VL}
    v_lshrrev_b32 v130, 4, v{VL}
    v_lshrrev_b32 v131, 1, v129
    v_xor_b32 v131, v131, v130
    v_lshlrev_b32 v131, 4, v131
    v_lshl_add_u32 v{AX0}, v129, 7, v131
    v_xor_b32 v{AX1}, 64, v{AX0}
    s_mov_b32 s73, {SLOT}
    """)
    if spec:
        a(f"s_lshl_b32 s62, s{S_WAVE}, 12\nv_add_u32 v{AW0}, s62, v{AX0}\nv_add_u32 v{AW1}, s62, v{AX1}")
    else:
        a(f"""
        v_lshrrev_b32 v131, 2, v129
        v_and_b32 v132, 3, v129
        v_and_b32 v133, 1, v130
        v_lshl_or_b32 v133, v133, 2, v131
        s_lshl_b32 s62, s{S_WAVE}, 1
        v_xor_b32 v133, s62, v133
        v_lshlrev_b32 v133, 5, v133
        v_lshl_add_u32 v133, v132, 3, v133
        v_lshl_add_u32 v131, v130, 3, v131
        v_lshl_add_u32 v{AW0}, v131, 8, v133
        v_xor_b32 v{AW1}, 32, v{AW0}
        """)

def dft32_consts(a):
    a(f"v_lshlrev_b32 v130, 2, v130\nv_cvt_f32_u32 v130, v130\nv_cvt_f32_u32 v129, v129")
    for tb in range(2):
        a(f"v_add_f32 v131, {hx(16.0*tb)}, v129\nv_mul_f32 v131, {hx(1/32.)}, v131")
        for j in range(8):
            a(f"v_add_f32 v132, {hx(16.0*(j>>2)+(j&3))}, v130\nv_mul_f32 v132, v132, v131\nv_cos_f32 v{136+j}, v132\nv_sin_f32 v{144+j}, v132")
        for p in range(4):
            a(f"v_cvt_pk_bf16_f32 v{FC+4*tb+p}, v{136+2*p}, v{137+2*p}\nv_cvt_pk_bf16_f32 v{FS+4*tb+p}, v{144+2*p}, v{145+2*p}")
            a(f"v_xor_b32 v{FN+4*tb+p}, 0x80008000, v{FS+4*tb+p}")

def zero_acc(a):
    for r in range(0,128,2): a(f"v_mov_b64 v[{r}:{r+1}], 0")

def scalars2(a):
    tile_map2(a)
    srd(a,SX,P_X,XB_BYTES); srd(a,SWS,P_WS,ws_end()); srd(a,SOUT,P_OUT,XB_BYTES)
    flag_addr(a,88)
    a(f"""
    s_lshl_b32 s62, s{S_WAVE}, 7
    s_add_u32 s88, s88, s62
    s_lshr_b32 s74, s{S_WAVE}, 1
    s_and_b32 s75, s{S_WAVE}, 1
    s_lshl_b32 s62, s75, 10
    s_add_u32 s62, s62, s{S_T1}
    s_lshl3_add_u32 s62, s62, s{S_NB}
    s_lshl1_add_u32 s62, s62, s74
    s_lshl_b32 s77, s62, 6
    s_add_u32 s78, s77, {16*32*1024}
    s_lshl1_add_u32 s62, s{S_T1}, s75
    s_mul_i32 s79, s62, {112*1024}
    s_and_b32 s63, s{S_T1}, 1
    s_lshl1_add_u32 s62, s63, s74
    s_lshl_b32 s62, s62, 11
    s_add_u32 s79, s79, s62
    s_lshr_b32 s62, s{S_T1}, 1
    s_lshl4_add_u32 s62, s62, s63
    s_lshl2_add_u32 s62, s62, s74
    s_lshl_b32 s62, s62, 8
    s_add_u32 s89, s62, {WS_FL}
    s_xor_b32 s91, s89, 1024
    s_add_u32 s91, s91, 512
    """)
    stage_rot(a,76,12)

def mainloop1(a,spec):
    def reads(k,xb,wb):
        xs=[f"ds_read_b128 {vr(xb+4*t,4)}, v{AX0+k} offset:{t*2048}" for t in range(8)]
        ws=[]
        for g in range(4):
            if spec:
                ws.append(f"ds_read_b128 {vr(wb+4*g,4)}, v{AW0+k} offset:{16384+(g>>1)*16384+(g&1)*2048}")
            else:
                for rho in range(2):
                    ws.append(f"ds_read_b64_tr_b16 {vr(wb+4*g+2*rho,2)}, v{AW0+(g&1)} offset:{16384+(g>>1)*16384+k*8192+rho*1024}")
        return ws+xs
    def mfmas(xb,wb):
        out=[]
        for t in range(8):
            for gg in range(4):
                g=gg if t%2==0 else 3-gg
                d=(t*4+g)*4
                x=vr(xb+4*t,4); w=vr(wb+4*g,4)
                p,q=(x,w) if spec else (w,x)
                out.append(f"{MF} {vr(d,4)}, {p}, {q}, {vr(d,4)}")
        return out
    a(f"s_mov_b32 s70, 0\ns_mov_b32 s72, 8")
    ls(a,1)
    a("s_barrier")
    ls(a,2)
    for l in reads(0,XA,WA): a(l)
    a(f"buffer_store_dwordx4 {vr(SD,4)}, v{SA}, {sr(SWS)}, 0 offen sc1")
    loop=a.lab('loop')
    if CFG.get('al',1): a(".p2align 6")
    a(f"{loop}:")
    a("s_waitcnt lgkmcnt(0)")
    r=reads(1,XB,WB)
    extra={17:f"s_add_u32 s70, s70, 1\ns_cmp_eq_u32 s70, 3",18:f"s_cselect_b32 s71, {-2*SLOT}, s73\ns_cselect_b32 s70, 0, s70",
           20:f"v_add_u32 v{AX0}, s71, v{AX0}",21:f"v_add_u32 v{AX1}, s71, v{AX1}",22:f"v_add_u32 v{AW0}, s71, v{AW0}",23:f"v_add_u32 v{AW1}, s71, v{AW1}"}
    for i,m in enumerate(mfmas(XA,WA)):
        a(m)
        if i<len(r): a(r[i])
        if i in extra: a(extra[i])
    a("s_waitcnt lgkmcnt(0)\ns_barrier")
    r=reads(0,XA,WA)
    for i,m in enumerate(mfmas(XB,WB)):
        a(m)
        if i<len(r): a(r[i])
        if i==20: a("s_sub_u32 s72, s72, 1\ns_cmp_lg_u32 s72, 0")
    a(f"s_cbranch_scc1 {loop}")

def epilogue_ffn_setup(a):
    a(f"""
    v_lshlrev_b32 v229, 4, v129
    v_add_u32 v229, {L_STAT}, v229
    v_and_b32 v131, 1, v130
    v_lshl_add_u32 v228, v131, 4, v129
    v_lshrrev_b32 v131, 1, v130
    v_lshl_add_u32 v228, v131, 7, v228
    s_lshl_b32 s62, s{S_WAVE}, 5
    v_add_u32 v228, s62, v228
    v_lshlrev_b32 v228, 2, v228
    v_add_u32 v228, {L_CS}, v228
    v_lshlrev_b32 v230, 4, v{VL}
    s_mul_i32 s62, s{S_I}, {8*56}
    s_lshl2_add_u32 s62, s{S_J}, s62
    s_add_u32 s62, s62, s{S_WAVE}
    s_lshl_b32 s62, s62, 10
    s_add_u32 s63, s62, {4*56*1024}
    s_bitcmp1_b32 s{S_J}, 0
    s_cselect_b32 s90, s63, s62
    s_cselect_b32 s92, s62, s63
    """)
def epilogue_ffn(a):
    ST=128
    a(f"s_waitcnt lgkmcnt(0)")
    for q in range(4): a(f"ds_read_b32 v{231+q}, v228 offset:{1024*q}")
    for t in range(8): a(f"ds_read_b128 {vr(ST+4*t,4)}, v229 offset:{256*t}")
    a("s_waitcnt lgkmcnt(8)\nv_add_f32 v231, v231, v232\nv_add_f32 v233, v233, v234\nv_add_f32 v231, v231, v233\ns_nop 0")
    for t in range(8):
        a(f"s_waitcnt lgkmcnt({7-t})")
        a(f"v_mfma_f32_16x16x1_4b_f32 {vr(16*t,16)}, v231, v{ST+4*t}, {vr(16*t,16)}")
    T=160
    for t in range(8):
        b=16*t; s=ST+4*t; o=208+4*(t&1)
        for p in range(4):
            a(f"v_pk_mul_f32 {vr(T+2*p,2)}, {vr(b+2*p,2)}, {vr(s,2)} op_sel:[0,1] op_sel_hi:[1,1]")
        for p in range(8): a(f"v_exp_f32 v{T+p}, v{T+p}")
        for p in range(4):
            a(f"v_pk_mul_f32 {vr(b+2*p,2)}, {vr(b+2*p,2)}, {vr(b+8+2*p,2)}")
        for p in range(4):
            a(f"v_pk_fma_f32 {vr(T+2*p,2)}, {vr(T+2*p,2)}, {vr(s+2,2)}, {vr(s+2,2)} op_sel:[0,0,0] op_sel_hi:[1,0,0]")
        for p in range(8): a(f"v_rcp_f32 v{T+p}, v{T+p}")
        for p in range(4):
            a(f"v_pk_mul_f32 {vr(b+2*p,2)}, {vr(b+2*p,2)}, {vr(T+2*p,2)}")
        for p in range(4):
            a(f"v_cvt_pk_bf16_f32 v{o+p}, v{b+2*p}, v{b+2*p+1}")
        a(f"buffer_store_dwordx4 {vr(o,4)}, v230, {sr(SWS)}, s90 offen sc1")
        if t==3: a("s_mov_b32 s90, s92")
        elif t<7: a(f"s_add_u32 s90, s90, {56*1024}")

def epilogue_spec(a):
    R=128; Z=160
    a(f"s_waitcnt vmcnt(0) lgkmcnt(0)\nv_lshrrev_b32 v252, 4, v{VL}\nv_lshlrev_b32 v253, 4, v252\nv_add_u32 v253, {L_RSTD}, v253")
    for t in range(8): a(f"ds_read_b128 {vr(R+4*t,4)}, v253 offset:{64*t}")
    a(f"""
    v_and_b32 v253, 15, v{VL}
    v_lshlrev_b32 v253, 4, v253
    v_lshl_add_u32 v253, v252, 18, v253
    s_sub_u32 s62, s{S_J}, 14
    s_lshl2_add_u32 s62, s62, s{S_WAVE}
    s_lshl3_add_u32 s62, s{S_I}, s62
    s_lshl_b32 s62, s62, 9
    s_add_u32 s62, s62, {WS_G}
    """)
    for t in range(8):
        a(f"s_waitcnt lgkmcnt({7-t})")
        for g in range(4):
            d=(t*4+g)*4
            for p in range(2):
                a(f"v_pk_mul_f32 {vr(d+2*p,2)}, {vr(d+2*p,2)}, {vr(R+4*t+2*p,2)}")
        for g in range(4):
            d=(t*4+g)*4
            z=Z+((t>>1)*4+g)*4+(t&1)*2
            for p in range(2):
                a(f"v_cvt_pk_bf16_f32 v{z+p}, v{d+2*p}, v{d+2*p+1}")
    a("s_nop 1")
    def acc(tb,eb,b,ri): return (((tb*2+eb)*4+b)*2+ri)*4
    def group(tb,eb):
        out=[]
        for b in range(4):
            zr=vr(Z+(b*4+eb)*4,4); zi=vr(Z+(b*4+2+eb)*4,4)
            out+=[f"{MF} {vr(acc(tb,eb,b,0),4)}, {vr(FC+4*tb,4)}, {zr}, 0",
                  f"{MF} {vr(acc(tb,eb,b,1),4)}, {vr(FC+4*tb,4)}, {zi}, 0",
                  f"{MF} {vr(acc(tb,eb,b,0),4)}, {vr(FS+4*tb,4)}, {zi}, {vr(acc(tb,eb,b,0),4)}",
                  f"{MF} {vr(acc(tb,eb,b,1),4)}, {vr(FN+4*tb,4)}, {zr}, {vr(acc(tb,eb,b,1),4)}"]
        return out
    def pack(tb,eb,n0):
        out=[]
        for j in range(4):
            o=128+4*((n0+j)%8)
            for b in range(4):
                out.append(f"v_cvt_pk_bf16_f32 v{o+b}, v{acc(tb,eb,b,0)+j}, v{acc(tb,eb,b,1)+j}")
            out.append(f"s_add_u32 s63, s62, {(16*tb+j)*65536}\nbuffer_store_dwordx4 {vr(o,4)}, v253, {sr(SWS)}, s63 offen offset:{eb*256} sc1")
        return out
    gs=[(0,0),(0,1),(1,0),(1,1)]
    for gi,(tb,eb) in enumerate(gs):
        m=group(tb,eb)
        pk=pack(*gs[gi-1],4*(gi-1)) if gi>0 else []
        for i,x in enumerate(m):
            a(x)
            if i>=8 and pk:
                for _ in range(3):
                    if pk: a(pk.pop(0))
        for x in pk: a(x)
    a("s_nop 7")
    for x in pack(1,1,12): a(x)

def compute2(a):
    PF=6
    ACC=0; HF=32; WF=80; XP=224; AW=232; AH=244; AO=246; AXR=247; AP=248
    ls(a,4)
    a(f"""
    v_mov_b32 v8, s{S_TAG}
    v_mov_b32 v9, s{S_TAG+1}
    s_mov_b64 exec, 1
    s_waitcnt vmcnt(4)
    buffer_store_dwordx2 v[8:9], off, {sr(SWS)}, s88 sc1
    s_mov_b64 exec, -1
    v_and_b32 v6, 15, v{VL}
    v_lshrrev_b32 v2, 4, v{VL}
    v_lshrrev_b32 v3, 2, v6
    v_and_b32 v4, 3, v6
    v_lshl_add_u32 v3, v2, 2, v3
    v_bfe_u32 v5, v3, 1, 2
    s_lshl_b32 s62, s74, 1
    v_xor_b32 v5, s62, v5
    v_lshlrev_b32 v5, 5, v5
    v_lshl_add_u32 v5, v4, 3, v5
    v_lshl_add_u32 v5, v3, 7, v5
    s_lshl_b32 s62, s74, 12
    v_add_u32 v{AW}, s62, v5
    """)
    for eb in range(1,4): a(f"v_xor_b32 v{AW+eb}, {eb<<5}, v{AW}")
    for eb in range(4): a(f"v_add_u32 v{AW+4+eb}, 0x10000, v{AW+eb}\nv_add_u32 v{AW+8+eb}, 0x20000, v{AW+eb}")
    def wreads(n):
        b=WF+16*(n%NPRE); u=pos(n); k=u>>16
        return [f"ds_read_b64_tr_b16 {vr(b+4*eb+2*rho,2)}, v{AW+4*k+eb} offset:{(u&0xffff)+rho*2048}" for eb in range(4) for rho in range(2)]
    a("s_barrier")
    other=f"""
    v_lshlrev_b32 v3, 15, v6
    v_lshl_add_u32 v{AXR}, v2, 3, v3
    v_and_b32 v4, 1, v2
    v_lshlrev_b32 v4, 5, v4
    v_lshrrev_b32 v5, 1, v2
    v_lshl_add_u32 v4, v5, 4, v4
    v_add_u32 v{AO}, v3, v4
    v_lshlrev_b32 v7, 4, v{VL}
    v_add_u32 v{AH}, s79, v7
    v_add_u32 v{AH+1}, {56*1024}, v{AH}
    v_min_u32 v3, 13, v{VL}
    v_lshrrev_b32 v4, 1, v3
    v_and_b32 v3, 1, v3
    v_lshlrev_b32 v3, 7, v3
    v_lshl_add_u32 v{AP}, v4, 11, v3
    """.split('\n')
    other=[x for x in other if x.strip()]
    for n in range(NPRE):
        for l in wreads(n):
            a(l)
            if other and n>=1: a(other.pop(0))
    assert not other
    a("s_waitcnt lgkmcnt(0)\ns_barrier")
    ls(a,12)
    a(f"""
    s_mov_b64 exec, 1
    s_waitcnt vmcnt(1)
    buffer_store_dwordx2 v[8:9], off, {sr(SWS)}, s88 offset:512 sc1
    s_mov_b64 exec, -1
    """)
    ls(a,5)
    def poll(base,first=True):
        lp=a.lab('poll'); ok=a.lab('ok')
        if not first: a(f"v_cmp_ne_u64 vcc, s[{S_TAG}:{S_TAG+1}], v[250:251]\ns_cbranch_vccz {ok}")
        a(f"s_mov_b32 s67, {SPIN}\n{lp}:")
        a(f"buffer_load_dwordx2 v[250:251], v{AP}, {sr(SWS)}, s{base} offen sc1\ns_waitcnt vmcnt(0)\nv_cmp_ne_u64 vcc, s[{S_TAG}:{S_TAG+1}], v[250:251]\ns_cbranch_vccz {ok}")
        if CFG.get('psl',1): a(f"s_sleep {CFG.get('psl',1)}")
        a(f"s_sub_u32 s67, s67, 1\ns_cmp_lg_u32 s67, 0\ns_cbranch_scc1 {lp}\n{ok}:")
    poll(89)
    ls(a,18)
    vm=VM()
    def hload(n,t):
        sg,k=divmod(n,2); b=HF+8*(n%PF)
        a(f"buffer_load_dwordx4 {vr(b+4*t,4)}, v{AH+t}, {sr(SWS)}, s{80+sg%7} offen offset:{k*1024} sc1"); vm.op(f"h{n}")
    for n in range(PF):
        for t in range(2): hload(n,t)
    ls(a,7)
    XR=WF+16*2
    tailwork=[]
    for i in range(8):
        tailwork+=[f"v_lshlrev_b32 v{XR+2*i}, 16, v{XP+i}",f"v_and_b32 v{XR+2*i+1}, 0xffff0000, v{XP+i}"]
    tailwork+=[f"v_lshlrev_b32 v249, 4, v{VL}",f"s_lshl_b32 s62, s{S_WAVE}, 12",f"s_add_u32 s62, s62, {L_RED}","v_add_u32 v250, s62, v249","v_xor_b32 v251, 8192, v250",
               "s_lshl2_add_u32 s62, s74, s75","s_lshl_b32 s62, s62, 11",f"s_add_u32 s62, s62, {L_Y}","v_add_u32 v252, s62, v249",f"s_mov_b32 s64, {hx(-LOG2E)}","s_mov_b32 s65, s64"]
    LP=CFG.get('lp',3)
    for n in range(28):
        need=[f"h{n}"]
        if n==14-PF: need.append('poll')
        if n==23: need.append('x')
        w=f"s_waitcnt vmcnt({vm.need(*need)})"
        if n>=NPRE: w+=f" lgkmcnt({8 if n<27 else 0})"
        a(w)
        if n==0: ls(a,11)
        if n==14-PF:
            poll(91,first=False)
            a(f"v_xor_b32 v{AH}, 4096, v{AH}\nv_xor_b32 v{AH+1}, 4096, v{AH+1}")
            if CFG.get('ct'): ls(a,13)
        if n==17:
            if CFG.get('ct'): ls(a,16)
            a("s_barrier")
            if CFG.get('ct'): ls(a,17)
        r=wreads(n+2) if NPRE<=n+2<28 else []
        hb=HF+8*(n%PF); wb=WF+16*(n%NPRE)
        order=[(t,(ee if t==0 else 3-ee)) for t in range(2) for ee in range(4)]
        if n==27: order=[(0,2),(0,3),(1,3),(1,2),(1,1),(1,0),(0,0),(0,1)]
        for i,(t,eb) in enumerate(order):
            d=ACC+(t*4+eb)*4
            a(f"{MF} {vr(d,4)}, {vr(wb+4*eb,4)}, {vr(hb+4*t,4)}, {'0' if n==0 else vr(d,4)}")
            if i<len(r): a(r[i])
            if n+PF<28 and i in (3,7): hload(n+PF,i//4)
            if n==LP and i==1:
                a(f"buffer_load_dwordx2 v[250:251], v{AP}, {sr(SWS)}, s91 offen sc1"); vm.op('poll')
            if n in (4,5) and i in (1,5):
                t2=n-4; eb2=i//4
                a(f"buffer_load_dwordx2 {vr(XP+(t2*2+eb2)*2,2)}, v{AXR}, {sr(SX)}, s{77+t2} offen offset:{32*eb2}"); vm.op('x')
            if n>=23 and tailwork: a(tailwork.pop(0))
    assert not tailwork
    ls(a,8)
    a("s_nop 3")
    for t,eb in ((0,0),(0,1),(1,1),(1,0)):
        a(f"ds_write_b128 v250, {vr(ACC+(t*4+2+eb)*4,4)} offset:{(t*2+eb)*1024}")
    a("s_waitcnt lgkmcnt(0)\ns_barrier")
    RD=32; Y=48; T=64
    for t in range(2):
        for eb in range(2):
            a(f"ds_read_b128 {vr(RD+(t*2+eb)*4,4)}, v251 offset:{(t*2+eb)*1024}")
        for eb in range(2):
            a(f"ds_read_b128 {vr(Y+(t*2+eb)*4,4)}, v252 offset:{eb*4096+t*1024}")
    ofl=CFG.get('ofl','none').replace('none','').replace('+',' ')
    for t in range(2):
        b=ACC+t*16
        a(f"s_waitcnt lgkmcnt({6-4*t})")
        for p in range(4): a(f"v_pk_add_f32 {vr(b+2*p,2)}, {vr(b+2*p,2)}, {vr(RD+t*8+2*p,2)}")
        for p in range(4): a(f"v_pk_mul_f32 {vr(T+2*p,2)}, {vr(b+2*p,2)}, s[64:65]")
        for p in range(8): a(f"v_exp_f32 v{T+p}, v{T+p}")
        a(f"s_waitcnt lgkmcnt({4-4*t})")
        for p in range(4): a(f"v_pk_mul_f32 {vr(b+2*p,2)}, {vr(b+2*p,2)}, {vr(Y+t*8+2*p,2)}")
        for p in range(4): a(f"v_pk_add_f32 {vr(T+2*p,2)}, {vr(T+2*p,2)}, 1.0 op_sel_hi:[1,0]")
        for p in range(8): a(f"v_rcp_f32 v{T+p}, v{T+p}")
        for p in range(4): a(f"v_pk_fma_f32 {vr(b+2*p,2)}, {vr(b+2*p,2)}, {vr(T+2*p,2)}, {vr(XR+t*8+2*p,2)}")
        o=72+4*t
        for p in range(4): a(f"v_cvt_pk_bf16_f32 v{o+p}, v{b+2*p}, v{b+2*p+1}")
        a(f"s_nop 1\nv_permlane16_swap_b32 v{o}, v{o+2}\nv_permlane16_swap_b32 v{o+1}, v{o+3}")
        a(f"buffer_store_dwordx4 {vr(o,4)}, v{AO}, {sr(SOUT)}, s{77+t} offen {ofl}")
    ls(a,9)
    if diag():
        a("s_waitcnt vmcnt(0)"); ls(a,10)
    ls_dump(a)

class Loader:
    def __init__(self,a): self.a=a; self.vm=VM(); self.m0=None; self.fill=[]; self.extra=[]
    def setm0(self,val):
        a=self.a
        if self.m0 is not None and -32768<=val-self.m0<=32767: a(f"s_addk_i32 m0, {val-self.m0}")
        else: a(f"s_add_u32 m0, s92, {val}")
        self.m0=val
    def dma(self,lds,vaddr,srdn,soff,tag,pre=None):
        self.setm0(lds)
        self.a(pre if pre else (self.fill.pop(0) if self.fill else "s_nop 0"))
        self.a(f"buffer_load_dwordx4 v{vaddr}, {sr(srdn)}, {soff} offen lds"); self.vm.op(tag)
        if self.extra: self.a(self.extra.pop(0))
    def issue(self,c,lo=0,hi=4):
        slot=c%3
        for p in range(lo,hi):
            self.dma(slot*SLOT+p*4096,10,SX,f"s{64+p}",f"c{c}")
            self.fill.append(f"s_addk_i32 s{64+p}, 128")
            self.dma(slot*SLOT+16384+p*4096,11,SB0,f"s{68+p}",f"c{c}")
            self.dma(slot*SLOT+32768+p*4096,11,SB1,f"s{68+p}",f"c{c}")
            self.fill.append(f"s_add_u32 s{68+p}, s{68+p}, s72")
    def wd_off(self,n,kh):
        sg,k=divmod(n,2)
        return f"s_add_u32 s62, s{80+sg%7}, {(kh*64+32*k)*1024}"
    def wd(self,n,tag='wd'):
        for kh in range(2):
            self.dma(pos(n)+kh*4096,18 if n<14 else 17,SWD,"s62",tag,pre=self.wd_off(n,kh))
    def wreg(self,n):
        for kh in range(2):
            self.a(self.wd_off(n,kh))
            self.a(f"buffer_load_dwordx4 {vr(128+((n-19)*2+kh)*4,4)}, v17, {sr(SWD)}, s62 offen"); self.vm.op('wr')
    def bar(self,c,*tags):
        a=self.a
        a(f"s_waitcnt vmcnt({self.vm.need(*tags)})")
        if CFG.get('lt',1) or c in (0,1): ls(a,2+2*c)
        a("s_barrier")
        if CFG.get('lt',1) or c in (0,1): ls(a,3+2*c)

def loader_start(a,L):
    sp=a.lab('lsp'); jn=a.lab('ljn')
    a(f"""
    s_sub_u32 s74, s{S_WAVE}, 4
    s_lshl_b32 s92, s74, 10
    v_lshrrev_b32 v1, 3, v{VL}
    v_lshl_add_u32 v1, s74, 3, v1
    v_bfe_u32 v2, v1, 1, 3
    v_and_b32 v3, 7, v{VL}
    v_xor_b32 v2, v2, v3
    v_lshlrev_b32 v2, 4, v2
    s_cmp_ge_u32 s{S_J}, 14
    s_cbranch_scc1 {sp}
    v_lshl_add_u32 v10, v1, 15, v2
    v_lshrrev_b32 v3, 4, v{VL}
    v_lshl_add_u32 v4, s74, 2, v3
    v_mul_u32_u24 v4, 3584, v4
    s_lshr_b32 s62, s74, 1
    v_lshl_or_b32 v3, s62, 2, v3
    v_lshlrev_b32 v3, 1, v3
    v_and_b32 v5, 15, v{VL}
    v_xor_b32 v3, v3, v5
    v_lshl_add_u32 v11, v3, 4, v4
    s_and_b32 s64, s{S_J}, 1
    s_lshl1_add_u32 s64, s{S_I}, s64
    s_lshl_b32 s64, s64, 10
    s_add_u32 s65, s64, 0x100000
    s_xor_b32 s66, s64, 0x400
    s_xor_b32 s67, s65, 0x400
    s_lshl_b32 s68, s{S_J}, 8
    s_mov_b32 s62, {16*3584}
    s_mov_b32 s72, {64*3584}
    s_mov_b32 s{SB0+2}, {W_BYTES}
    s_waitcnt lgkmcnt(0)
    s_mov_b64 s[{SB0}:{SB0+1}], s[{P_WG}:{P_WG+1}]
    s_mov_b64 s[{SB1}:{SB1+1}], s[{P_WU}:{P_WU+1}]
    s_branch {jn}
    {sp}:
    v_lshl_add_u32 v10, v1, 16, v2
    v_lshl_add_u32 v11, v1, 10, v2
    s_lshl_b32 s64, s{S_I}, 12
    s_add_u32 s65, s64, 0x400
    s_add_u32 s66, s64, 0x800
    s_add_u32 s67, s64, 0xc00
    s_sub_u32 s68, s{S_J}, 14
    s_lshl_b32 s68, s68, 17
    s_add_u32 s68, s68, 0x400
    s_mov_b32 s62, 0x8000
    s_movk_i32 s72, 128
    s_mov_b32 s{SB0+2}, {T_BYTES}
    s_waitcnt lgkmcnt(0)
    s_mov_b64 s[{SB0}:{SB0+1}], s[{P_HRE}:{P_HRE+1}]
    s_mov_b64 s[{SB1}:{SB1+1}], s[{P_HIM}:{P_HIM+1}]
    {jn}:
    s_mov_b32 s{SB0+3}, 0x00020000
    s_mov_b32 s{SB1+3}, 0x00020000
    s_mov_b32 s{SB1+2}, s{SB0+2}
    s_add_u32 s69, s68, s62
    s_add_u32 s70, s69, s62
    s_add_u32 s71, s70, s62
    """)
    srd_lo(a,SX,P_X)
    ls_first(a)
    if CFG.get('ldelay',0): a(f"s_sleep {CFG['ldelay']}")
    ls(a,1)

def loader(a,L):
    vm=L.vm
    CB=64; GA=208; YA=224
    epoch_load(a,9)
    L.issue(0); L.issue(1,0,2)
    tile_map2(a)
    srd(a,SWS,P_WS,ws_end()); srd(a,SWD,P_WD,W_BYTES)
    a(f"""
    v_lshrrev_b32 v7, 4, v{VL}
    v_and_b32 v6, 7, v{VL}
    v_lshlrev_b32 v5, 1, v7
    v_xor_b32 v6, v6, v5
    v_lshlrev_b32 v6, 4, v6
    v_lshl_add_u32 v6, v1, 10, v6
    s_and_b32 s60, s{S_T1}, 1
    s_lshl_b32 s60, s60, 10
    s_add_u32 s60, s60, s{S_NB}
    v_lshl_add_u32 v18, s60, 7, v6
    v_xor_b32 v17, 0x20000, v18
    """)
    stage_rot(a,60,17)
    a(f"""
    s_lshl2_add_u32 s60, s2, s74
    s_mul_i32 s60, s60, 1792
    s_add_u32 s76, s{P_WD}, s60
    s_addc_u32 s77, s{P_WD+1}, 0
    s_lshl2_add_u32 s60, s{S_LOC}, s74
    s_mul_i32 s60, s60, {14*1024}
    s_add_u32 s60, s60, 384
    s_add_u32 s78, s{P_WD}, s60
    s_addc_u32 s79, s{P_WD+1}, 0
    """)
    sp2=a.lab('gspec'); j2=a.lab('gjoin')
    a(f"v_and_b32 v5, 31, v{VL}\ns_and_b32 s60, s74, 1\ns_lshr_b32 s63, s74, 1\ns_cmp_ge_u32 s{S_J}, 14\ns_cbranch_scc1 {sp2}")
    a(f"v_and_b32 v3, 1, v5\nv_lshlrev_b32 v3, 10, v3\nv_and_b32 v4, 30, v5\ns_and_b32 s61, s{S_J}, 1\ns_xor_b32 s63, s63, s61\ns_lshl1_add_u32 s61, s{S_I}, s60\ns_lshl_b32 s61, s61, 5\ns_add_u32 s61, s61, s63\nv_add3_u32 v20, v3, v4, s61\ns_branch {j2}\n{sp2}:")
    a(f"s_lshl1_add_u32 s61, s{S_I}, s63\ns_lshl_b32 s61, s61, 6\ns_add_u32 s61, s61, s60\nv_lshl_add_u32 v20, v5, 1, s61\n{j2}:")
    a(f"""
    v_lshlrev_b32 v20, 4, v20
    s_lshr_b32 s61, s92, 1
    s_add_u32 s61, s61, {L_STAT}
    v_lshl_add_u32 v12, v5, 4, s61
    s_lshr_b32 s61, s92, 3
    s_add_u32 s61, s61, {L_RSTD}
    v_lshl_add_u32 v13, v5, 2, s61
    s_add_u32 s61, s92, {L_CS}
    v_lshl_add_u32 v14, v{VL}, 4, s61
    v_lshlrev_b32 v5, 4, v5
    v_lshrrev_b32 v6, 5, v{VL}
    v_mul_u32_u24 v6, {1792*4}, v6
    s_min_u32 s61, s{S_J}, 13
    s_lshl_b32 s61, s61, 9
    v_add3_u32 v22, v5, v6, s61
    s_mul_i32 s88, s74, {3584*4}
    s_add_u32 s88, s88, {WS_CS}
    s_mov_b32 s87, {WS_ST}
    v_mov_b32 v15, 0x0c0c0400
    v_mov_b32 v16, 0x04000c0c
    v_lshl_add_u32 v21, v{VL}, 4, s92
    v_add_u32 v23, {2*SLOT}, v21
    """)
    def spf(rnd):
        if not CFG.get('spf',1): return
        if rnd in (1,2):
            for q in range(14): a(f"s_load_dword s95, s[76:77], {((rnd-1)*14+q)*64}")
        if rnd in (3,4):
            for q in range(14): a(f"s_load_dword s95, s[78:79], {((rnd-3)*7+q//2)*1024+(q&1)*64}")
    wr=list(range(19,28))
    sched=[int(c) for c in str(CFG.get('wrs','0011111')).zfill(7)]
    def wregs(rnd):
        for _ in range(sched[rnd-1]):
            if wr: L.wreg(wr.pop(0))
    so=CFG.get('so',0)
    L.bar(0,'c0')
    L.issue(1,2,4); L.issue(2,0,2); spf(1-so)
    epoch_tag(a,9)
    L.bar(1,'c1')
    L.issue(2,2,4); L.issue(3); spf(2-so); wregs(1)
    L.bar(2,'c2')
    L.issue(4); spf(3-so); wregs(2)
    L.bar(3,'c3')
    L.issue(5); spf(4-so); wregs(3)
    L.bar(4,'c4')
    def gather():
        a(f"buffer_load_dwordx4 v[24:27], v20, {sr(SWS)}, s87 offen sc1\nbuffer_load_dwordx4 v[28:31], v22, {sr(SWS)}, s88 offen sc1")
    gather(); vm.op('g'); vm.op('g')
    L.issue(6); spf(5-so); wregs(4)
    L.bar(5,'c5','g')
    check=["v_perm_b32 v3, v29, v28, v15","v_perm_b32 v4, v31, v30, v16",f"v_xor_b32 v5, s{S_TAG}, v25","v_or_b32 v3, v3, v4",f"v_xor_b32 v3, s{S_TAG}, v3","v_or_b32 v3, v3, v5"]
    L.extra=list(check)
    L.issue(7,0,2)
    rt=a.lab('rt'); ok=a.lab('ok')
    a(f"v_cmp_ne_u32 vcc, 0, v3\ns_cbranch_vccz {ok}\ns_mov_b32 s89, {SPIN}\n{rt}:")
    gather(); a("s_waitcnt vmcnt(0)")
    for x in check: a(x)
    a(f"v_cmp_ne_u32 vcc, 0, v3\ns_cbranch_vccz {ok}\ns_sleep 2\ns_sub_u32 s89, s89, 1\ns_cmp_lg_u32 s89, 0\ns_cbranch_scc1 {rt}\n{ok}:")
    L.extra=[f"v_mul_f32 v25, {hx(-LOG2E)}, v27\nds_write_b32 v13, v27","v_and_b32 v28, 0xffffff00, v28\nds_write_b128 v12, v[24:27]","v_and_b32 v29, 0xffffff00, v29",
             "v_and_b32 v30, 0xffffff00, v30","v_and_b32 v31, 0xffffff00, v31","ds_write_b128 v14, v[28:31]"]
    L.issue(7,2,4); wregs(5)
    L.bar(6,'c6')
    for n in range(0,6): L.wd(n)
    wregs(6)
    L.bar(7,'c7')
    for n in range(6,12): L.wd(n)
    wregs(7)
    a("s_waitcnt lgkmcnt(0)")
    ls(a,18); a("s_barrier"); ls(a,19)
    for n in range(12,19): L.wd(n)
    for n in wr: L.wreg(n)
    a(f"s_waitcnt vmcnt(0)")
    ls(a,20); a("s_barrier"); ls(a,21)
    a(f"""
    v_and_b32 v1, 15, v{VL}
    v_lshrrev_b32 v2, 4, v{VL}
    s_lshl2_add_u32 s60, s{S_NB}, s74
    s_lshl_b32 s60, s60, 4
    v_add_u32 v3, s60, v1
    v_sub_u32 v4, 512, v3
    s_sub_u32 s61, 32, s{S_T1}
    s_and_b32 s61, s61, 31
    s_mov_b32 s63, {hx(1/2048.)}
    s_mov_b32 s64, {hx(-1/2048.)}
    s_sub_u32 s65, 496, s60
    s_max_u32 s66, s60, 1
    s_sub_u32 s66, s66, 1
    s_add_u32 s67, s60, 14
    s_cmp_ge_u32 s{S_NB}, 4
    s_cselect_b32 s61, s61, s{S_T1}
    s_cselect_b64 vcc, -1, 0
    s_cselect_b32 s90, s64, s63
    s_cselect_b32 s66, s65, s66
    s_cselect_b32 s67, s65, s67
    v_cndmask_b32 v4, v3, v4, vcc
    v_subrev_u32 v4, 1, v4
    v_lshlrev_b32 v4, 4, v4
    v_lshl_add_u32 v4, v2, 12, v4
    v_cmp_eq_u32 vcc, 0, v3
    v_mov_b32 v5, {OOB}
    s_lshl_b32 s61, s61, 16
    v_cndmask_b32 v19, v4, v5, vcc
    s_add_u32 s91, s61, {WS_G}
    s_lshr_b32 s66, s66, 5
    s_lshr_b32 s67, s67, 5
    s_and_b32 s65, s66, 4
    s_add_u32 s66, s66, s65
    s_and_b32 s65, s67, 4
    s_add_u32 s67, s67, s65
    s_sub_u32 s67, s67, s66
    v_and_b32 v5, 1, v2
    v_mul_u32_u24 v5, s67, v5
    v_lshl_add_u32 v5, v1, 7, v5
    v_add_lshl_u32 v20, v5, s66, 7
    s_mov_b32 s87, {WS_FL+14*1024+512}
    v_lshlrev_b32 v2, 2, v2
    v_cvt_f32_u32 v2, v2
    """)
    a("s_barrier")
    ls(a,22)
    L.m0=None
    def consts(tb):
        a(f"v_add_u32 v3, {16*tb}, v1\nv_lshlrev_b32 v3, 5, v3\nv_add_u32 v3, s{S_T1}, v3\nv_cvt_f32_u32 v3, v3\nv_mul_f32 v3, s90, v3")
        for k in range(4):
            a(f"v_add_f32 v40, {hx(16.0*k)}, v2\nv_mul_f32 v40, v40, v3\nv_add_f32 v41, v40, v3\nv_add_f32 v42, v41, v3\nv_add_f32 v43, v42, v3")
            for b in range(4): a(f"v_cos_f32 v{44+b}, v{40+b}\nv_sin_f32 v{48+b}, v{40+b}")
            for b in range(4): a(f"v_cvt_pk_bf16_f32 v{CB+(tb*4+k)*4+b}, v{44+b}, v{48+b}")
    for n in range(19,28):
        u=pos(n)
        for kh in range(2):
            base,off=(23,u-2*SLOT) if u>=2*SLOT else (21,u)
            a(f"ds_write_b128 v{base}, {vr(128+((n-19)*2+kh)*4,4)} offset:{off+kh*4096}")
    ls(a,27)
    for tb in range(4): consts(tb)
    ls(a,23)
    lp=a.lab('poll'); ok=a.lab('ok')
    a(f"s_mov_b32 s89, {SPIN}\n{lp}:")
    a(f"buffer_load_dwordx2 v[24:25], v20, {sr(SWS)}, s87 offen sc1\ns_waitcnt vmcnt(0)\nv_cmp_ne_u64 vcc, s[{S_TAG}:{S_TAG+1}], v[24:25]\ns_cbranch_vccz {ok}")
    a(f"s_sleep 4\ns_sub_u32 s89, s89, 1\ns_cmp_lg_u32 s89, 0\ns_cbranch_scc1 {lp}\n{ok}:")
    for k in range(4):
        a(f"buffer_load_dwordx4 {vr(GA+4*k,4)}, v19, {sr(SWS)}, s91 offen sc1\ns_add_u32 s91, s91, {4*4096}")
    nb=a.lab('nobump')
    a(f"s_or_b32 s60, s2, s74\ns_cbranch_scc1 {nb}\ns_mov_b32 s60, {WS_EP}\nv_mov_b32 v24, s{S_TAG}\ns_mov_b64 exec, 1\nbuffer_store_dword v24, off, {sr(SWS)}, s60 sc1\ns_mov_b64 exec, -1\n{nb}:")
    a("s_waitcnt lgkmcnt(0)")
    ls(a,24)
    a("s_barrier")
    a("s_waitcnt vmcnt(0)")
    for tb in range(4):
        for k in range(4):
            a(f"{MF} {vr(YA+4*tb,4)}, {vr(GA+4*k,4)}, {vr(CB+(tb*4+k)*4,4)}, {'0' if k==0 else vr(YA+4*tb,4)}")
    a(f"s_lshl_b32 s60, s74, 12\ns_add_u32 s60, s60, {L_Y}\nv_lshl_add_u32 v1, v{VL}, 4, s60\ns_nop 7")
    for tb in range(4):
        a(f"ds_write_b128 v1, {vr(YA+4*tb,4)} offset:{1024*tb}")
    a("s_waitcnt lgkmcnt(0)")
    ls(a,25)
    a("s_barrier")
    ls(a,26)
    ls_dump(a)

def kernel_main(a,name):
    kbegin(a,name)
    end=a.lab('end'); ld=a.lab('ld'); sp=a.lab('sp'); s2=a.lab('stage2')
    r1=a.lab('r1'); r3=a.lab('r3'); rj=a.lab('rj'); rt=a.lab('rt'); rz=a.lab('rz'); c0=a.lab('c0'); c1=a.lab('c1')
    a(f"s_cmp_ge_u32 s2, 256\ns_cbranch_scc1 {end}")
    if diag(): a("s_memrealtime s[94:95]")
    a("s_load_dwordx16 s[32:47], s[0:1], 0\ns_load_dwordx8 s[48:55], s[0:1], 64")
    if CFG.get('cpf',1):
        a(f"""
        s_getpc_b64 s[60:61]
        L_pc_here:
        s_bfe_u32 s62, s2, 0x20003
        v_lshl_add_u32 v1, v0, 2, s62
        v_lshlrev_b32 v1, 7, v1
        v_min_u32 v1, L_code_end-L_pc_here-4, v1
        global_load_dword v252, v1, s[60:61]
        """)
    a(f"v_lshrrev_b32 v1, 6, v0\nv_and_b32 v{VL}, 63, v0\nv_readfirstlane_b32 s{S_WAVE}, v1")
    tile_map(a)
    srd_hi(a,SX,XB_BYTES)
    a(f"s_cmp_ge_u32 s{S_WAVE}, 4\ns_cbranch_scc1 {ld}")
    a(f"s_cmp_eq_u32 s{S_WAVE}, 3\ns_cbranch_scc1 {r3}")
    a(f"s_cmp_lg_u32 s{S_WAVE}, 0\ns_cbranch_scc1 {r1}")
    cs_ids(a)
    a(f"s_cmp_ge_u32 s60, 14\ns_cbranch_scc1 {rt}")
    colsum_loads(a)
    cs_addr(a,68)
    a(f"s_mov_b32 s87, 0\ns_branch {rz}\n{r1}:")
    row_ids(a); rows_loads(a)
    st_addr(a,68)
    a(f"s_lshl4_add_u32 s68, s60, s68\ns_mov_b32 s87, 1\ns_branch {rz}\n{ld}:")
    L=Loader(a)
    loader_start(a,L)
    loader(a,L)
    a(f"s_endpgm\n{rt}:")
    table_touch(a)
    a(f"s_mov_b32 s87, 2\ns_branch {rz}\n{r3}:")
    a(f"s_waitcnt lgkmcnt(0)")
    epoch_load(a,128)
    a(f"s_mov_b32 s87, 2\n{rz}:\nv_mov_b32 v{SA}, {OOB}")
    ls_first(a)
    if CFG.get('prio',1): a("s_setprio 1")
    scalars2(a)
    sp0=a.lab('sp0'); j0=a.lab('j0')
    a(f"s_cmp_ge_u32 s{S_J}, 14\ns_cbranch_scc1 {sp0}")
    compute1_setup(a,False); epilogue_ffn_setup(a)
    a(f"s_branch {j0}\n{sp0}:")
    compute1_setup(a,True); dft32_consts(a)
    a(f"{j0}:")
    zero_acc(a)
    a(f"s_cmp_eq_u32 s87, 1\ns_cbranch_scc1 {c1}\ns_cmp_eq_u32 s87, 0\ns_cbranch_scc1 {c0}")
    a("s_waitcnt vmcnt(0)"); epoch_tag(a,128)
    a(f"s_branch {rj}\n{c0}:")
    colsum_finish(a)
    a(f"s_branch {rj}\n{c1}:")
    rows_finish(a)
    a(f"{rj}:")
    a(f"s_cmp_ge_u32 s{S_J}, 14\ns_cbranch_scc1 {sp}")
    mainloop1(a,False); ls(a,3); epilogue_ffn(a)
    a(f"{s2}:")
    compute2(a)
    a(f"s_endpgm\n{sp}:")
    mainloop1(a,True); ls(a,3); epilogue_spec(a)
    a(f"s_branch {s2}")
    a(f"{end}:\ns_endpgm\nL_code_end:")

def build(cfg):
    CFG.clear(); CFG.update(cfg)
    a=Asm()
    name=NAME+'_kernel'
    if cfg.get('probe'):
        a(f"; @launch kernel={name} grid=(256,1,1) block=(512,1,1) lds={LDS}")
        a(f"; @launch kernel=probe_kernel grid=(1,1,1) block=(64,1,1) lds=0")
    else:
        a(f"; @launch grid=(256,1,1) block=(512,1,1) lds={LDS}")
    a('.amdgcn_target "amdgcn-amd-amdhsa--gfx950"\n.text')
    kernel_main(a,name); names=[name]
    if cfg.get('probe'): names.append(kernel_probe(a))
    a('.section .rodata,"a"')
    for n in names:
        a('.p2align 6')
        a.l.append(kd(n,256,102,256))
    return a.text()

if __name__=='__main__':
    cfg={}
    for kv in sys.argv[2:]:
        k,v=kv.split('='); cfg[k]=int(v) if v.lstrip('-').isdigit() else v
    open(sys.argv[1],'w').write(build(cfg))
```

```python
import sys, struct
NAME='recurrent_scan__spectral_fnet__swiglu_ffn__prompt'
LOG2E=1.4426950408889634
def f2u(x): return struct.unpack('<I',struct.pack('<f',x))[0]
def hx(x): return hex(f2u(x))

WS_H=0; WS_G=0x700000; WS_ST=0x900000; WS_CS=0x908000; WS_EP=0x918000; WS_FL=0x9C0000
WS_TRACE=0x940000
CFG={}
def diag(): return CFG.get('probe') or CFG.get('trace')
def ws_end(): return 0xA00000
S_TAG=6
OOB=0x40000000

class Asm:
    def __init__(self): self.l=[]; self.n=0
    def __call__(self,s):
        for line in s.split('\n'):
            line=line.strip()
            if line: self.l.append(('' if line.endswith(':') or line.startswith('.') or line.startswith(';') else '    ')+line)
    def lab(self,b): self.n+=1; return f"L_{b}_{self.n}"
    def text(self): return '\n'.join(self.l)+'\n'

class VM:
    def __init__(self): self.ops=[]
    def op(self,tag): self.ops.append(tag)
    def need(self,*tags):
        last=max(i for i,t in enumerate(self.ops) if t in tags)
        n=len(self.ops)-1-last
        assert n<=63, n
        return n

def kd(name,vgpr,sgpr,accum):
    return f""".amdhsa_kernel {name}
  .amdhsa_next_free_vgpr {vgpr}
  .amdhsa_next_free_sgpr {sgpr}
  .amdhsa_accum_offset {accum}
  .amdhsa_group_segment_fixed_size 0
  .amdhsa_kernarg_size 96
  .amdhsa_user_sgpr_count 2
  .amdhsa_user_sgpr_kernarg_segment_ptr 1
  .amdhsa_system_sgpr_workgroup_id_x 1
  .amdhsa_float_denorm_mode_32 3
.end_amdhsa_kernel
"""
def kbegin(a,name): a(f".globl {name}\n.p2align 8\n.type {name},@function\n{name}:")
def srd(a,d,base,nbytes):
    a(f"s_mov_b64 s[{d}:{d+1}], s[{base}:{base+1}]\ns_mov_b32 s{d+2}, {nbytes}\ns_mov_b32 s{d+3}, 0x00020000")
def srd_hi(a,d,nbytes): a(f"s_mov_b32 s{d+2}, {nbytes}\ns_mov_b32 s{d+3}, 0x00020000")
def srd_lo(a,d,base): a(f"s_mov_b64 s[{d}:{d+1}], s[{base}:{base+1}]")
def vr(b,n): return f"v[{b}:{b+n-1}]" if n>1 else f"v{b}"
def sr(b): return f"s[{b}:{b+3}]"
MF="v_mfma_f32_16x16x32_bf16"

P_X,P_HRE,P_HIM,P_WG,P_WU,P_WD,P_OUT,P_DBG,P_WS=32,38,40,44,46,48,50,52,54
SX,SB0,SB1,SWS,SWD,SOUT=8,12,16,20,24,28
S_WAVE=56; S_I=57; S_J=58; S_T1=59; S_NB=3; S_A=100; S_G=101; S_LOC=93; S_X=4
VL=255
SPIN=100000
XB_BYTES=2048*512*2; W_BYTES=512*1792*2; T_BYTES=512*512*2

def ls(a,idx):
    if diag(): a(f"s_memrealtime s[96:97]\ns_waitcnt lgkmcnt(0)\nv_writelane_b32 v254, s96, {idx}")
def ls_first(a):
    if diag(): a(f"v_writelane_b32 v254, s94, 0")
def ls_dump(a):
    if diag(): a(f"s_lshl_b32 s98, s2, 11\ns_lshl_b32 s99, s{S_WAVE}, 8\ns_add_u32 s98, s98, s99\ns_add_u32 s98, s98, {WS_TRACE}\nv_lshlrev_b32 v253, 2, v{VL}\nbuffer_store_dword v254, v253, {sr(SWS)}, s98 offen")
def kernel_probe(a):
    pa,pb=CFG['probe'].split(':'); K=CFG.get('K',10)
    name='probe_kernel'; kbegin(a,name); end=a.lab('end')
    a(f"s_cmp_ge_u32 s2, 1\ns_cbranch_scc1 {end}")
    a("s_load_dwordx2 s[54:55], s[0:1], 88\ns_waitcnt lgkmcnt(0)")
    srd(a,SWS,P_WS,ws_end())
    a("v_lshlrev_b32 v1, 11, v0")
    for r,p in ((4,pa),(8,pb)):
        w,i=p[3:].split('.')
        for q in range(4):
            a(f"s_mov_b32 s60, {WS_TRACE+int(w)*256+int(i)*4+q*64*2048}\nbuffer_load_dword v{r+q}, v1, {sr(SWS)}, s60 offen")
    a("s_waitcnt vmcnt(0)\ns_nop 0\nv_readfirstlane_b32 s61, v4\ns_nop 3")
    for r in range(4,12): a(f"v_subrev_u32 v{r}, s61, v{r}")
    for r,p,sd in ((4,pa,62),(8,pb,63)):
        op=p[:3]
        vop={'min':'v_min_i32','max':'v_max_i32','avg':'v_add_u32'}[op]; sop={'min':'s_min_i32','max':'s_max_i32','avg':'s_add_u32'}[op]
        a(f"{vop} v{r}, v{r}, v{r+1}\n{vop} v{r+2}, v{r+2}, v{r+3}\n{vop} v{r}, v{r}, v{r+2}\ns_nop 0")
        a(f"v_readlane_b32 s{sd}, v{r}, 0")
        for l in range(1,64): a(f"v_readlane_b32 s64, v{r}, {l}\ns_nop 0\n{sop} s{sd}, s{sd}, s64")
        a(f"s_mul_i32 s{sd}, s{sd}, {K}")
        if op=='avg': a(f"s_ashr_i32 s{sd}, s{sd}, 8")
    a("s_sub_u32 s62, s63, s62\ns_max_i32 s62, s62, 0\ns_min_i32 s62, s62, 100000")
    a("s_memrealtime s[66:67]\ns_waitcnt lgkmcnt(0)")
    lp=a.lab('spin')
    a(f"{lp}:\ns_memrealtime s[68:69]\ns_waitcnt lgkmcnt(0)\ns_sub_u32 s68, s68, s66\ns_cmp_lt_u32 s68, s62\ns_cbranch_scc1 {lp}")
    a(f"{end}:\ns_endpgm")
    return name

SLOT=49152
L_STAT=3*SLOT+8192; L_RSTD=L_STAT+2048; L_CS=L_RSTD+512
L_Y=24576; L_RED=49152; LDS=163840; L_SIG=LDS-16
NPRE=9
def pos(n):
    if n>=19: n-=19
    if n==18: return 3*SLOT
    return (2*SLOT,0,SLOT)[n//6]+(n%6)*8192

def tile_map(a):
    a(f"""
    s_lshr_b32 s{S_LOC}, s2, 3
    s_and_b32 s{S_A}, s2, 1
    s_bfe_u32 s{S_G}, s2, 0x20001
    s_bfe_u32 s60, s2, 0x10002
    s_bfe_u32 s61, s2, 0x10001
    s_mul_i32 s62, s60, 7
    s_lshr_b32 s63, s2, 6
    s_lshl2_add_u32 s63, s61, s63
    s_and_b32 s64, s{S_LOC}, 3
    s_lshl2_add_u32 s65, s61, s64
    s_and_b32 s66, s{S_LOC}, 7
    s_cmp_ge_u32 s{S_LOC}, 24
    s_cselect_b32 s63, 3, s63
    s_cselect_b32 s66, s65, s66
    s_add_u32 s{S_J}, s62, s63
    s_lshl3_add_u32 s{S_X}, s{S_A}, s66
    s_lshl2_add_u32 s64, s{S_A}, s64
    s_lshl3_add_u32 s64, s61, s64
    s_add_u32 s60, s60, 14
    s_cmp_ge_u32 s{S_LOC}, 28
    s_cselect_b32 s{S_J}, s60, s{S_J}
    s_cselect_b32 s{S_I}, s64, s{S_X}
    """)
def tile_map2(a):
    a(f"""
    s_and_b32 s60, s2, 7
    s_bfe_u32 s62, s{S_LOC}, 0x10001
    s_lshl1_add_u32 s{S_T1}, s60, s62
    s_sub_u32 s62, 32, s{S_T1}
    s_cmp_eq_u32 s{S_T1}, 0
    s_cselect_b32 s62, 16, s62
    s_bitcmp1_b32 s{S_LOC}, 0
    s_cselect_b32 s{S_T1}, s62, s{S_T1}
    s_lshr_b32 s{S_NB}, s{S_LOC}, 2
    """)

def stage_rot(a,s,sh):
    a(f"s_and_b32 s{s}, s{S_LOC}, 1\ns_mul_i32 s{s}, s{s}, 3\ns_add_u32 s{s}, s{s}, s{S_NB}\ns_sub_u32 s62, s{s}, 7\ns_cmp_ge_u32 s{s}, 7\ns_cselect_b32 s{s}, s62, s{s}")
    for sg in range(7):
        a(f"s_lshl_b32 s{80+sg}, s{s}, {sh+1}\ns_add_u32 s{s}, s{s}, 1\ns_cmp_eq_u32 s{s}, 7\ns_cselect_b32 s{s}, 0, s{s}")

def epoch_load(a,v):
    a(f"v_mov_b32 v{v}, {WS_EP}\nglobal_load_dword v{v}, v{v}, s[{P_WS}:{P_WS+1}] sc1")
def epoch_tag(a,v):
    a(f"v_readfirstlane_b32 s{S_TAG}, v{v}\ns_nop 0\ns_mul_i32 s{S_TAG}, s{S_TAG}, 0x9e3779b1\ns_add_u32 s{S_TAG}, s{S_TAG}, 0x7f4a7c15\ns_not_b32 s{S_TAG+1}, s{S_TAG}")

SD=160; SA=253
def cs_ids(a):
    a(f"""
    s_and_b32 s61, s{S_X}, 3
    s_bfe_u32 s63, s{S_X}, 0x10002
    s_lshl1_add_u32 s63, s{S_J}, s63
    s_lshr_b32 s69, s{S_X}, 3
    """)
def cs_addr(a,sd):
    a(f"""
    s_mul_i32 s{sd}, s61, {3584*4}
    s_mul_i32 s62, s69, {1792*4}
    s_add_u32 s{sd}, s{sd}, s62
    s_lshl_b32 s62, s63, 8
    s_add_u32 s{sd}, s{sd}, s62
    s_add_u32 s{sd}, s{sd}, {WS_CS}
    """)
def row_ids(a):
    a(f"""
    s_and_b32 s71, s{S_LOC}, 7
    s_lshr_b32 s70, s{S_LOC}, 3
    s_and_b32 s62, s{S_G}, 1
    s_lshl2_add_u32 s70, s62, s70
    s_lshl3_add_u32 s70, s{S_A}, s70
    s_lshr_b32 s62, s{S_G}, 1
    s_lshl4_add_u32 s70, s62, s70
    """)
def st_addr(a,sd):
    a(f"s_lshl3_add_u32 s{sd}, s70, s71\ns_lshl_b32 s{sd}, s{sd}, 7\ns_add_u32 s{sd}, s{sd}, {WS_ST}")
def flag_addr(a,sd):
    a(f"s_lshl4_add_u32 s{sd}, s{S_I}, s{S_J}\ns_lshl_b32 s{sd}, s{sd}, 9\ns_add_u32 s{sd}, s{sd}, {WS_FL}")

def colsum_loads(a):
    a(f"""
    v_lshrrev_b32 v1, 3, v{VL}
    v_mul_u32_u24 v1, {4*3584}, v1
    v_and_b32 v2, 7, v{VL}
    v_lshl_add_u32 v1, v2, 4, v1
    s_mul_i32 s72, s61, 3584
    s_lshl_b32 s62, s63, 7
    s_add_u32 s72, s72, s62
    s_mov_b32 s73, {32*3584}
    """)
    srd_hi(a,64,W_BYTES)
    a(f"s_cmp_eq_u32 s69, 1\ns_waitcnt lgkmcnt(0)\ns_cselect_b64 s[64:65], s[{P_WU}:{P_WU+1}], s[{P_WG}:{P_WG+1}]")
    epoch_load(a,128)
    for n in range(16):
        a(f"buffer_load_dwordx4 {vr(160+4*n,4)}, v1, s[64:67], s72 offen")
        if n<15: a(f"s_add_u32 s72, s72, s73")
def colsum_finish(a):
    a(f"""
    v_and_b32 v140, 15, v{VL}
    v_and_b32 v141, 1, v140
    v_lshlrev_b32 v141, 4, v141
    v_mov_b32 v142, 0x3f80
    v_lshlrev_b32 v141, v141, v142
    v_lshrrev_b32 v140, 1, v140
    """)
    for p in range(4):
        a(f"v_cmp_eq_u32 vcc, {p}, v140\ns_nop 1\nv_cndmask_b32 v{132+p}, 0, v141, vcc")
    a(f"""
    v_and_b32 v140, 7, v{VL}
    v_lshlrev_b32 v140, 5, v140
    v_and_b32 v141, 16, v{VL}
    v_add3_u32 v140, v140, v141, s68
    v_and_b32 v141, 0x28, v{VL}
    v_cmp_eq_u32 vcc, 0, v141
    s_nop 1
    v_cndmask_b32 v{SA}, v{SA}, v140, vcc
    v_mov_b32 v140, 0x07060500
    v_mov_b32 v141, 0x07060501
    v_mov_b32 v142, 0x07060502
    v_mov_b32 v143, 0x07060503
    """)
    a("s_waitcnt vmcnt(16)"); epoch_tag(a,128)
    for n in range(16):
        a(f"s_waitcnt vmcnt({15-n})")
        a(f"{MF} v[136:139], v[132:135], {vr(160+4*n,4)}, {'0' if n==0 else 'v[136:139]'}")
    a("s_nop 7\ns_nop 1")
    for j in range(4):
        a(f"v_add_f32_dpp v{SD+j}, v{136+j}, v{136+j} row_ror:8 row_mask:0xf bank_mask:0xf")
    for j in range(4):
        a(f"v_perm_b32 v{SD+j}, v{SD+j}, s{S_TAG}, v{140+j}")
def table_touch(a):
    a(f"""
    s_sub_u32 s63, s63, 28
    s_lshl2_add_u32 s63, s63, s61
    s_lshl_b32 s63, s63, 14
    s_add_u32 s63, s63, 1024
    v_lshlrev_b32 v1, 8, v{VL}
    """)
    srd_hi(a,64,T_BYTES)
    a(f"s_cmp_eq_u32 s69, 1\ns_waitcnt lgkmcnt(0)\ns_cselect_b64 s[64:65], s[{P_HIM}:{P_HIM+1}], s[{P_HRE}:{P_HRE+1}]")
    epoch_load(a,128)
    a(f"buffer_load_dword v252, v1, s[64:67], s63 offen\nbuffer_load_dword v252, v1, s[64:67], s63 offen offset:128")

def rows_loads(a):
    a(f"""
    s_sub_u32 s60, s{S_WAVE}, 1
    s_lshl1_add_u32 s63, s70, s60
    s_lshl_b32 s62, s71, 8
    s_add_u32 s63, s63, s62
    s_lshl_b32 s63, s63, 10
    v_lshrrev_b32 v1, 4, v{VL}
    v_and_b32 v2, 15, v{VL}
    v_lshlrev_b32 v3, 4, v2
    v_lshl_add_u32 v3, v1, 16, v3
    s_waitcnt lgkmcnt(0)
    """)
    srd_lo(a,SX,P_X)
    epoch_load(a,128)
    for p in range(4):
        a(f"buffer_load_dwordx4 {vr(168+4*p,4)}, v3, {sr(SX)}, s63 offen offset:{256*p}")
def rows_finish(a):
    a(f"""
    v_and_b32 v141, 15, v{VL}
    v_cmp_eq_u32 vcc, 0, v141
    v_lshl_add_u32 v140, v{VL}, 1, s68
    v_mov_b32 v131, 0x3f803f80
    v_cndmask_b32 v{SA}, v{SA}, v140, vcc
    v_mov_b32 v132, 0
    v_mov_b32 v133, 0
    v_mov_b32 v134, 0x00003f80
    v_mov_b32 v135, 0x3f800000
    v_mov_b32 v136, 0
    v_mov_b32 v137, 0
    """)
    a("s_waitcnt vmcnt(4)"); epoch_tag(a,128)
    for p in range(4):
        a(f"s_waitcnt vmcnt({3-p})")
        for r in range(4):
            a(f"v_dot2c_f32_bf16 v{132+(r&1)}, v{168+4*p+r}, v131")
    a("s_nop 2\nv_add_f32 v132, v132, v133")
    def red(v):
        for s in (8,4,2,1):
            a(f"s_nop 1\nv_add_f32_dpp v{v}, v{v}, v{v} row_ror:{s} row_mask:0xf bank_mask:0xf")
    red(132)
    a(f"v_mul_f32 v132, {hx(-1.0/512)}, v132")
    for p in range(4):
        for r in range(4):
            a(f"v_dot2_f32_bf16 v{144+2*r}, v{168+4*p+r}, v134, v132\nv_dot2_f32_bf16 v{145+2*r}, v{168+4*p+r}, v135, v132")
        for r in range(8):
            a(f"v_fmac_f32 v{136+(r&1)}, v{144+r}, v{144+r}")
    a("v_add_f32 v136, v136, v137")
    red(136)
    a(f"""
    v_mul_f32 v136, {hx(1.0/512)}, v136
    v_cvt_pk_bf16_f32 v136, v136, v132
    v_and_b32 v{SD}, 0xffff0000, v136
    v_lshlrev_b32 v136, 16, v136
    v_add_f32 v136, {hx(1e-5)}, v136
    v_cvt_pk_bf16_f32 v136, v136, v136
    v_lshlrev_b32 v136, 16, v136
    v_sqrt_f32 v136, v136
    s_nop 0
    v_cvt_pk_bf16_f32 v136, v136, v136
    v_lshlrev_b32 v136, 16, v136
    v_rcp_f32 v{SD+3}, v136
    v_mul_f32 v{SD+2}, v136, v136
    v_mov_b32 v{SD+1}, s{S_TAG}
    """)

XA,XB,WA,WB=128,160,192,208
AX0,AX1,AW0,AW1=224,225,226,227
FC,FS,FN=228,236,244

def compute1_setup(a,spec):
    a(f"""
    v_and_b32 v129, 15, v{VL}
    v_lshrrev_b32 v130, 4, v{VL}
    v_lshrrev_b32 v131, 1, v129
    v_xor_b32 v131, v131, v130
    v_lshlrev_b32 v131, 4, v131
    v_lshl_add_u32 v{AX0}, v129, 7, v131
    v_xor_b32 v{AX1}, 64, v{AX0}
    s_mov_b32 s73, {SLOT}
    """)
    if spec:
        a(f"s_lshl_b32 s62, s{S_WAVE}, 12\nv_add_u32 v{AW0}, s62, v{AX0}\nv_add_u32 v{AW1}, s62, v{AX1}")
    else:
        a(f"""
        v_lshrrev_b32 v131, 2, v129
        v_and_b32 v132, 3, v129
        v_and_b32 v133, 1, v130
        v_lshl_or_b32 v133, v133, 2, v131
        s_lshl_b32 s62, s{S_WAVE}, 1
        v_xor_b32 v133, s62, v133
        v_lshlrev_b32 v133, 5, v133
        v_lshl_add_u32 v133, v132, 3, v133
        v_lshl_add_u32 v131, v130, 3, v131
        v_lshl_add_u32 v{AW0}, v131, 8, v133
        v_xor_b32 v{AW1}, 32, v{AW0}
        """)

def dft32_consts(a):
    a(f"v_lshlrev_b32 v130, 2, v130\nv_cvt_f32_u32 v130, v130\nv_cvt_f32_u32 v129, v129")
    for tb in range(2):
        a(f"v_add_f32 v131, {hx(16.0*tb)}, v129\nv_mul_f32 v131, {hx(1/32.)}, v131")
        for j in range(8):
            a(f"v_add_f32 v132, {hx(16.0*(j>>2)+(j&3))}, v130\nv_mul_f32 v132, v132, v131\nv_cos_f32 v{136+j}, v132\nv_sin_f32 v{144+j}, v132")
        for p in range(4):
            a(f"v_cvt_pk_bf16_f32 v{FC+4*tb+p}, v{136+2*p}, v{137+2*p}\nv_cvt_pk_bf16_f32 v{FS+4*tb+p}, v{144+2*p}, v{145+2*p}")
            a(f"v_xor_b32 v{FN+4*tb+p}, 0x80008000, v{FS+4*tb+p}")

def zero_acc(a):
    for r in range(0,128,2): a(f"v_mov_b64 v[{r}:{r+1}], 0")

def scalars2(a):
    tile_map2(a)
    srd(a,SX,P_X,XB_BYTES); srd(a,SWS,P_WS,ws_end()); srd(a,SOUT,P_OUT,XB_BYTES)
    a(f"""
    s_lshr_b32 s74, s{S_WAVE}, 1
    s_and_b32 s75, s{S_WAVE}, 1
    s_lshl_b32 s62, s75, 10
    s_add_u32 s62, s62, s{S_T1}
    s_lshl3_add_u32 s62, s62, s{S_NB}
    s_lshl1_add_u32 s62, s62, s74
    s_lshl_b32 s77, s62, 6
    s_add_u32 s78, s77, {16*32*1024}
    s_lshl1_add_u32 s62, s{S_T1}, s75
    s_mul_i32 s79, s62, {112*1024}
    s_and_b32 s63, s{S_T1}, 1
    s_lshl1_add_u32 s62, s63, s74
    s_lshl_b32 s62, s62, 11
    s_add_u32 s79, s79, s62
    """)
    stage_rot(a,76,12)

class S1:
    def __init__(self,a,spec): self.a=a; self.spec=spec
    def reads(self,k,buf,ts=range(8)):
        xb,wb=((XA,WA),(XB,WB))[buf]
        xs=[f"ds_read_b128 {vr(xb+4*i,4)}, v{AX0+k} offset:{t*2048}" for i,t in enumerate(ts)]
        ws=[]
        for g in range(4):
            if self.spec:
                ws.append(f"ds_read_b128 {vr(wb+4*g,4)}, v{AW0+k} offset:{16384+(g>>1)*16384+(g&1)*2048}")
            else:
                for rho in range(2):
                    ws.append(f"ds_read_b64_tr_b16 {vr(wb+4*g+2*rho,2)}, v{AW0+(g&1)} offset:{16384+(g>>1)*16384+k*8192+rho*1024}")
        return ws+xs
    def mfmas(self,buf,ts=range(8)):
        xb,wb=((XA,WA),(XB,WB))[buf]
        out=[]
        for i,t in enumerate(ts):
            for gg in range(4):
                g=gg if t%2==0 else 3-gg
                d=(t*4+g)*4
                x=vr(xb+4*i,4); w=vr(wb+4*g,4)
                p,q=(x,w) if self.spec else (w,x)
                out.append(f"{MF} {vr(d,4)}, {p}, {q}, {vr(d,4)}")
        return out
    def move(self,delta): return [f"v_add_u32 v{r}, {delta}, v{r}" for r in (AX0,AX1,AW0,AW1)]
    def weave(self,m,others):
        others=list(others)
        per=2 if len(m)==16 else 1
        assert len(others)<=per*len(m)
        for x in m:
            self.a(x)
            for _ in range(per):
                if others: self.a(others.pop(0))
    def loop(self):
        a=self.a
        a(f"s_mov_b32 s70, 0\ns_mov_b32 s72, 6")
        if CFG.get('mt'): a("s_mov_b32 m0, 20")
        ls(a,1)
        a("s_barrier")
        ls(a,2)
        for l in self.reads(0,0): a(l)
        a(f"buffer_store_dwordx4 {vr(SD,4)}, v{SA}, {sr(SWS)}, 0 offen sc1")
        loop=a.lab('loop')
        if CFG.get('al',1): a(".p2align 6")
        a(f"{loop}:")
        a("s_waitcnt lgkmcnt(0)")
        if CFG.get('mt'): a("v_writelane_b32 v254, s96, m0\ns_add_u32 m0, m0, 1")
        self.weave(self.mfmas(0),self.reads(1,1)+["s_add_u32 s70, s70, 1\ns_cmp_eq_u32 s70, 3",f"s_cselect_b32 s71, {-2*SLOT}, s73\ns_cselect_b32 s70, 0, s70"]+self.move("s71"))
        a("s_waitcnt lgkmcnt(0)\ns_barrier")
        if CFG.get('mt'): a("s_memrealtime s[96:97]")
        self.weave(self.mfmas(1),self.reads(0,0)+["s_sub_u32 s72, s72, 1\ns_cmp_lg_u32 s72, 0"])
        a(f"s_cbranch_scc1 {loop}")
    def half(self,h,last,mid=None):
        a=self.a; ts=range(4*h,4*h+4)
        a("s_waitcnt lgkmcnt(0)")
        self.weave(self.mfmas(0,ts),self.reads(1,1,ts)+self.move(SLOT))
        a("s_waitcnt lgkmcnt(0)\ns_barrier")
        self.weave(self.mfmas(1,ts),self.reads(0,0,ts))
        a("s_waitcnt lgkmcnt(0)")
        self.weave(self.mfmas(0,ts),self.reads(1,1,ts)+(self.move(-SLOT) if h==0 else []))
        if h==1: a("s_waitcnt vmcnt(0) lgkmcnt(0)\ns_barrier")
        else: a("s_waitcnt lgkmcnt(0)")
        self.weave(self.mfmas(1,ts),last)

def epilogue_ffn_setup(a):
    a(f"""
    v_lshlrev_b32 v229, 4, v129
    v_add_u32 v229, {L_STAT}, v229
    v_and_b32 v131, 1, v130
    v_lshl_add_u32 v228, v131, 4, v129
    v_lshrrev_b32 v131, 1, v130
    v_lshl_add_u32 v228, v131, 7, v228
    s_lshl_b32 s62, s{S_WAVE}, 5
    v_add_u32 v228, s62, v228
    v_lshlrev_b32 v228, 2, v228
    v_add_u32 v228, {L_CS}, v228
    v_lshlrev_b32 v230, 4, v{VL}
    s_mul_i32 s62, s{S_I}, {8*56}
    s_lshl2_add_u32 s62, s{S_J}, s62
    s_add_u32 s62, s62, s{S_WAVE}
    s_lshl_b32 s62, s62, 10
    s_add_u32 s63, s62, {4*56*1024}
    s_bitcmp1_b32 s{S_J}, 0
    s_cselect_b32 s90, s63, s62
    s_cselect_b32 s92, s62, s63
    """)
ST=144
def ffn_stat_reads(h):
    out=[f"ds_read_b32 v{231+q}, v228 offset:{1024*q}" for q in range(4)] if h==0 else []
    return out+[f"ds_read_b128 {vr(ST+4*i,4)}, v229 offset:{256*(4*h+i)}" for i in range(4)]
def epilogue_ffn(a,h,nafter):
    a(f"s_waitcnt lgkmcnt({nafter})")
    if h==0:
        for q in range(4): a(f"v_and_b32 v{231+q}, 0xffffff00, v{231+q}")
        a("v_add_f32 v231, v231, v232\nv_add_f32 v233, v233, v234\nv_add_f32 v231, v231, v233\ns_nop 1")
    else: a("s_mov_b32 s90, s92")
    for i in range(4):
        t=4*h+i
        if i==3: a("s_nop 1")
        a(f"v_mfma_f32_16x16x1_4b_f32 {vr(16*t,16)}, v231, v{ST+4*i}, {vr(16*t,16)}")
        a(f"v_mul_f32 v{ST+4*i+1}, {hx(-LOG2E)}, v{ST+4*i+3}")
    a("s_nop 1")
    T=176
    for i in range(4):
        t=4*h+i
        b=16*t; s=ST+4*i; o=184+4*(i&1)
        for p in range(4):
            a(f"v_pk_mul_f32 {vr(T+2*p,2)}, {vr(b+2*p,2)}, {vr(s,2)} op_sel:[0,1] op_sel_hi:[1,1]")
        for p in range(8): a(f"v_exp_f32 v{T+p}, v{T+p}")
        for p in range(4):
            a(f"v_pk_mul_f32 {vr(b+2*p,2)}, {vr(b+2*p,2)}, {vr(b+8+2*p,2)}")
        for p in range(4):
            a(f"v_pk_fma_f32 {vr(T+2*p,2)}, {vr(T+2*p,2)}, {vr(s+2,2)}, {vr(s+2,2)} op_sel:[0,0,0] op_sel_hi:[1,0,0]")
        for p in range(8): a(f"v_rcp_f32 v{T+p}, v{T+p}")
        for p in range(4):
            a(f"v_pk_mul_f32 {vr(b+2*p,2)}, {vr(b+2*p,2)}, {vr(T+2*p,2)}")
        for p in range(4):
            a(f"v_cvt_pk_bf16_f32 v{o+p}, v{b+2*p}, v{b+2*p+1}")
        a(f"buffer_store_dwordx4 {vr(o,4)}, v230, {sr(SWS)}, s90 offen sc1")
        if i<3: a(f"s_add_u32 s90, s90, {56*1024}")
def stage1_ffn(a):
    S=S1(a,False)
    S.loop()
    nxt=S.reads(0,0,range(4,8))
    S.half(0,ffn_stat_reads(0)+nxt)
    ls(a,3)
    epilogue_ffn(a,0,len(nxt))
    ls(a,14)
    S.half(1,ffn_stat_reads(1))
    ls(a,15)
    epilogue_ffn(a,1,0)

def spec_acc(tb,eb,b,ri): return 64*(b>>1)+(((tb*2+eb)*2+(b&1))*2+ri)*4
def epilogue_spec(a,h,nafter):
    R=144; Z=160
    a(f"s_waitcnt lgkmcnt({nafter})")
    for i in range(4):
        t=4*h+i
        for g in range(4):
            d=(t*4+g)*4
            for p in range(2):
                a(f"v_pk_mul_f32 {vr(d+2*p,2)}, {vr(d+2*p,2)}, {vr(R+4*i+2*p,2)}")
        for g in range(4):
            d=(t*4+g)*4
            z=Z+((i>>1)*4+g)*4+(i&1)*2
            for p in range(2):
                a(f"v_cvt_pk_bf16_f32 v{z+p}, v{d+2*p}, v{d+2*p+1}")
    a("s_nop 1")
    acc=spec_acc
    def group(tb,eb):
        out=[]
        for bl in range(2):
            b=2*h+bl
            zr=vr(Z+(bl*4+eb)*4,4); zi=vr(Z+(bl*4+2+eb)*4,4)
            out+=[f"{MF} {vr(acc(tb,eb,b,0),4)}, {vr(FC+4*tb,4)}, {zr}, 0",
                  f"{MF} {vr(acc(tb,eb,b,1),4)}, {vr(FC+4*tb,4)}, {zi}, 0",
                  f"{MF} {vr(acc(tb,eb,b,0),4)}, {vr(FS+4*tb,4)}, {zi}, {vr(acc(tb,eb,b,0),4)}",
                  f"{MF} {vr(acc(tb,eb,b,1),4)}, {vr(FN+4*tb,4)}, {zr}, {vr(acc(tb,eb,b,1),4)}"]
        return out
    def pack(tb,eb,n0):
        out=[]
        for j in range(4):
            o=128+4*((n0+j)%8)
            for b in range(4):
                out.append(f"v_cvt_pk_bf16_f32 v{o+b}, v{acc(tb,eb,b,0)+j}, v{acc(tb,eb,b,1)+j}")
            out.append(f"s_add_u32 s63, s90, {(16*tb+j)*65536}\nbuffer_store_dwordx4 {vr(o,4)}, v253, {sr(SWS)}, s63 offen offset:{eb*256} sc1")
        return out
    gs=[(0,0),(0,1),(1,0),(1,1)]
    for gi,(tb,eb) in enumerate(gs):
        m=group(tb,eb)
        pk=pack(*gs[gi-2],4*(gi-2)) if (h==1 and gi>1) else []
        for i,x in enumerate(m):
            a(x)
            for _ in range(3):
                if pk: a(pk.pop(0))
    if h==1:
        for x in pack(1,0,8)+pack(1,1,12): a(x)
def stage1_spec(a):
    S=S1(a,True)
    S.loop()
    a(f"""
    s_waitcnt vmcnt(0)
    v_lshrrev_b32 v252, 4, v{VL}
    v_and_b32 v253, 15, v{VL}
    v_lshlrev_b32 v253, 4, v253
    v_lshl_add_u32 v253, v252, 18, v253
    v_lshlrev_b32 v252, 4, v252
    v_add_u32 v252, {L_RSTD}, v252
    """)
    rr=lambda h: [f"ds_read_b128 {vr(144+4*i,4)}, v252 offset:{64*(4*h+i)}" for i in range(4)]
    nxt=S.reads(0,0,range(4,8))
    S.half(0,rr(0)+nxt)
    ls(a,3)
    epilogue_spec(a,0,len(nxt))
    ls(a,14)
    S.half(1,rr(1))
    ls(a,15)
    epilogue_spec(a,1,0)

def compute2(a):
    PF=6; LC=CFG.get('lc',9); BY=CFG.get('by',23)
    ACC=0; HF=32; WF=80; XP=224; AW=232; AH=244; AO=246
    ls(a,4)
    vm=VM(); vm.op('st')
    def hload(n,t):
        sg,k=divmod(n,2); b=HF+8*(n%PF)
        a(f"buffer_load_dwordx4 {vr(b+4*t,4)}, v{AH+t}, {sr(SWS)}, s{80+sg%7} offen offset:{k*1024} sc1"); vm.op(f"h{n}")
    a(f"v_lshl_add_u32 v{AH}, v{VL}, 4, s79\nv_add_u32 v{AH+1}, {56*1024}, v{AH}")
    setup=Asm()
    a0=a; a=setup
    a(f"""
    v_and_b32 v6, 15, v{VL}
    v_lshrrev_b32 v2, 4, v{VL}
    v_lshrrev_b32 v3, 2, v6
    v_and_b32 v4, 3, v6
    v_lshl_add_u32 v3, v2, 2, v3
    v_bfe_u32 v5, v3, 1, 2
    s_lshl_b32 s62, s74, 1
    v_xor_b32 v5, s62, v5
    v_lshlrev_b32 v5, 5, v5
    v_lshl_add_u32 v5, v4, 3, v5
    v_lshl_add_u32 v5, v3, 7, v5
    s_lshl_b32 s62, s74, 12
    v_add_u32 v{AW}, s62, v5
    """)
    for eb in range(1,4): a(f"v_xor_b32 v{AW+eb}, {eb<<5}, v{AW}")
    for eb in range(4): a(f"v_add_u32 v{AW+4+eb}, 0x10000, v{AW+eb}")
    a=a0
    su=list(setup.l)
    a("s_barrier")
    ls(a,18)
    for n in range(PF):
        for t in range(2):
            hload(n,t)
            for _ in range(2):
                if su: a(su.pop(0))
    assert not su
    ls(a,7)
    def wreads(n):
        b=WF+16*(n%NPRE); u=pos(n); k=u>>16
        return [f"ds_read_b64_tr_b16 {vr(b+4*eb+2*rho,2)}, v{AW+4*k+eb} offset:{(u&0xffff)+rho*2048}" for eb in range(4) for rho in range(2)]
    other=[f"v_add_u32 v{AW+8+eb}, 0x20000, v{AW+eb}" for eb in range(4)]+f"""
    v_lshlrev_b32 v3, 15, v6
    v_and_b32 v4, 1, v2
    v_lshlrev_b32 v4, 5, v4
    v_lshrrev_b32 v5, 1, v2
    v_lshl_add_u32 v4, v5, 4, v4
    v_add_u32 v{AO}, v3, v4
    """.split('\n')
    other=[x for x in other if x.strip()]
    for n in range(NPRE):
        for l in wreads(n):
            a(l)
            if other and n>=1: a(other.pop(0))
    assert not other
    ls(a,5)
    a(f"s_waitcnt vmcnt({vm.need('st')}) lgkmcnt(0)\ns_barrier")
    ls(a,12)
    XR=WF+16*2
    tailwork=[]
    for t in range(2):
        tailwork+=[f"v_permlane16_swap_b32 v{XP+4*t}, v{XP+4*t+2}",f"v_permlane16_swap_b32 v{XP+4*t+1}, v{XP+4*t+3}"]
    for i in range(8):
        tailwork+=[f"v_lshlrev_b32 v{XR+2*i}, 16, v{XP+i}",f"v_and_b32 v{XR+2*i+1}, 0xffff0000, v{XP+i}"]
    tailwork+=[f"v_lshlrev_b32 v249, 4, v{VL}",f"s_lshl_b32 s62, s{S_WAVE}, 12",f"s_add_u32 s62, s62, {L_RED}","v_add_u32 v250, s62, v249","v_xor_b32 v251, 8192, v250",
               "s_lshl2_add_u32 s62, s74, s75","s_lshl_b32 s62, s62, 11",f"s_add_u32 s62, s62, {L_Y}","v_add_u32 v252, s62, v249",f"s_mov_b32 s64, {hx(-LOG2E)}","s_mov_b32 s65, s64"]
    for n in range(28):
        need=[f"h{n}"]
        if n==23: need.append('x')
        w=f"s_waitcnt vmcnt({vm.need(*need)})"
        if n>=NPRE: w+=f" lgkmcnt({8 if n<27 else 0})"
        a(w)
        if n==0: ls(a,11)
        if n==LC:
            if CFG.get('ct'): ls(a,13)
            a("s_barrier")
            if CFG.get('ct'): ls(a,19)
            for m in range(14,LC+PF):
                for t in range(2): hload(m,t)
        if n==BY:
            if CFG.get('ct'): ls(a,16)
            a("s_barrier")
            if CFG.get('ct'): ls(a,17)
        r=wreads(n+2) if NPRE<=n+2<28 else []
        hb=HF+8*(n%PF); wb=WF+16*(n%NPRE)
        order=[(t,(ee if t==0 else 3-ee)) for t in range(2) for ee in range(4)]
        if n==27: order=[(0,2),(0,3),(1,3),(1,2),(1,1),(1,0),(0,0),(0,1)]
        for i,(t,eb) in enumerate(order):
            d=ACC+(t*4+eb)*4
            a(f"{MF} {vr(d,4)}, {vr(wb+4*eb,4)}, {vr(hb+4*t,4)}, {'0' if n==0 else vr(d,4)}")
            if i<len(r): a(r[i])
            if n+PF<28 and i in (3,7) and (n+PF<14 or n>=LC): hload(n+PF,i//4)
            if n==14-PF and i in (3,7):
                t2=i//4
                a(f"buffer_load_dwordx4 {vr(XP+4*t2,4)}, v{AO}, {sr(SX)}, s{77+t2} offen"); vm.op('x')
                a(f"v_xor_b32 v{AH+t2}, 4096, v{AH+t2}")
            if n>=23 and tailwork: a(tailwork.pop(0))
    assert not tailwork and LC>14-PF
    ls(a,8)
    a("s_nop 3")
    for t,eb in ((0,0),(0,1),(1,1),(1,0)):
        a(f"ds_write_b128 v250, {vr(ACC+(t*4+2+eb)*4,4)} offset:{(t*2+eb)*1024}")
    a("s_waitcnt lgkmcnt(0)\ns_barrier")
    RD=32; Y=48; T=64
    for t in range(2):
        for eb in range(2):
            a(f"ds_read_b128 {vr(RD+(t*2+eb)*4,4)}, v251 offset:{(t*2+eb)*1024}")
        for eb in range(2):
            a(f"ds_read_b128 {vr(Y+(t*2+eb)*4,4)}, v252 offset:{eb*4096+t*1024}")
    ofl=CFG.get('ofl','none').replace('none','').replace('+',' ')
    for t in range(2):
        b=ACC+t*16
        a(f"s_waitcnt lgkmcnt({6-4*t})")
        for p in range(4): a(f"v_pk_add_f32 {vr(b+2*p,2)}, {vr(b+2*p,2)}, {vr(RD+t*8+2*p,2)}")
        for p in range(4): a(f"v_pk_mul_f32 {vr(T+2*p,2)}, {vr(b+2*p,2)}, s[64:65]")
        for p in range(8): a(f"v_exp_f32 v{T+p}, v{T+p}")
        a(f"s_waitcnt lgkmcnt({4-4*t})")
        for p in range(4): a(f"v_pk_mul_f32 {vr(b+2*p,2)}, {vr(b+2*p,2)}, {vr(Y+t*8+2*p,2)}")
        for p in range(4): a(f"v_pk_add_f32 {vr(T+2*p,2)}, {vr(T+2*p,2)}, 1.0 op_sel_hi:[1,0]")
        for p in range(8): a(f"v_rcp_f32 v{T+p}, v{T+p}")
        for p in range(4): a(f"v_pk_fma_f32 {vr(b+2*p,2)}, {vr(b+2*p,2)}, {vr(T+2*p,2)}, {vr(XR+t*8+2*p,2)}")
        o=72+4*t
        for p in range(4): a(f"v_cvt_pk_bf16_f32 v{o+p}, v{b+2*p}, v{b+2*p+1}")
        a(f"s_nop 1\nv_permlane16_swap_b32 v{o}, v{o+2}\nv_permlane16_swap_b32 v{o+1}, v{o+3}")
        a(f"buffer_store_dwordx4 {vr(o,4)}, v{AO}, {sr(SOUT)}, s{77+t} offen {ofl}")
    ls(a,9)
    if diag():
        a("s_waitcnt vmcnt(0)"); ls(a,10)
    ls_dump(a)

class Loader:
    def __init__(self,a): self.a=a; self.vm=VM(); self.m0=None; self.fill=[]; self.extra=[]; self.thr=0; self.regs={}
    def setm0(self,val):
        a=self.a
        if self.m0 is not None and -32768<=val-self.m0<=32767: a(f"s_addk_i32 m0, {val-self.m0}")
        else: a(f"s_add_u32 m0, s92, {val}")
        self.m0=val
    def dma(self,lds,vaddr,srdn,soff,tag,pre=None):
        self.setm0(lds)
        self.a(pre if pre else (self.fill.pop(0) if self.fill else "s_nop 0"))
        self.a(f"buffer_load_dwordx4 v{vaddr}, {sr(srdn)}, {soff} offen lds"); self.vm.op(tag)
        if self.extra: self.a(self.extra.pop(0))
        if self.thr: self.a(f"s_waitcnt vmcnt({self.thr})")
    def issue(self,c,lo=0,hi=4):
        slot=c%3
        for p in range(lo,hi):
            self.dma(slot*SLOT+p*4096,10,SX,f"s{64+p}",f"c{c}")
            self.fill.append(f"s_addk_i32 s{64+p}, 128")
            self.dma(slot*SLOT+16384+p*4096,11,SB0,f"s{68+p}",f"c{c}")
            self.dma(slot*SLOT+32768+p*4096,11,SB1,f"s{68+p}",f"c{c}")
            self.fill.append(f"s_add_u32 s{68+p}, s{68+p}, s72")
    def wd_off(self,n,kh):
        sg,k=divmod(n,2)
        return f"s_add_u32 s62, s{80+sg%7}, {(kh*64+32*k)*1024}"
    def wd(self,n,tag='wd'):
        for kh in range(2):
            self.dma(pos(n)+kh*4096,18 if n<14 else 17,SWD,"s62",tag,pre=self.wd_off(n,kh))
    def wreg(self,n):
        self.regs[n]=128+8*len(self.regs)
        for kh in range(2):
            self.a(self.wd_off(n,kh))
            self.a(f"buffer_load_dwordx4 {vr(self.regs[n]+4*kh,4)}, v{18 if n<14 else 17}, {sr(SWD)}, s62 offen"); self.vm.op('wr')
            if self.thr: self.a(f"s_waitcnt vmcnt({self.thr})")
    def put(self,n):
        u=pos(n)
        for kh in range(2):
            self.a(f"ds_write_b128 v{(21,23,26)[u>>16]}, {vr(self.regs[n]+4*kh,4)} offset:{(u&0xffff)+kh*4096}")
    def bar(self,c,*tags):
        a=self.a
        a(f"s_waitcnt vmcnt({self.vm.need(*tags)})")
        if CFG.get('lt',1): ls(a,2+2*c)
        a("s_barrier")
        if CFG.get('lt',1): ls(a,3+2*c)

def loader_start(a,L):
    sp=a.lab('lsp'); jn=a.lab('ljn')
    a(f"""
    s_sub_u32 s74, s{S_WAVE}, 4
    s_lshl_b32 s92, s74, 10
    v_lshrrev_b32 v1, 3, v{VL}
    v_lshl_add_u32 v1, s74, 3, v1
    v_bfe_u32 v2, v1, 1, 3
    v_and_b32 v3, 7, v{VL}
    v_xor_b32 v2, v2, v3
    v_lshlrev_b32 v2, 4, v2
    s_cmp_ge_u32 s{S_J}, 14
    s_cbranch_scc1 {sp}
    v_lshl_add_u32 v10, v1, 15, v2
    v_lshrrev_b32 v3, 4, v{VL}
    v_lshl_add_u32 v4, s74, 2, v3
    v_mul_u32_u24 v4, 3584, v4
    s_lshr_b32 s62, s74, 1
    v_lshl_or_b32 v3, s62, 2, v3
    v_lshlrev_b32 v3, 1, v3
    v_and_b32 v5, 15, v{VL}
    v_xor_b32 v3, v3, v5
    v_lshl_add_u32 v11, v3, 4, v4
    s_and_b32 s64, s{S_J}, 1
    s_lshl1_add_u32 s64, s{S_I}, s64
    s_lshl_b32 s64, s64, 10
    s_add_u32 s65, s64, 0x100000
    s_xor_b32 s66, s64, 0x400
    s_xor_b32 s67, s65, 0x400
    s_lshl_b32 s68, s{S_J}, 8
    s_mov_b32 s62, {16*3584}
    s_mov_b32 s72, {64*3584}
    s_mov_b32 s{SB0+2}, {W_BYTES}
    s_waitcnt lgkmcnt(0)
    s_mov_b64 s[{SB0}:{SB0+1}], s[{P_WG}:{P_WG+1}]
    s_mov_b64 s[{SB1}:{SB1+1}], s[{P_WU}:{P_WU+1}]
    s_branch {jn}
    {sp}:
    v_lshl_add_u32 v10, v1, 16, v2
    v_lshl_add_u32 v11, v1, 10, v2
    s_lshl_b32 s64, s{S_I}, 12
    s_add_u32 s65, s64, 0x400
    s_add_u32 s66, s64, 0x800
    s_add_u32 s67, s64, 0xc00
    s_sub_u32 s68, s{S_J}, 14
    s_lshl_b32 s68, s68, 17
    s_add_u32 s68, s68, 0x400
    s_mov_b32 s62, 0x8000
    s_movk_i32 s72, 128
    s_mov_b32 s{SB0+2}, {T_BYTES}
    s_waitcnt lgkmcnt(0)
    s_mov_b64 s[{SB0}:{SB0+1}], s[{P_HRE}:{P_HRE+1}]
    s_mov_b64 s[{SB1}:{SB1+1}], s[{P_HIM}:{P_HIM+1}]
    {jn}:
    s_mov_b32 s{SB0+3}, 0x00020000
    s_mov_b32 s{SB1+3}, 0x00020000
    s_mov_b32 s{SB1+2}, s{SB0+2}
    s_add_u32 s69, s68, s62
    s_add_u32 s70, s69, s62
    s_add_u32 s71, s70, s62
    """)
    srd_lo(a,SX,P_X)
    ls_first(a)
    if CFG.get('ldelay',0): a(f"s_sleep {CFG['ldelay']}")
    ls(a,1)

def loader(a,L):
    vm=L.vm
    CB=64; GA=208; YA=224
    epoch_load(a,9)
    n0=CFG.get('n0',3)
    L.issue(0,0,n0)
    tile_map2(a)
    a(f"""
    v_and_b32 v12, 15, v{VL}
    v_lshrrev_b32 v13, 4, v{VL}
    s_mov_b32 s63, {hx(1/2048.)}
    s_mov_b32 s60, 0x8000
    s_mov_b32 s61, 0x80000000
    s_cmp_ge_u32 s{S_NB}, 4
    s_cselect_b32 s90, {hx(-1/2048.)}, s63
    s_cselect_b32 s75, s61, s60
    s_cselect_b32 s73, s60, s61
    v_lshlrev_b32 v2, 2, v13
    v_cvt_f32_u32 v2, v2
    v_lshl_add_u32 v3, v12, 5, s{S_T1}
    v_cvt_f32_u32 v3, v3
    v_mul_f32 v3, s90, v3
    """)
    for k in range(4):
        c=lambda tb,b: CB+(tb*4+k)*4+b
        a(f"v_add_f32 v40, {hx(16.0*k)}, v2\nv_mul_f32 v40, v40, v3\nv_add_f32 v41, v40, v3\nv_add_f32 v42, v41, v3\nv_add_f32 v43, v42, v3")
        for b in range(4): a(f"v_cos_f32 v{44+b}, v{40+b}\nv_sin_f32 v{48+b}, v{40+b}")
        for b in range(4): a(f"v_cvt_pk_bf16_f32 v{c(0,b)}, v{44+b}, v{48+b}")
        a(f"v_cvt_pk_bf16_f32 v40, v49, v45\nv_cvt_pk_bf16_f32 v41, v51, v47")
        for tb in range(1,4): a(f"v_mov_b32 v{c(tb,0)}, v{c(0,0)}")
        a(f"v_xor_b32 v{c(1,1)}, s75, v40\nv_xor_b32 v{c(3,1)}, s73, v40\nv_xor_b32 v{c(1,3)}, s73, v41\nv_xor_b32 v{c(3,3)}, s75, v41")
        a(f"v_xor_b32 v{c(2,1)}, 0x80008000, v{c(0,1)}\nv_xor_b32 v{c(2,3)}, 0x80008000, v{c(0,3)}")
        a(f"v_xor_b32 v{c(1,2)}, 0x80008000, v{c(0,2)}\nv_mov_b32 v{c(2,2)}, v{c(0,2)}\nv_mov_b32 v{c(3,2)}, v{c(1,2)}")
    L.issue(0,n0,4); L.issue(1,0,CFG.get('i1',2))
    srd(a,SWS,P_WS,ws_end()); srd(a,SWD,P_WD,W_BYTES)
    a(f"""
    v_and_b32 v6, 7, v{VL}
    v_lshlrev_b32 v5, 1, v13
    v_xor_b32 v6, v6, v5
    v_lshlrev_b32 v6, 4, v6
    v_lshl_add_u32 v6, v1, 10, v6
    s_and_b32 s60, s{S_T1}, 1
    s_lshl_b32 s60, s60, 10
    s_add_u32 s60, s60, s{S_NB}
    v_lshl_add_u32 v18, s60, 7, v6
    v_xor_b32 v17, 0x20000, v18
    """)
    stage_rot(a,60,17)
    a(f"""
    s_lshl2_add_u32 s60, s2, s74
    s_mul_i32 s60, s60, 1792
    s_add_u32 s76, s{P_WD}, s60
    s_addc_u32 s77, s{P_WD+1}, 0
    s_lshl2_add_u32 s60, s{S_LOC}, s74
    s_mul_i32 s60, s60, {14*1024}
    s_add_u32 s60, s60, 384
    s_add_u32 s78, s{P_WD}, s60
    s_addc_u32 s79, s{P_WD+1}, 0
    """)
    sp2=a.lab('gspec'); j2=a.lab('gjoin')
    a(f"v_and_b32 v5, 31, v{VL}\ns_and_b32 s60, s74, 1\ns_lshr_b32 s63, s74, 1\ns_cmp_ge_u32 s{S_J}, 14\ns_cbranch_scc1 {sp2}")
    a(f"v_and_b32 v3, 1, v5\nv_lshlrev_b32 v3, 10, v3\nv_and_b32 v4, 30, v5\ns_and_b32 s61, s{S_J}, 1\ns_xor_b32 s63, s63, s61\ns_lshl1_add_u32 s61, s{S_I}, s60\ns_lshl_b32 s61, s61, 5\ns_add_u32 s61, s61, s63\nv_add3_u32 v20, v3, v4, s61\ns_branch {j2}\n{sp2}:")
    a(f"s_lshl1_add_u32 s61, s{S_I}, s63\ns_lshl_b32 s61, s61, 6\ns_add_u32 s61, s61, s60\nv_lshl_add_u32 v20, v5, 1, s61\n{j2}:")
    a(f"""
    v_lshlrev_b32 v20, 4, v20
    v_lshlrev_b32 v5, 4, v5
    v_lshrrev_b32 v6, 5, v{VL}
    v_mul_u32_u24 v6, {1792*4}, v6
    s_min_u32 s61, s{S_J}, 13
    s_lshl_b32 s61, s61, 9
    v_add3_u32 v22, v5, v6, s61
    s_mul_i32 s88, s74, {3584*4}
    s_add_u32 s88, s88, {WS_CS}
    s_mov_b32 s87, {WS_ST}
    v_mov_b32 v15, 0x0c0c0400
    v_mov_b32 v16, 0x04000c0c
    v_lshl_add_u32 v21, v{VL}, 4, s92
    v_add_u32 v23, 0x10000, v21
    """)
    a(f"""
    s_lshl2_add_u32 s60, s{S_NB}, s74
    s_lshl_b32 s60, s60, 4
    v_add_u32 v3, s60, v12
    v_sub_u32 v4, 512, v3
    s_sub_u32 s61, 32, s{S_T1}
    s_and_b32 s61, s61, 31
    s_sub_u32 s63, 496, s60
    s_max_u32 s73, s60, 1
    s_sub_u32 s73, s73, 1
    s_add_u32 s75, s60, 14
    s_cmp_ge_u32 s{S_NB}, 4
    s_cselect_b32 s61, s61, s{S_T1}
    s_cselect_b64 vcc, -1, 0
    s_cselect_b32 s73, s63, s73
    s_cselect_b32 s75, s63, s75
    v_cndmask_b32 v4, v3, v4, vcc
    v_subrev_u32 v4, 1, v4
    v_lshlrev_b32 v4, 4, v4
    v_lshl_add_u32 v4, v13, 12, v4
    v_cmp_eq_u32 vcc, 0, v3
    v_mov_b32 v5, {OOB}
    s_lshl_b32 s61, s61, 16
    v_cndmask_b32 v19, v4, v5, vcc
    s_add_u32 s91, s61, {WS_G}
    s_lshr_b32 s73, s73, 7
    s_lshr_b32 s75, s75, 7
    s_sub_u32 s75, s75, s73
    v_and_b32 v5, 1, v13
    v_mul_u32_u24 v5, s75, v5
    v_lshl_add_u32 v5, v12, 4, v5
    v_add_lshl_u32 v14, v5, s73, 9
    s_lshr_b32 s61, s{S_T1}, 1
    s_and_b32 s63, s{S_T1}, 1
    s_lshl4_add_u32 s61, s61, s63
    s_lshl_b32 s61, s61, 9
    s_add_u32 s61, s61, {WS_FL}
    s_xor_b32 s63, s61, 0x300
    s_add_u32 s34, s{P_WS}, s61
    s_addc_u32 s35, s{P_WS+1}, 0
    s_add_u32 s36, s{P_WS}, s63
    s_addc_u32 s37, s{P_WS+1}, 0
    """)
    flag_addr(a,61)
    a(f"s_add_u32 s42, s{P_WS}, s61\ns_addc_u32 s43, s{P_WS+1}, 0\nv_and_b32 v5, 1, v{VL}\nv_lshlrev_b32 v5, 8, v5\nbuffer_load_dwordx2 v[32:33], v5, {sr(SWS)}, s61 offen sc1"); vm.op('old')
    sl=[f"s_load_dword s95, s[76:77], {q*64}" for q in range(28)]+[f"s_load_dword s95, s[78:79], {(q//2)*1024+(q&1)*64}" for q in range(28)]
    ss=[int(c,16) for c in str(CFG.get('sps','e777777')).zfill(7)]
    def spf(rnd):
        if not CFG.get('spf',1): return
        for _ in range(ss[rnd]):
            if sl: a(sl.pop(0))
    def gather():
        a(f"buffer_load_dwordx4 v[24:27], v20, {sr(SWS)}, s87 offen sc1\nbuffer_load_dwordx4 v[28:31], v22, {sr(SWS)}, s88 offen sc1")
    def watch(base):
        np_=a.lab('nopoll'); lp=a.lab('poll')
        a(f"s_cmp_lg_u32 s74, 3\ns_cbranch_scc1 {np_}\ns_mov_b32 s89, {SPIN}\n{lp}:")
        R=(64,66,68,70,72,76,78)
        for q in range(7): a(f"s_load_dwordx2 s[{R[q]}:{R[q]+1}], s[{base}:{base+1}], {q*1024} glc")
        a(f"s_sub_u32 s89, s89, 1\ns_cbranch_scc1 {np_}\ns_waitcnt lgkmcnt(0)")
        for q in range(7): a(f"s_cmp_lg_u64 s[{R[q]}:{R[q]+1}], s[{S_TAG}:{S_TAG+1}]\ns_cbranch_scc1 {lp}")
        a(f"{np_}:")
    def raise_flag(h):
        sk=a.lab('nf')
        a(f"s_cmp_lg_u32 s74, 0\ns_cbranch_scc1 {sk}\ns_atomic_add_x2 s[{44+2*h}:{45+2*h}], s[42:43], {256*h}\n{sk}:")
    regq=list(range(19,28))+(list(range(12,18)) if CFG.get('r12',0) else [])
    sched=[int(c,16) for c in str(CFG.get('wrs','011111')).zfill(6)]
    def wregs(k):
        for _ in range(k):
            if regq: L.wreg(regq.pop(0))
    spf(0)
    L.bar(0,'c0')
    L.issue(1,CFG.get('i1',2),4); L.issue(2,0,CFG.get('i2',2)); spf(1); wregs(sched[0])
    epoch_tag(a,9)
    L.bar(1,'c1','old')
    L.extra=[f"v_readlane_b32 s44, v32, 0",f"v_readlane_b32 s45, v33, 0",f"v_readlane_b32 s46, v32, 1",f"v_readlane_b32 s47, v33, 1","s_nop 0",
             f"s_sub_u32 s44, s{S_TAG}, s44\ns_subb_u32 s45, s{S_TAG+1}, s45\ns_sub_u32 s46, s{S_TAG}, s46\ns_subb_u32 s47, s{S_TAG+1}, s47"]
    L.issue(2,CFG.get('i2',2),4); L.issue(3); spf(2); wregs(sched[1])
    L.bar(2,'c2')
    L.issue(4); spf(3); wregs(sched[2])
    L.bar(3,'c3')
    gather(); vm.op('g'); vm.op('g')
    L.issue(5); spf(4); wregs(sched[3])
    L.bar(4,'c4','g')
    check=["v_perm_b32 v3, v29, v28, v15","v_perm_b32 v4, v31, v30, v16",f"v_xor_b32 v5, s{S_TAG}, v25","v_or_b32 v3, v3, v4",f"v_xor_b32 v3, s{S_TAG}, v3","v_or_b32 v3, v3, v5"]
    L.extra=list(check)
    L.issue(6,0,2)
    rt=a.lab('rt'); ok=a.lab('ok')
    a(f"v_cmp_ne_u32 vcc, 0, v3\ns_cbranch_vccz {ok}\ns_mov_b32 s89, {SPIN}\n{rt}:")
    gather(); a("s_waitcnt vmcnt(0)")
    for x in check: a(x)
    a(f"v_cmp_ne_u32 vcc, 0, v3\ns_cbranch_vccz {ok}\ns_sleep 2\ns_sub_u32 s89, s89, 1\ns_cmp_lg_u32 s89, 0\ns_cbranch_scc1 {rt}\n{ok}:")
    L.issue(6,2,4); spf(5); wregs(sched[4])
    L.bar(5,'c5')
    L.issue(7); spf(6); wregs(sched[5])
    L.bar(6,'c6')
    a(f"s_add_u32 m0, s92, {L_CS}\ns_lshr_b32 s61, s92, 1\nbuffer_load_dwordx4 v22, {sr(SWS)}, s88 offen sc1 lds"); vm.op('gd')
    a(f"s_add_u32 m0, s61, {L_STAT}\ns_mov_b32 exec_hi, 0\nbuffer_load_dwordx4 v20, {sr(SWS)}, s87 offen sc1 lds"); vm.op('gd')
    a(f"s_lshr_b32 s61, s92, 3\ns_add_u32 m0, s61, {L_RSTD-12}\ns_nop 0\nbuffer_load_dword v20, {sr(SWS)}, s87 offen offset:12 sc1 lds\ns_mov_b32 exec_hi, -1"); vm.op('gd')
    L.m0=None
    u6=CFG.get('u6',3)
    for n in range(0,u6): L.wd(n)
    L.bar(7,'c7','gd')
    L.thr=CFG.get('thr',0)
    for n in list(range(u6,6))+[18]: L.wd(n)
    wregs(99)
    a(f"v_add_u32 v26, 0x20000, v21")
    ls(a,18); a("s_barrier"); ls(a,19)
    u7=CFG.get('u7',9)
    for n in range(6,u7): L.wd(n,'w8' if n<9 else 'wd')
    ls(a,20); a("s_barrier"); ls(a,21)
    raise_flag(0)
    u8=CFG.get('u8',18)
    if CFG.get('r12',0):
        for n in range(u7,12): L.wd(n)
        a("s_waitcnt vmcnt(0)")
        for n in range(12,18): L.put(n)
    else:
        for n in range(u7,u8): L.wd(n)
        a(f"s_waitcnt vmcnt({vm.need('w8')})")
    ls(a,22)
    watch(34)
    ls(a,28)
    a("s_barrier")
    if not CFG.get('r12',0):
        for n in range(u8,18): L.wd(n)
    a(f"s_waitcnt vmcnt(0) lgkmcnt(0)\ns_barrier")
    raise_flag(1)
    if CFG.get('lprio',2): a(f"s_setprio {CFG.get('lprio',2)}")
    for n in range(19,28): L.put(n)
    ls(a,27)
    watch(36)
    a("s_waitcnt lgkmcnt(0)")
    ls(a,23)
    a("s_barrier")
    lp=a.lab('poll'); ok=a.lab('ok')
    a(f"s_mov_b32 s87, {WS_FL+14*512+256}\ns_mov_b32 s89, {SPIN}\n{lp}:")
    a(f"buffer_load_dwordx2 v[24:25], v14, {sr(SWS)}, s87 offen sc1\ns_waitcnt vmcnt(0)\nv_cmp_ne_u64 vcc, s[{S_TAG}:{S_TAG+1}], v[24:25]\ns_cbranch_vccz {ok}")
    a(f"s_sleep 2\ns_sub_u32 s89, s89, 1\ns_cmp_lg_u32 s89, 0\ns_cbranch_scc1 {lp}\n{ok}:")
    for k in range(4):
        a(f"buffer_load_dwordx4 {vr(GA+4*k,4)}, v19, {sr(SWS)}, s91 offen sc1\ns_add_u32 s91, s91, {4*4096}")
    ls(a,24)
    for k in range(4):
        a(f"s_waitcnt vmcnt({3-k})")
        for tb in range(4):
            a(f"{MF} {vr(YA+4*tb,4)}, {vr(GA+4*k,4)}, {vr(CB+(tb*4+k)*4,4)}, {'0' if k==0 else vr(YA+4*tb,4)}")
    nb=a.lab('nobump')
    a(f"s_or_b32 s60, s2, s74\ns_cbranch_scc1 {nb}\ns_mov_b32 s60, {WS_EP}\nv_mov_b32 v24, s{S_TAG}\ns_mov_b64 exec, 1\nbuffer_store_dword v24, off, {sr(SWS)}, s60 sc1\ns_mov_b64 exec, -1\n{nb}:")
    a(f"s_lshl_b32 s60, s74, 12\ns_add_u32 s60, s60, {L_Y}\nv_lshl_add_u32 v1, v{VL}, 4, s60\ns_nop 3")
    ls(a,29)
    a("s_barrier")
    for tb in range(4):
        a(f"ds_write_b128 v1, {vr(YA+4*tb,4)} offset:{1024*tb}")
    a("s_waitcnt lgkmcnt(0)")
    ls(a,25)
    a("s_barrier")
    ls(a,26)
    ls_dump(a)

def kernel_main(a,name):
    kbegin(a,name)
    end=a.lab('end'); ld=a.lab('ld'); sp=a.lab('sp'); s2=a.lab('stage2')
    r1=a.lab('r1'); r3=a.lab('r3'); rj=a.lab('rj'); rt=a.lab('rt'); rz=a.lab('rz'); c0=a.lab('c0'); c1=a.lab('c1')
    a(f"s_cmp_ge_u32 s2, 256\ns_cbranch_scc1 {end}")
    if diag(): a("s_memrealtime s[94:95]")
    a("s_load_dwordx16 s[32:47], s[0:1], 0\ns_load_dwordx8 s[48:55], s[0:1], 64")
    if CFG.get('cpf',1):
        a(f"""
        s_getpc_b64 s[60:61]
        L_pc_here:
        s_bfe_u32 s62, s2, 0x20003
        v_lshl_add_u32 v1, v0, 2, s62
        v_lshlrev_b32 v1, 7, v1
        v_min_u32 v1, L_code_end-L_pc_here-4, v1
        global_load_dword v252, v1, s[60:61]
        """)
    a(f"v_lshrrev_b32 v1, 6, v0\nv_and_b32 v{VL}, 63, v0\nv_readfirstlane_b32 s{S_WAVE}, v1")
    tile_map(a)
    srd_hi(a,SX,XB_BYTES)
    a(f"s_cmp_ge_u32 s{S_WAVE}, 4\ns_cbranch_scc1 {ld}")
    a(f"s_cmp_eq_u32 s{S_WAVE}, 3\ns_cbranch_scc1 {r3}")
    a(f"s_cmp_lg_u32 s{S_WAVE}, 0\ns_cbranch_scc1 {r1}")
    cs_ids(a)
    a(f"s_cmp_ge_u32 s{S_J}, 14\ns_cbranch_scc1 {rt}")
    colsum_loads(a)
    cs_addr(a,68)
    a(f"s_mov_b32 s87, 0\ns_branch {rz}\n{r1}:")
    row_ids(a); rows_loads(a)
    st_addr(a,68)
    a(f"s_lshl4_add_u32 s68, s60, s68\ns_mov_b32 s87, 1\ns_branch {rz}\n{ld}:")
    L=Loader(a)
    loader_start(a,L)
    loader(a,L)
    a(f"s_endpgm\n{rt}:")
    table_touch(a)
    a(f"s_mov_b32 s87, 2\ns_branch {rz}\n{r3}:")
    if CFG.get('warm',1):
        row_ids(a); st_addr(a,72)
        a(f"v_mov_b32 v1, s72")
    a(f"s_waitcnt lgkmcnt(0)")
    epoch_load(a,128)
    if CFG.get('warm',1):
        a(f"global_load_dword v252, v1, s[{P_WS}:{P_WS+1}] sc1")
    a(f"s_mov_b32 s87, 2\n{rz}:\nv_mov_b32 v{SA}, {OOB}")
    ls_first(a)
    if CFG.get('prio',1): a("s_setprio 1")
    scalars2(a)
    sp0=a.lab('sp0'); j0=a.lab('j0')
    a(f"s_cmp_ge_u32 s{S_J}, 14\ns_cbranch_scc1 {sp0}")
    compute1_setup(a,False); epilogue_ffn_setup(a)
    a(f"s_branch {j0}\n{sp0}:")
    compute1_setup(a,True); dft32_consts(a)
    a(f"s_sub_u32 s62, s{S_J}, 14\ns_lshl2_add_u32 s62, s62, s{S_WAVE}\ns_lshl3_add_u32 s62, s{S_I}, s62\ns_lshl_b32 s62, s62, 9\ns_add_u32 s90, s62, {WS_G}")
    a(f"{j0}:")
    zero_acc(a)
    a(f"s_cmp_eq_u32 s87, 1\ns_cbranch_scc1 {c1}\ns_cmp_eq_u32 s87, 0\ns_cbranch_scc1 {c0}")
    a("s_waitcnt vmcnt(0)"); epoch_tag(a,128)
    a(f"s_branch {rj}\n{c0}:")
    colsum_finish(a)
    a(f"s_branch {rj}\n{c1}:")
    rows_finish(a)
    a(f"{rj}:")
    a(f"s_cmp_ge_u32 s{S_J}, 14\ns_cbranch_scc1 {sp}")
    stage1_ffn(a)
    a(f"{s2}:")
    compute2(a)
    a(f"s_endpgm\n{sp}:")
    stage1_spec(a)
    a(f"s_branch {s2}")
    a(f"{end}:\ns_endpgm\nL_code_end:")

def build(cfg):
    CFG.clear(); CFG.update(cfg)
    a=Asm()
    name=NAME+'_kernel'
    if cfg.get('probe'):
        a(f"; @launch kernel={name} grid=(256,1,1) block=(512,1,1) lds={LDS}")
        a(f"; @launch kernel=probe_kernel grid=(1,1,1) block=(64,1,1) lds=0")
    else:
        a(f"; @launch grid=(256,1,1) block=(512,1,1) lds={LDS}")
    a('.amdgcn_target "amdgcn-amd-amdhsa--gfx950"\n.text')
    kernel_main(a,name); names=[name]
    if cfg.get('probe'): names.append(kernel_probe(a))
    a('.section .rodata,"a"')
    for n in names:
        a('.p2align 6')
        a.l.append(kd(n,256,102,256))
    return a.text()

if __name__=='__main__':
    cfg={}
    for kv in sys.argv[2:]:
        k,v=kv.split('='); cfg[k]=int(v) if v.lstrip('-').isdigit() else v
    open(sys.argv[1],'w').write(build(cfg))
```

```python
import sys, struct
NAME='recurrent_scan__spectral_fnet__swiglu_ffn__prompt'
LOG2E=1.4426950408889634
def f2u(x): return struct.unpack('<I',struct.pack('<f',x))[0]
def hx(x): return hex(f2u(x))

WS_H=0; WS_G=0x700000; WS_ST=0x900000; WS_CS=0x908000; WS_EP=0x918000; WS_FL=0x9C0000
WS_TRACE=0x940000
CFG={}
def diag(): return CFG.get('probe') or CFG.get('trace')
def ws_end(): return 0xA00000
S_TAG=6
OOB=0x40000000

class Asm:
    def __init__(self): self.l=[]; self.n=0
    def __call__(self,s):
        for line in s.split('\n'):
            line=line.strip()
            if line: self.l.append(('' if line.endswith(':') or line.startswith('.') or line.startswith(';') else '    ')+line)
    def lab(self,b): self.n+=1; return f"L_{b}_{self.n}"
    def text(self): return '\n'.join(self.l)+'\n'

class VM:
    def __init__(self): self.ops=[]
    def op(self,tag): self.ops.append(tag)
    def need(self,*tags):
        last=max(i for i,t in enumerate(self.ops) if t in tags)
        n=len(self.ops)-1-last
        assert n<=63, n
        return n

def kd(name,vgpr,sgpr,accum):
    return f""".amdhsa_kernel {name}
  .amdhsa_next_free_vgpr {vgpr}
  .amdhsa_next_free_sgpr {sgpr}
  .amdhsa_accum_offset {accum}
  .amdhsa_group_segment_fixed_size 0
  .amdhsa_kernarg_size 96
  .amdhsa_user_sgpr_count 2
  .amdhsa_user_sgpr_kernarg_segment_ptr 1
  .amdhsa_system_sgpr_workgroup_id_x 1
  .amdhsa_float_denorm_mode_32 3
.end_amdhsa_kernel
"""
def kbegin(a,name): a(f".globl {name}\n.p2align 8\n.type {name},@function\n{name}:")
def srd(a,d,base,nbytes):
    a(f"s_mov_b64 s[{d}:{d+1}], s[{base}:{base+1}]\ns_mov_b32 s{d+2}, {nbytes}\ns_mov_b32 s{d+3}, 0x00020000")
def srd_hi(a,d,nbytes): a(f"s_mov_b32 s{d+2}, {nbytes}\ns_mov_b32 s{d+3}, 0x00020000")
def srd_lo(a,d,base): a(f"s_mov_b64 s[{d}:{d+1}], s[{base}:{base+1}]")
def vr(b,n): return f"v[{b}:{b+n-1}]" if n>1 else f"v{b}"
def sr(b): return f"s[{b}:{b+3}]"
MF="v_mfma_f32_16x16x32_bf16"

P_X,P_HRE,P_HIM,P_WG,P_WU,P_WD,P_OUT,P_DBG,P_WS=32,38,40,44,46,48,50,52,54
SX,SB0,SB1,SWS,SWD,SOUT=8,12,16,20,24,28
S_WAVE=56; S_I=57; S_J=58; S_T1=59; S_NB=3; S_A=100; S_G=101; S_LOC=93; S_X=4
VL=255
SPIN=100000
XB_BYTES=2048*512*2; W_BYTES=512*1792*2; T_BYTES=512*512*2

def ls(a,idx):
    if diag() and not CFG.get('gap'): a(f"s_memrealtime s[96:97]\ns_waitcnt lgkmcnt(0)\nv_writelane_b32 v254, s96, {idx}")
def ls_first(a):
    if diag(): a(f"v_writelane_b32 v254, s94, 0")
def ls_dump(a):
    if diag(): a(f"s_lshl_b32 s98, s2, 11\ns_lshl_b32 s99, s{S_WAVE}, 8\ns_add_u32 s98, s98, s99\ns_add_u32 s98, s98, {WS_TRACE}\nv_lshlrev_b32 v253, 2, v{VL}\nbuffer_store_dword v254, v253, {sr(SWS)}, s98 offen sc1")
def kernel_probe(a):
    pa,pb=CFG['probe'].split(':'); K=CFG.get('K',10)
    name='probe_kernel'; kbegin(a,name); end=a.lab('end')
    a(f"s_memrealtime s[70:71]\ns_cmp_ge_u32 s2, 1\ns_cbranch_scc1 {end}")
    a("s_load_dwordx2 s[54:55], s[0:1], 88\ns_waitcnt lgkmcnt(0)")
    srd(a,SWS,P_WS,ws_end())
    a("v_lshlrev_b32 v1, 11, v0")
    for r,p in ((4,pa),(8,pb)):
        w,i=p[3:].split('.')
        for q in range(4):
            a(f"s_mov_b32 s60, {WS_TRACE+int(w)*256+int(i)*4+q*64*2048}\nbuffer_load_dword v{r+q}, v1, {sr(SWS)}, s60 offen")
    a("s_waitcnt vmcnt(0)\ns_nop 0\nv_readfirstlane_b32 s61, v4\ns_nop 3")
    for r in range(4,12): a(f"v_subrev_u32 v{r}, s61, v{r}")
    for r,p,sd in ((4,pa,62),(8,pb,63)):
        op=p[:3]
        vop={'min':'v_min_i32','max':'v_max_i32','avg':'v_add_u32'}[op]; sop={'min':'s_min_i32','max':'s_max_i32','avg':'s_add_u32'}[op]
        a(f"{vop} v{r}, v{r}, v{r+1}\n{vop} v{r+2}, v{r+2}, v{r+3}\n{vop} v{r}, v{r}, v{r+2}\ns_nop 0")
        a(f"v_readlane_b32 s{sd}, v{r}, 0")
        for l in range(1,64): a(f"v_readlane_b32 s64, v{r}, {l}\ns_nop 0\n{sop} s{sd}, s{sd}, s64")
        a(f"s_mul_i32 s{sd}, s{sd}, {K}")
        if op=='avg': a(f"s_ashr_i32 s{sd}, s{sd}, 8")
    if CFG.get('gap'): a(f"s_sub_u32 s63, s70, s61\ns_mul_i32 s63, s63, {K}")
    a("s_sub_u32 s62, s63, s62\ns_max_i32 s62, s62, 0\ns_min_i32 s62, s62, 100000")
    a("s_memrealtime s[66:67]\ns_waitcnt lgkmcnt(0)")
    lp=a.lab('spin')
    a(f"{lp}:\ns_memrealtime s[68:69]\ns_waitcnt lgkmcnt(0)\ns_sub_u32 s68, s68, s66\ns_cmp_lt_u32 s68, s62\ns_cbranch_scc1 {lp}")
    a(f"{end}:\ns_endpgm")
    return name

SLOT=49152
L_STAT=3*SLOT+8192; L_RSTD=L_STAT+2048; L_CS=L_RSTD+512
L_Y=24576; L_RED=49152; LDS=163840; L_SIG=LDS-16
NPRE=9
def pos(n):
    if n>=19: n-=19
    if n==18: return 3*SLOT
    return (2*SLOT,0,SLOT)[n//6]+(n%6)*8192

def tile_map(a):
    a(f"""
    s_lshr_b32 s{S_LOC}, s2, 3
    s_and_b32 s{S_A}, s2, 1
    s_bfe_u32 s{S_G}, s2, 0x20001
    s_bfe_u32 s60, s2, 0x10002
    s_bfe_u32 s61, s2, 0x10001
    s_mul_i32 s62, s60, 7
    s_lshr_b32 s63, s2, 6
    s_lshl2_add_u32 s63, s61, s63
    s_and_b32 s64, s{S_LOC}, 3
    s_lshl2_add_u32 s65, s61, s64
    s_and_b32 s66, s{S_LOC}, 7
    s_cmp_ge_u32 s{S_LOC}, 24
    s_cselect_b32 s63, 3, s63
    s_cselect_b32 s66, s65, s66
    s_add_u32 s{S_J}, s62, s63
    s_lshl3_add_u32 s{S_X}, s{S_A}, s66
    s_lshl2_add_u32 s64, s{S_A}, s64
    s_lshl3_add_u32 s64, s61, s64
    s_add_u32 s60, s60, 14
    s_cmp_ge_u32 s{S_LOC}, 28
    s_cselect_b32 s{S_J}, s60, s{S_J}
    s_cselect_b32 s{S_I}, s64, s{S_X}
    """)
def tile_map2(a):
    a(f"""
    s_and_b32 s60, s2, 7
    s_bfe_u32 s62, s{S_LOC}, 0x10001
    s_lshl1_add_u32 s{S_T1}, s60, s62
    s_sub_u32 s62, 32, s{S_T1}
    s_cmp_eq_u32 s{S_T1}, 0
    s_cselect_b32 s62, 16, s62
    s_bitcmp1_b32 s{S_LOC}, 0
    s_cselect_b32 s{S_T1}, s62, s{S_T1}
    s_lshr_b32 s{S_NB}, s{S_LOC}, 2
    """)

def stage_rot(a,s,sh):
    a(f"s_and_b32 s{s}, s{S_LOC}, 1\ns_mul_i32 s{s}, s{s}, 3\ns_add_u32 s{s}, s{s}, s{S_NB}\ns_sub_u32 s62, s{s}, 7\ns_cmp_ge_u32 s{s}, 7\ns_cselect_b32 s{s}, s62, s{s}")
    for sg in range(7):
        a(f"s_lshl_b32 s{80+sg}, s{s}, {sh+1}\ns_add_u32 s{s}, s{s}, 1\ns_cmp_eq_u32 s{s}, 7\ns_cselect_b32 s{s}, 0, s{s}")

def epoch_load(a,v):
    a(f"v_mov_b32 v{v}, {WS_EP}\nglobal_load_dword v{v}, v{v}, s[{P_WS}:{P_WS+1}] sc1")
def epoch_tag(a,v):
    a(f"v_readfirstlane_b32 s{S_TAG}, v{v}\ns_nop 0\ns_mul_i32 s{S_TAG}, s{S_TAG}, 0x9e3779b1\ns_add_u32 s{S_TAG}, s{S_TAG}, 0x7f4a7c15\ns_not_b32 s{S_TAG+1}, s{S_TAG}")

SD=160; SA=253
def cs_ids(a):
    a(f"""
    s_and_b32 s61, s{S_X}, 3
    s_bfe_u32 s63, s{S_X}, 0x10002
    s_lshl1_add_u32 s63, s{S_J}, s63
    s_lshr_b32 s69, s{S_X}, 3
    """)
def cs_addr(a,sd):
    a(f"""
    s_mul_i32 s{sd}, s61, {3584*4}
    s_mul_i32 s62, s69, {1792*4}
    s_add_u32 s{sd}, s{sd}, s62
    s_lshl_b32 s62, s63, 8
    s_add_u32 s{sd}, s{sd}, s62
    s_add_u32 s{sd}, s{sd}, {WS_CS}
    """)
def row_ids(a):
    a(f"""
    s_and_b32 s71, s{S_LOC}, 7
    s_lshr_b32 s70, s{S_LOC}, 3
    s_and_b32 s62, s{S_G}, 1
    s_lshl2_add_u32 s70, s62, s70
    s_lshl3_add_u32 s70, s{S_A}, s70
    s_lshr_b32 s62, s{S_G}, 1
    s_lshl4_add_u32 s70, s62, s70
    """)
def st_addr(a,sd):
    a(f"s_lshl3_add_u32 s{sd}, s70, s71\ns_lshl_b32 s{sd}, s{sd}, 7\ns_add_u32 s{sd}, s{sd}, {WS_ST}")
def flag_addr(a,sd):
    a(f"s_lshl4_add_u32 s{sd}, s{S_I}, s{S_J}\ns_lshl_b32 s{sd}, s{sd}, 9\ns_add_u32 s{sd}, s{sd}, {WS_FL}")

def colsum_loads(a):
    a(f"""
    v_lshrrev_b32 v1, 3, v{VL}
    v_mul_u32_u24 v1, {4*3584}, v1
    v_and_b32 v2, 7, v{VL}
    v_lshl_add_u32 v1, v2, 4, v1
    s_mul_i32 s72, s61, 3584
    s_lshl_b32 s62, s63, 7
    s_add_u32 s72, s72, s62
    s_mov_b32 s73, {32*3584}
    """)
    srd_hi(a,64,W_BYTES)
    a(f"s_cmp_eq_u32 s69, 1\ns_waitcnt lgkmcnt(0)\ns_cselect_b64 s[64:65], s[{P_WU}:{P_WU+1}], s[{P_WG}:{P_WG+1}]")
    epoch_load(a,128)
    for n in range(16):
        a(f"buffer_load_dwordx4 {vr(160+4*n,4)}, v1, s[64:67], s72 offen")
        if n<15: a(f"s_add_u32 s72, s72, s73")
def colsum_finish(a):
    a(f"""
    v_and_b32 v140, 15, v{VL}
    v_and_b32 v141, 1, v140
    v_lshlrev_b32 v141, 4, v141
    v_mov_b32 v142, 0x3f80
    v_lshlrev_b32 v141, v141, v142
    v_lshrrev_b32 v140, 1, v140
    """)
    for p in range(4):
        a(f"v_cmp_eq_u32 vcc, {p}, v140\ns_nop 1\nv_cndmask_b32 v{132+p}, 0, v141, vcc")
    a(f"""
    v_and_b32 v140, 7, v{VL}
    v_lshlrev_b32 v140, 5, v140
    v_and_b32 v141, 16, v{VL}
    v_add3_u32 v140, v140, v141, s68
    v_and_b32 v141, 0x28, v{VL}
    v_cmp_eq_u32 vcc, 0, v141
    s_nop 1
    v_cndmask_b32 v{SA}, v{SA}, v140, vcc
    v_mov_b32 v140, 0x07060500
    v_mov_b32 v141, 0x07060501
    v_mov_b32 v142, 0x07060502
    v_mov_b32 v143, 0x07060503
    """)
    a("s_waitcnt vmcnt(16)"); epoch_tag(a,128)
    for n in range(16):
        a(f"s_waitcnt vmcnt({15-n})")
        a(f"{MF} v[136:139], v[132:135], {vr(160+4*n,4)}, {'0' if n==0 else 'v[136:139]'}")
    a("s_nop 7\ns_nop 1")
    for j in range(4):
        a(f"v_add_f32_dpp v{SD+j}, v{136+j}, v{136+j} row_ror:8 row_mask:0xf bank_mask:0xf")
    for j in range(4):
        a(f"v_perm_b32 v{SD+j}, v{SD+j}, s{S_TAG}, v{140+j}")
def table_touch(a):
    a(f"""
    s_sub_u32 s63, s63, 28
    s_lshl2_add_u32 s63, s63, s61
    s_lshl_b32 s63, s63, 14
    s_add_u32 s63, s63, 1024
    v_lshlrev_b32 v1, 8, v{VL}
    """)
    srd_hi(a,64,T_BYTES)
    a(f"s_cmp_eq_u32 s69, 1\ns_waitcnt lgkmcnt(0)\ns_cselect_b64 s[64:65], s[{P_HIM}:{P_HIM+1}], s[{P_HRE}:{P_HRE+1}]")
    epoch_load(a,128)
    a(f"buffer_load_dword v252, v1, s[64:67], s63 offen\nbuffer_load_dword v252, v1, s[64:67], s63 offen offset:128")

def rows_loads(a):
    a(f"""
    s_sub_u32 s60, s{S_WAVE}, 1
    s_lshl1_add_u32 s63, s70, s60
    s_lshl_b32 s62, s71, 8
    s_add_u32 s63, s63, s62
    s_lshl_b32 s63, s63, 10
    v_lshrrev_b32 v1, 4, v{VL}
    v_and_b32 v2, 15, v{VL}
    v_lshlrev_b32 v3, 4, v2
    v_lshl_add_u32 v3, v1, 16, v3
    s_waitcnt lgkmcnt(0)
    """)
    srd_lo(a,SX,P_X)
    epoch_load(a,128)
    for p in range(4):
        a(f"buffer_load_dwordx4 {vr(168+4*p,4)}, v3, {sr(SX)}, s63 offen offset:{256*p}")
def rows_finish(a):
    a(f"""
    v_and_b32 v141, 15, v{VL}
    v_cmp_eq_u32 vcc, 0, v141
    v_lshl_add_u32 v140, v{VL}, 1, s68
    v_mov_b32 v131, 0x3f803f80
    v_cndmask_b32 v{SA}, v{SA}, v140, vcc
    v_mov_b32 v132, 0
    v_mov_b32 v133, 0
    v_mov_b32 v134, 0x00003f80
    v_mov_b32 v135, 0x3f800000
    v_mov_b32 v136, 0
    v_mov_b32 v137, 0
    """)
    a("s_waitcnt vmcnt(4)"); epoch_tag(a,128)
    for p in range(4):
        a(f"s_waitcnt vmcnt({3-p})")
        for r in range(4):
            a(f"v_dot2c_f32_bf16 v{132+(r&1)}, v{168+4*p+r}, v131")
    a("s_nop 2\nv_add_f32 v132, v132, v133")
    def red(v):
        for s in (8,4,2,1):
            a(f"s_nop 1\nv_add_f32_dpp v{v}, v{v}, v{v} row_ror:{s} row_mask:0xf bank_mask:0xf")
    red(132)
    a(f"v_mul_f32 v132, {hx(-1.0/512)}, v132")
    for p in range(4):
        for r in range(4):
            a(f"v_dot2_f32_bf16 v{144+2*r}, v{168+4*p+r}, v134, v132\nv_dot2_f32_bf16 v{145+2*r}, v{168+4*p+r}, v135, v132")
        for r in range(8):
            a(f"v_fmac_f32 v{136+(r&1)}, v{144+r}, v{144+r}")
    a("v_add_f32 v136, v136, v137")
    red(136)
    a(f"""
    v_mul_f32 v136, {hx(1.0/512)}, v136
    v_cvt_pk_bf16_f32 v136, v136, v132
    v_and_b32 v{SD}, 0xffff0000, v136
    v_lshlrev_b32 v136, 16, v136
    v_add_f32 v136, {hx(1e-5)}, v136
    v_cvt_pk_bf16_f32 v136, v136, v136
    v_lshlrev_b32 v136, 16, v136
    v_sqrt_f32 v136, v136
    s_nop 0
    v_cvt_pk_bf16_f32 v136, v136, v136
    v_lshlrev_b32 v136, 16, v136
    v_rcp_f32 v{SD+3}, v136
    v_mul_f32 v{SD+2}, v136, v136
    v_mov_b32 v{SD+1}, s{S_TAG}
    """)

XA,XB,WA,WB=128,160,192,208
AX0,AX1,AW0,AW1=224,225,226,227
FC,FS,FN=228,236,244

def compute1_setup(a,spec):
    a(f"""
    v_and_b32 v129, 15, v{VL}
    v_lshrrev_b32 v130, 4, v{VL}
    v_lshrrev_b32 v131, 1, v129
    v_xor_b32 v131, v131, v130
    v_lshlrev_b32 v131, 4, v131
    v_lshl_add_u32 v{AX0}, v129, 7, v131
    v_xor_b32 v{AX1}, 64, v{AX0}
    s_mov_b32 s73, {SLOT}
    """)
    if spec:
        a(f"s_lshl_b32 s62, s{S_WAVE}, 12\nv_add_u32 v{AW0}, s62, v{AX0}\nv_add_u32 v{AW1}, s62, v{AX1}")
    else:
        a(f"""
        v_lshrrev_b32 v131, 2, v129
        v_and_b32 v132, 3, v129
        v_and_b32 v133, 1, v130
        v_lshl_or_b32 v133, v133, 2, v131
        s_lshl_b32 s62, s{S_WAVE}, 1
        v_xor_b32 v133, s62, v133
        v_lshlrev_b32 v133, 5, v133
        v_lshl_add_u32 v133, v132, 3, v133
        v_lshl_add_u32 v131, v130, 3, v131
        v_lshl_add_u32 v{AW0}, v131, 8, v133
        v_xor_b32 v{AW1}, 32, v{AW0}
        """)

def dft32_consts(a):
    a(f"v_lshlrev_b32 v130, 2, v130\nv_cvt_f32_u32 v130, v130\nv_cvt_f32_u32 v129, v129")
    for tb in range(2):
        a(f"v_add_f32 v131, {hx(16.0*tb)}, v129\nv_mul_f32 v131, {hx(1/32.)}, v131")
        for j in range(8):
            a(f"v_add_f32 v132, {hx(16.0*(j>>2)+(j&3))}, v130\nv_mul_f32 v132, v132, v131\nv_cos_f32 v{136+j}, v132\nv_sin_f32 v{144+j}, v132")
        for p in range(4):
            a(f"v_cvt_pk_bf16_f32 v{FC+4*tb+p}, v{136+2*p}, v{137+2*p}\nv_cvt_pk_bf16_f32 v{FS+4*tb+p}, v{144+2*p}, v{145+2*p}")
            a(f"v_xor_b32 v{FN+4*tb+p}, 0x80008000, v{FS+4*tb+p}")

def zero_acc(a):
    for r in range(0,128,2): a(f"v_mov_b64 v[{r}:{r+1}], 0")

def scalars2(a):
    tile_map2(a)
    srd(a,SX,P_X,XB_BYTES); srd(a,SWS,P_WS,ws_end()); srd(a,SOUT,P_OUT,XB_BYTES)
    a(f"""
    s_lshr_b32 s74, s{S_WAVE}, 1
    s_and_b32 s75, s{S_WAVE}, 1
    s_lshl_b32 s62, s75, 10
    s_add_u32 s62, s62, s{S_T1}
    s_lshl3_add_u32 s62, s62, s{S_NB}
    s_lshl1_add_u32 s62, s62, s74
    s_lshl_b32 s77, s62, 6
    s_add_u32 s78, s77, {16*32*1024}
    s_lshl1_add_u32 s62, s{S_T1}, s75
    s_mul_i32 s79, s62, {112*1024}
    s_and_b32 s63, s{S_T1}, 1
    s_lshl1_add_u32 s62, s63, s74
    s_lshl_b32 s62, s62, 11
    s_add_u32 s79, s79, s62
    """)
    stage_rot(a,76,12)

class S1:
    def __init__(self,a,spec): self.a=a; self.spec=spec
    def reads(self,k,buf,ts=range(8)):
        xb,wb=((XA,WA),(XB,WB))[buf]
        xs=[f"ds_read_b128 {vr(xb+4*i,4)}, v{AX0+k} offset:{t*2048}" for i,t in enumerate(ts)]
        ws=[]
        for g in range(4):
            if self.spec:
                ws.append(f"ds_read_b128 {vr(wb+4*g,4)}, v{AW0+k} offset:{16384+(g>>1)*16384+(g&1)*2048}")
            else:
                for rho in range(2):
                    ws.append(f"ds_read_b64_tr_b16 {vr(wb+4*g+2*rho,2)}, v{AW0+(g&1)} offset:{16384+(g>>1)*16384+k*8192+rho*1024}")
        return ws+xs
    def mfmas(self,buf,ts=range(8)):
        xb,wb=((XA,WA),(XB,WB))[buf]
        out=[]
        for i,t in enumerate(ts):
            for gg in range(4):
                g=gg if t%2==0 else 3-gg
                d=(t*4+g)*4
                x=vr(xb+4*i,4); w=vr(wb+4*g,4)
                p,q=(x,w) if self.spec else (w,x)
                out.append(f"{MF} {vr(d,4)}, {p}, {q}, {vr(d,4)}")
        return out
    def move(self,delta): return [f"v_add_u32 v{r}, {delta}, v{r}" for r in (AX0,AX1,AW0,AW1)]
    def weave(self,m,others):
        others=list(others)
        per=2 if len(m)==16 else 1
        assert len(others)<=per*len(m)
        for x in m:
            self.a(x)
            for _ in range(per):
                if others: self.a(others.pop(0))
    def loop(self):
        a=self.a
        a(f"s_mov_b32 s70, 0\ns_mov_b32 s72, 6")
        if CFG.get('mt'): a("s_mov_b32 m0, 20")
        ls(a,1)
        a("s_barrier")
        ls(a,2)
        for l in self.reads(0,0): a(l)
        a(f"buffer_store_dwordx4 {vr(SD,4)}, v{SA}, {sr(SWS)}, 0 offen sc1")
        loop=a.lab('loop')
        if CFG.get('al',1): a(".p2align 6")
        a(f"{loop}:")
        a("s_waitcnt lgkmcnt(0)")
        if CFG.get('mt'): a("v_writelane_b32 v254, s96, m0\ns_add_u32 m0, m0, 1")
        self.weave(self.mfmas(0),self.reads(1,1)+["s_add_u32 s70, s70, 1\ns_cmp_eq_u32 s70, 3",f"s_cselect_b32 s71, {-2*SLOT}, s73\ns_cselect_b32 s70, 0, s70"]+self.move("s71"))
        a("s_waitcnt lgkmcnt(0)\ns_barrier")
        if CFG.get('mt'): a("s_memrealtime s[96:97]")
        self.weave(self.mfmas(1),self.reads(0,0)+["s_sub_u32 s72, s72, 1\ns_cmp_lg_u32 s72, 0"])
        a(f"s_cbranch_scc1 {loop}")
    def half(self,h,last,mid=None):
        a=self.a; ts=range(4*h,4*h+4)
        a("s_waitcnt lgkmcnt(0)")
        self.weave(self.mfmas(0,ts),self.reads(1,1,ts)+self.move(SLOT))
        a("s_waitcnt lgkmcnt(0)\ns_barrier")
        self.weave(self.mfmas(1,ts),self.reads(0,0,ts))
        a("s_waitcnt lgkmcnt(0)")
        self.weave(self.mfmas(0,ts),self.reads(1,1,ts)+(self.move(-SLOT) if h==0 else []))
        if h==1: a("s_waitcnt vmcnt(0) lgkmcnt(0)\ns_barrier")
        else: a("s_waitcnt lgkmcnt(0)")
        self.weave(self.mfmas(1,ts),last)

def epilogue_ffn_setup(a):
    a(f"""
    v_lshlrev_b32 v229, 4, v129
    v_add_u32 v229, {L_STAT}, v229
    v_and_b32 v131, 1, v130
    v_lshl_add_u32 v228, v131, 4, v129
    v_lshrrev_b32 v131, 1, v130
    v_lshl_add_u32 v228, v131, 7, v228
    s_lshl_b32 s62, s{S_WAVE}, 5
    v_add_u32 v228, s62, v228
    v_lshlrev_b32 v228, 2, v228
    v_add_u32 v228, {L_CS}, v228
    v_lshlrev_b32 v230, 4, v{VL}
    s_mul_i32 s62, s{S_I}, {8*56}
    s_lshl2_add_u32 s62, s{S_J}, s62
    s_add_u32 s62, s62, s{S_WAVE}
    s_lshl_b32 s62, s62, 10
    s_add_u32 s63, s62, {4*56*1024}
    s_bitcmp1_b32 s{S_J}, 0
    s_cselect_b32 s90, s63, s62
    s_cselect_b32 s92, s62, s63
    """)
ST=144
def ffn_stat_reads(h):
    out=[f"ds_read_b32 v{231+q}, v228 offset:{1024*q}" for q in range(4)] if h==0 else []
    return out+[f"ds_read_b128 {vr(ST+4*i,4)}, v229 offset:{256*(4*h+i)}" for i in range(4)]
def epilogue_ffn(a,h,nafter):
    a(f"s_waitcnt lgkmcnt({nafter})")
    if h==0:
        for q in range(4): a(f"v_and_b32 v{231+q}, 0xffffff00, v{231+q}")
        a("v_add_f32 v231, v231, v232\nv_add_f32 v233, v233, v234\nv_add_f32 v231, v231, v233\ns_nop 1")
    else: a("s_mov_b32 s90, s92")
    for i in range(4):
        t=4*h+i
        if i==3: a("s_nop 1")
        a(f"v_mfma_f32_16x16x1_4b_f32 {vr(16*t,16)}, v231, v{ST+4*i}, {vr(16*t,16)}")
        a(f"v_mul_f32 v{ST+4*i+1}, {hx(-LOG2E)}, v{ST+4*i+3}")
    a("s_nop 1")
    T=176
    for i in range(4):
        t=4*h+i
        b=16*t; s=ST+4*i; o=184+4*(i&1)
        for p in range(4):
            a(f"v_pk_mul_f32 {vr(T+2*p,2)}, {vr(b+2*p,2)}, {vr(s,2)} op_sel:[0,1] op_sel_hi:[1,1]")
        for p in range(8): a(f"v_exp_f32 v{T+p}, v{T+p}")
        for p in range(4):
            a(f"v_pk_mul_f32 {vr(b+2*p,2)}, {vr(b+2*p,2)}, {vr(b+8+2*p,2)}")
        for p in range(4):
            a(f"v_pk_fma_f32 {vr(T+2*p,2)}, {vr(T+2*p,2)}, {vr(s+2,2)}, {vr(s+2,2)} op_sel:[0,0,0] op_sel_hi:[1,0,0]")
        for p in range(8): a(f"v_rcp_f32 v{T+p}, v{T+p}")
        for p in range(4):
            a(f"v_pk_mul_f32 {vr(b+2*p,2)}, {vr(b+2*p,2)}, {vr(T+2*p,2)}")
        for p in range(4):
            a(f"v_cvt_pk_bf16_f32 v{o+p}, v{b+2*p}, v{b+2*p+1}")
        a(f"buffer_store_dwordx4 {vr(o,4)}, v230, {sr(SWS)}, s90 offen sc1")
        if i<3: a(f"s_add_u32 s90, s90, {56*1024}")
def stage1_ffn(a):
    S=S1(a,False)
    S.loop()
    nxt=S.reads(0,0,range(4,8))
    S.half(0,ffn_stat_reads(0)+nxt)
    ls(a,3)
    epilogue_ffn(a,0,len(nxt))
    ls(a,14)
    S.half(1,ffn_stat_reads(1))
    ls(a,15)
    epilogue_ffn(a,1,0)

def spec_acc(tb,eb,b,ri): return 64*(b>>1)+(((tb*2+eb)*2+(b&1))*2+ri)*4
def epilogue_spec(a,h,nafter):
    R=144; Z=160
    a(f"s_waitcnt lgkmcnt({nafter})")
    for i in range(4):
        t=4*h+i
        for g in range(4):
            d=(t*4+g)*4
            for p in range(2):
                a(f"v_pk_mul_f32 {vr(d+2*p,2)}, {vr(d+2*p,2)}, {vr(R+4*i+2*p,2)}")
        for g in range(4):
            d=(t*4+g)*4
            z=Z+((i>>1)*4+g)*4+(i&1)*2
            for p in range(2):
                a(f"v_cvt_pk_bf16_f32 v{z+p}, v{d+2*p}, v{d+2*p+1}")
    a("s_nop 1")
    acc=spec_acc
    def group(tb,eb):
        out=[]
        for bl in range(2):
            b=2*h+bl
            zr=vr(Z+(bl*4+eb)*4,4); zi=vr(Z+(bl*4+2+eb)*4,4)
            out+=[f"{MF} {vr(acc(tb,eb,b,0),4)}, {vr(FC+4*tb,4)}, {zr}, 0",
                  f"{MF} {vr(acc(tb,eb,b,1),4)}, {vr(FC+4*tb,4)}, {zi}, 0",
                  f"{MF} {vr(acc(tb,eb,b,0),4)}, {vr(FS+4*tb,4)}, {zi}, {vr(acc(tb,eb,b,0),4)}",
                  f"{MF} {vr(acc(tb,eb,b,1),4)}, {vr(FN+4*tb,4)}, {zr}, {vr(acc(tb,eb,b,1),4)}"]
        return out
    def pack(tb,eb,n0):
        out=[]
        for j in range(4):
            o=128+4*((n0+j)%8)
            for b in range(4):
                out.append(f"v_cvt_pk_bf16_f32 v{o+b}, v{acc(tb,eb,b,0)+j}, v{acc(tb,eb,b,1)+j}")
            out.append(f"s_add_u32 s63, s90, {(16*tb+j)*65536}\nbuffer_store_dwordx4 {vr(o,4)}, v253, {sr(SWS)}, s63 offen offset:{eb*256} sc1")
        return out
    gs=[(0,0),(0,1),(1,0),(1,1)]
    for gi,(tb,eb) in enumerate(gs):
        m=group(tb,eb)
        pk=pack(*gs[gi-2],4*(gi-2)) if (h==1 and gi>1) else []
        for i,x in enumerate(m):
            a(x)
            for _ in range(3):
                if pk: a(pk.pop(0))
    if h==1:
        for x in pack(1,0,8)+pack(1,1,12): a(x)
def stage1_spec(a):
    S=S1(a,True)
    S.loop()
    a(f"""
    s_waitcnt vmcnt(0)
    v_lshrrev_b32 v252, 4, v{VL}
    v_and_b32 v253, 15, v{VL}
    v_lshlrev_b32 v253, 4, v253
    v_lshl_add_u32 v253, v252, 18, v253
    v_lshlrev_b32 v252, 4, v252
    v_add_u32 v252, {L_RSTD}, v252
    """)
    rr=lambda h: [f"ds_read_b128 {vr(144+4*i,4)}, v252 offset:{64*(4*h+i)}" for i in range(4)]
    nxt=S.reads(0,0,range(4,8))
    S.half(0,rr(0)+nxt)
    ls(a,3)
    epilogue_spec(a,0,len(nxt))
    ls(a,14)
    S.half(1,rr(1))
    ls(a,15)
    epilogue_spec(a,1,0)

def compute2(a):
    PF=6; LC=CFG.get('lc',9); BY=CFG.get('by',23)
    ACC=0; HF=32; WF=80; XP=224; AW=232; AH=244; AO=246
    ls(a,4)
    vm=VM(); vm.op('st')
    def hload(n,t):
        sg,k=divmod(n,2); b=HF+8*(n%PF)
        a(f"buffer_load_dwordx4 {vr(b+4*t,4)}, v{AH+t}, {sr(SWS)}, s{80+sg%7} offen offset:{k*1024} sc1"); vm.op(f"h{n}")
    a(f"v_lshl_add_u32 v{AH}, v{VL}, 4, s79\nv_add_u32 v{AH+1}, {56*1024}, v{AH}")
    setup=Asm()
    a0=a; a=setup
    a(f"""
    v_and_b32 v6, 15, v{VL}
    v_lshrrev_b32 v2, 4, v{VL}
    v_lshrrev_b32 v3, 2, v6
    v_and_b32 v4, 3, v6
    v_lshl_add_u32 v3, v2, 2, v3
    v_bfe_u32 v5, v3, 1, 2
    s_lshl_b32 s62, s74, 1
    v_xor_b32 v5, s62, v5
    v_lshlrev_b32 v5, 5, v5
    v_lshl_add_u32 v5, v4, 3, v5
    v_lshl_add_u32 v5, v3, 7, v5
    s_lshl_b32 s62, s74, 12
    v_add_u32 v{AW}, s62, v5
    """)
    for eb in range(1,4): a(f"v_xor_b32 v{AW+eb}, {eb<<5}, v{AW}")
    for eb in range(4): a(f"v_add_u32 v{AW+4+eb}, 0x10000, v{AW+eb}")
    a=a0
    su=list(setup.l)
    a("s_barrier")
    ls(a,18)
    for n in range(PF):
        for t in range(2):
            hload(n,t)
            for _ in range(2):
                if su: a(su.pop(0))
    assert not su
    ls(a,7)
    def wreads(n):
        b=WF+16*(n%NPRE); u=pos(n); k=u>>16
        return [f"ds_read_b64_tr_b16 {vr(b+4*eb+2*rho,2)}, v{AW+4*k+eb} offset:{(u&0xffff)+rho*2048}" for eb in range(4) for rho in range(2)]
    other=[f"v_add_u32 v{AW+8+eb}, 0x20000, v{AW+eb}" for eb in range(4)]+f"""
    v_lshlrev_b32 v3, 15, v6
    v_and_b32 v4, 1, v2
    v_lshlrev_b32 v4, 5, v4
    v_lshrrev_b32 v5, 1, v2
    v_lshl_add_u32 v4, v5, 4, v4
    v_add_u32 v{AO}, v3, v4
    """.split('\n')
    other=[x for x in other if x.strip()]
    for n in range(NPRE):
        for l in wreads(n):
            a(l)
            if other and n>=1: a(other.pop(0))
    assert not other
    ls(a,5)
    a(f"s_waitcnt vmcnt({vm.need('st')}) lgkmcnt(0)\ns_barrier")
    ls(a,12)
    XR=WF+16*2
    tailwork=[]
    for t in range(2):
        tailwork+=[f"v_permlane16_swap_b32 v{XP+4*t}, v{XP+4*t+2}",f"v_permlane16_swap_b32 v{XP+4*t+1}, v{XP+4*t+3}"]
    for i in range(8):
        tailwork+=[f"v_lshlrev_b32 v{XR+2*i}, 16, v{XP+i}",f"v_and_b32 v{XR+2*i+1}, 0xffff0000, v{XP+i}"]
    tailwork+=[f"v_lshlrev_b32 v249, 4, v{VL}",f"s_lshl_b32 s62, s{S_WAVE}, 12",f"s_add_u32 s62, s62, {L_RED}","v_add_u32 v250, s62, v249","v_xor_b32 v251, 8192, v250",
               "s_lshl2_add_u32 s62, s74, s75","s_lshl_b32 s62, s62, 11",f"s_add_u32 s62, s62, {L_Y}","v_add_u32 v252, s62, v249",f"s_mov_b32 s64, {hx(-LOG2E)}","s_mov_b32 s65, s64"]
    for n in range(28):
        need=[f"h{n}"]
        if n==23: need.append('x')
        w=f"s_waitcnt vmcnt({vm.need(*need)})"
        if n>=NPRE: w+=f" lgkmcnt({8 if n<27 else 0})"
        a(w)
        if n==0: ls(a,11)
        if n==LC:
            if CFG.get('ct'): ls(a,13)
            a("s_barrier")
            if CFG.get('ct'): ls(a,19)
            for m in range(14,LC+PF):
                for t in range(2): hload(m,t)
        if n==BY:
            if CFG.get('ct'): ls(a,16)
            a("s_barrier")
            if CFG.get('ct'): ls(a,17)
        r=wreads(n+2) if NPRE<=n+2<28 else []
        hb=HF+8*(n%PF); wb=WF+16*(n%NPRE)
        order=[(t,(ee if t==0 else 3-ee)) for t in range(2) for ee in range(4)]
        if n==27: order=[(0,2),(0,3),(1,3),(1,2),(1,1),(1,0),(0,0),(0,1)]
        for i,(t,eb) in enumerate(order):
            d=ACC+(t*4+eb)*4
            a(f"{MF} {vr(d,4)}, {vr(wb+4*eb,4)}, {vr(hb+4*t,4)}, {'0' if n==0 else vr(d,4)}")
            if i<len(r): a(r[i])
            if n+PF<28 and i in (3,7) and (n+PF<14 or n>=LC): hload(n+PF,i//4)
            if n==14-PF and i in (3,7):
                t2=i//4
                a(f"buffer_load_dwordx4 {vr(XP+4*t2,4)}, v{AO}, {sr(SX)}, s{77+t2} offen"); vm.op('x')
                a(f"v_xor_b32 v{AH+t2}, 4096, v{AH+t2}")
            if n>=23 and tailwork: a(tailwork.pop(0))
    assert not tailwork and LC>14-PF
    ls(a,8)
    a("s_nop 3")
    for t,eb in ((0,0),(0,1),(1,1),(1,0)):
        a(f"ds_write_b128 v250, {vr(ACC+(t*4+2+eb)*4,4)} offset:{(t*2+eb)*1024}")
    a("s_waitcnt lgkmcnt(0)\ns_barrier")
    RD=32; Y=48; T=64
    for t in range(2):
        for eb in range(2):
            a(f"ds_read_b128 {vr(RD+(t*2+eb)*4,4)}, v251 offset:{(t*2+eb)*1024}")
        for eb in range(2):
            a(f"ds_read_b128 {vr(Y+(t*2+eb)*4,4)}, v252 offset:{eb*4096+t*1024}")
    ofl=CFG.get('ofl','none').replace('none','').replace('+',' ')
    for t in range(2):
        b=ACC+t*16
        a(f"s_waitcnt lgkmcnt({6-4*t})")
        for p in range(4): a(f"v_pk_add_f32 {vr(b+2*p,2)}, {vr(b+2*p,2)}, {vr(RD+t*8+2*p,2)}")
        for p in range(4): a(f"v_pk_mul_f32 {vr(T+2*p,2)}, {vr(b+2*p,2)}, s[64:65]")
        for p in range(8): a(f"v_exp_f32 v{T+p}, v{T+p}")
        a(f"s_waitcnt lgkmcnt({4-4*t})")
        for p in range(4): a(f"v_pk_mul_f32 {vr(b+2*p,2)}, {vr(b+2*p,2)}, {vr(Y+t*8+2*p,2)}")
        for p in range(4): a(f"v_pk_add_f32 {vr(T+2*p,2)}, {vr(T+2*p,2)}, 1.0 op_sel_hi:[1,0]")
        for p in range(8): a(f"v_rcp_f32 v{T+p}, v{T+p}")
        for p in range(4): a(f"v_pk_fma_f32 {vr(b+2*p,2)}, {vr(b+2*p,2)}, {vr(T+2*p,2)}, {vr(XR+t*8+2*p,2)}")
        o=72+4*t
        for p in range(4): a(f"v_cvt_pk_bf16_f32 v{o+p}, v{b+2*p}, v{b+2*p+1}")
        a(f"s_nop 1\nv_permlane16_swap_b32 v{o}, v{o+2}\nv_permlane16_swap_b32 v{o+1}, v{o+3}")
        a(f"buffer_store_dwordx4 {vr(o,4)}, v{AO}, {sr(SOUT)}, s{77+t} offen {ofl}")
    ls(a,9)
    if diag() and not CFG.get('gap'):
        a("s_waitcnt vmcnt(0)"); ls(a,10)
        ls_dump(a)

class Loader:
    def __init__(self,a): self.a=a; self.vm=VM(); self.m0=None; self.fill=[]; self.extra=[]; self.thr=0; self.regs={}
    def setm0(self,val):
        a=self.a
        if self.m0 is not None and -32768<=val-self.m0<=32767: a(f"s_addk_i32 m0, {val-self.m0}")
        else: a(f"s_add_u32 m0, s92, {val}")
        self.m0=val
    def dma(self,lds,vaddr,srdn,soff,tag,pre=None):
        self.setm0(lds)
        self.a(pre if pre else (self.fill.pop(0) if self.fill else "s_nop 0"))
        self.a(f"buffer_load_dwordx4 v{vaddr}, {sr(srdn)}, {soff} offen lds"); self.vm.op(tag)
        if self.extra: self.a(self.extra.pop(0))
        if self.thr: self.a(f"s_waitcnt vmcnt({self.thr})")
    def issue(self,c,lo=0,hi=4):
        slot=c%3
        for p in range(lo,hi):
            self.dma(slot*SLOT+p*4096,10,SX,f"s{64+p}",f"c{c}")
            self.fill.append(f"s_addk_i32 s{64+p}, 128")
            self.dma(slot*SLOT+16384+p*4096,11,SB0,f"s{68+p}",f"c{c}")
            self.dma(slot*SLOT+32768+p*4096,11,SB1,f"s{68+p}",f"c{c}")
            self.fill.append(f"s_add_u32 s{68+p}, s{68+p}, s72")
    def wd_off(self,n,kh):
        sg,k=divmod(n,2)
        return f"s_add_u32 s62, s{80+sg%7}, {(kh*64+32*k)*1024}"
    def wd(self,n,tag='wd'):
        for kh in range(2):
            self.dma(pos(n)+kh*4096,18 if n<14 else 17,SWD,"s62",tag,pre=self.wd_off(n,kh))
    def wreg(self,n):
        self.regs[n]=128+8*len(self.regs)
        for kh in range(2):
            self.a(self.wd_off(n,kh))
            self.a(f"buffer_load_dwordx4 {vr(self.regs[n]+4*kh,4)}, v{18 if n<14 else 17}, {sr(SWD)}, s62 offen"); self.vm.op('wr')
            if self.thr: self.a(f"s_waitcnt vmcnt({self.thr})")
    def put(self,n):
        u=pos(n)
        for kh in range(2):
            self.a(f"ds_write_b128 v{(21,23,26)[u>>16]}, {vr(self.regs[n]+4*kh,4)} offset:{(u&0xffff)+kh*4096}")
    def bar(self,c,*tags):
        a=self.a
        a(f"s_waitcnt vmcnt({self.vm.need(*tags)})")
        if CFG.get('lt',1): ls(a,2+2*c)
        a("s_barrier")
        if CFG.get('lt',1): ls(a,3+2*c)

def loader_start(a,L):
    sp=a.lab('lsp'); jn=a.lab('ljn')
    a(f"""
    s_sub_u32 s74, s{S_WAVE}, 4
    s_lshl_b32 s92, s74, 10
    v_lshrrev_b32 v1, 3, v{VL}
    v_lshl_add_u32 v1, s74, 3, v1
    v_bfe_u32 v2, v1, 1, 3
    v_and_b32 v3, 7, v{VL}
    v_xor_b32 v2, v2, v3
    v_lshlrev_b32 v2, 4, v2
    s_cmp_ge_u32 s{S_J}, 14
    s_cbranch_scc1 {sp}
    v_lshl_add_u32 v10, v1, 15, v2
    v_lshrrev_b32 v3, 4, v{VL}
    v_lshl_add_u32 v4, s74, 2, v3
    v_mul_u32_u24 v4, 3584, v4
    s_lshr_b32 s62, s74, 1
    v_lshl_or_b32 v3, s62, 2, v3
    v_lshlrev_b32 v3, 1, v3
    v_and_b32 v5, 15, v{VL}
    v_xor_b32 v3, v3, v5
    v_lshl_add_u32 v11, v3, 4, v4
    s_and_b32 s64, s{S_J}, 1
    s_lshl1_add_u32 s64, s{S_I}, s64
    s_lshl_b32 s64, s64, 10
    s_add_u32 s65, s64, 0x100000
    s_xor_b32 s66, s64, 0x400
    s_xor_b32 s67, s65, 0x400
    s_lshl_b32 s68, s{S_J}, 8
    s_mov_b32 s62, {16*3584}
    s_mov_b32 s72, {64*3584}
    s_mov_b32 s{SB0+2}, {W_BYTES}
    s_waitcnt lgkmcnt(0)
    s_mov_b64 s[{SB0}:{SB0+1}], s[{P_WG}:{P_WG+1}]
    s_mov_b64 s[{SB1}:{SB1+1}], s[{P_WU}:{P_WU+1}]
    s_branch {jn}
    {sp}:
    v_lshl_add_u32 v10, v1, 16, v2
    v_lshl_add_u32 v11, v1, 10, v2
    s_lshl_b32 s64, s{S_I}, 12
    s_add_u32 s65, s64, 0x400
    s_add_u32 s66, s64, 0x800
    s_add_u32 s67, s64, 0xc00
    s_sub_u32 s68, s{S_J}, 14
    s_lshl_b32 s68, s68, 17
    s_add_u32 s68, s68, 0x400
    s_mov_b32 s62, 0x8000
    s_movk_i32 s72, 128
    s_mov_b32 s{SB0+2}, {T_BYTES}
    s_waitcnt lgkmcnt(0)
    s_mov_b64 s[{SB0}:{SB0+1}], s[{P_HRE}:{P_HRE+1}]
    s_mov_b64 s[{SB1}:{SB1+1}], s[{P_HIM}:{P_HIM+1}]
    {jn}:
    s_mov_b32 s{SB0+3}, 0x00020000
    s_mov_b32 s{SB1+3}, 0x00020000
    s_mov_b32 s{SB1+2}, s{SB0+2}
    s_add_u32 s69, s68, s62
    s_add_u32 s70, s69, s62
    s_add_u32 s71, s70, s62
    """)
    srd_lo(a,SX,P_X)
    ls_first(a)
    if CFG.get('ldelay',0): a(f"s_sleep {CFG['ldelay']}")
    ls(a,1)

def loader(a,L):
    vm=L.vm
    CB=64; GA=208; YA=224
    epoch_load(a,9)
    n0=CFG.get('n0',3)
    L.issue(0,0,n0)
    tile_map2(a)
    a(f"""
    v_and_b32 v12, 15, v{VL}
    v_lshrrev_b32 v13, 4, v{VL}
    s_mov_b32 s63, {hx(1/2048.)}
    s_mov_b32 s60, 0x8000
    s_mov_b32 s61, 0x80000000
    s_cmp_ge_u32 s{S_NB}, 4
    s_cselect_b32 s90, {hx(-1/2048.)}, s63
    s_cselect_b32 s75, s61, s60
    s_cselect_b32 s73, s60, s61
    v_lshlrev_b32 v2, 2, v13
    v_cvt_f32_u32 v2, v2
    v_lshl_add_u32 v3, v12, 5, s{S_T1}
    v_cvt_f32_u32 v3, v3
    v_mul_f32 v3, s90, v3
    """)
    for k in range(4):
        c=lambda tb,b: CB+(tb*4+k)*4+b
        a(f"v_add_f32 v40, {hx(16.0*k)}, v2\nv_mul_f32 v40, v40, v3\nv_add_f32 v41, v40, v3\nv_add_f32 v42, v41, v3\nv_add_f32 v43, v42, v3")
        for b in range(4): a(f"v_cos_f32 v{44+b}, v{40+b}\nv_sin_f32 v{48+b}, v{40+b}")
        for b in range(4): a(f"v_cvt_pk_bf16_f32 v{c(0,b)}, v{44+b}, v{48+b}")
        a(f"v_cvt_pk_bf16_f32 v40, v49, v45\nv_cvt_pk_bf16_f32 v41, v51, v47")
        for tb in range(1,4): a(f"v_mov_b32 v{c(tb,0)}, v{c(0,0)}")
        a(f"v_xor_b32 v{c(1,1)}, s75, v40\nv_xor_b32 v{c(3,1)}, s73, v40\nv_xor_b32 v{c(1,3)}, s73, v41\nv_xor_b32 v{c(3,3)}, s75, v41")
        a(f"v_xor_b32 v{c(2,1)}, 0x80008000, v{c(0,1)}\nv_xor_b32 v{c(2,3)}, 0x80008000, v{c(0,3)}")
        a(f"v_xor_b32 v{c(1,2)}, 0x80008000, v{c(0,2)}\nv_mov_b32 v{c(2,2)}, v{c(0,2)}\nv_mov_b32 v{c(3,2)}, v{c(1,2)}")
    L.issue(0,n0,4); L.issue(1,0,CFG.get('i1',2))
    srd(a,SWS,P_WS,ws_end()); srd(a,SWD,P_WD,W_BYTES)
    a(f"""
    v_and_b32 v6, 7, v{VL}
    v_lshlrev_b32 v5, 1, v13
    v_xor_b32 v6, v6, v5
    v_lshlrev_b32 v6, 4, v6
    v_lshl_add_u32 v6, v1, 10, v6
    s_and_b32 s60, s{S_T1}, 1
    s_lshl_b32 s60, s60, 10
    s_add_u32 s60, s60, s{S_NB}
    v_lshl_add_u32 v18, s60, 7, v6
    v_xor_b32 v17, 0x20000, v18
    """)
    stage_rot(a,60,17)
    a(f"""
    s_lshl2_add_u32 s60, s2, s74
    s_mul_i32 s60, s60, 1792
    s_add_u32 s76, s{P_WD}, s60
    s_addc_u32 s77, s{P_WD+1}, 0
    s_lshl2_add_u32 s60, s{S_LOC}, s74
    s_mul_i32 s60, s60, {14*1024}
    s_add_u32 s60, s60, 384
    s_add_u32 s78, s{P_WD}, s60
    s_addc_u32 s79, s{P_WD+1}, 0
    """)
    sp2=a.lab('gspec'); j2=a.lab('gjoin')
    a(f"v_and_b32 v5, 31, v{VL}\ns_and_b32 s60, s74, 1\ns_lshr_b32 s63, s74, 1\ns_cmp_ge_u32 s{S_J}, 14\ns_cbranch_scc1 {sp2}")
    a(f"v_and_b32 v3, 1, v5\nv_lshlrev_b32 v3, 10, v3\nv_and_b32 v4, 30, v5\ns_and_b32 s61, s{S_J}, 1\ns_xor_b32 s63, s63, s61\ns_lshl1_add_u32 s61, s{S_I}, s60\ns_lshl_b32 s61, s61, 5\ns_add_u32 s61, s61, s63\nv_add3_u32 v20, v3, v4, s61\ns_branch {j2}\n{sp2}:")
    a(f"s_lshl1_add_u32 s61, s{S_I}, s63\ns_lshl_b32 s61, s61, 6\ns_add_u32 s61, s61, s60\nv_lshl_add_u32 v20, v5, 1, s61\n{j2}:")
    a(f"""
    v_lshlrev_b32 v20, 4, v20
    v_lshlrev_b32 v5, 4, v5
    v_lshrrev_b32 v6, 5, v{VL}
    v_mul_u32_u24 v6, {1792*4}, v6
    s_min_u32 s61, s{S_J}, 13
    s_lshl_b32 s61, s61, 9
    v_add3_u32 v22, v5, v6, s61
    s_mul_i32 s88, s74, {3584*4}
    s_add_u32 s88, s88, {WS_CS}
    s_mov_b32 s87, {WS_ST}
    v_mov_b32 v15, 0x0c0c0400
    v_mov_b32 v16, 0x04000c0c
    v_lshl_add_u32 v21, v{VL}, 4, s92
    v_add_u32 v23, 0x10000, v21
    """)
    a(f"""
    s_lshl2_add_u32 s60, s{S_NB}, s74
    s_lshl_b32 s60, s60, 4
    v_add_u32 v3, s60, v12
    v_sub_u32 v4, 512, v3
    s_sub_u32 s61, 32, s{S_T1}
    s_and_b32 s61, s61, 31
    s_sub_u32 s63, 496, s60
    s_max_u32 s73, s60, 1
    s_sub_u32 s73, s73, 1
    s_add_u32 s75, s60, 14
    s_cmp_ge_u32 s{S_NB}, 4
    s_cselect_b32 s61, s61, s{S_T1}
    s_cselect_b64 vcc, -1, 0
    s_cselect_b32 s73, s63, s73
    s_cselect_b32 s75, s63, s75
    v_cndmask_b32 v4, v3, v4, vcc
    v_subrev_u32 v4, 1, v4
    v_lshlrev_b32 v4, 4, v4
    v_lshl_add_u32 v4, v13, 12, v4
    v_cmp_eq_u32 vcc, 0, v3
    v_mov_b32 v5, {OOB}
    s_lshl_b32 s61, s61, 16
    v_cndmask_b32 v19, v4, v5, vcc
    s_add_u32 s91, s61, {WS_G}
    s_lshr_b32 s73, s73, 7
    s_lshr_b32 s75, s75, 7
    s_sub_u32 s75, s75, s73
    v_and_b32 v5, 1, v13
    v_mul_u32_u24 v5, s75, v5
    v_lshl_add_u32 v5, v12, 4, v5
    v_add_lshl_u32 v14, v5, s73, 9
    s_lshr_b32 s61, s{S_T1}, 1
    s_and_b32 s63, s{S_T1}, 1
    s_lshl4_add_u32 s61, s61, s63
    s_lshl_b32 s61, s61, 9
    s_add_u32 s61, s61, {WS_FL}
    s_xor_b32 s63, s61, 0x300
    s_add_u32 s34, s{P_WS}, s61
    s_addc_u32 s35, s{P_WS+1}, 0
    s_add_u32 s36, s{P_WS}, s63
    s_addc_u32 s37, s{P_WS+1}, 0
    """)
    flag_addr(a,61)
    a(f"s_add_u32 s42, s{P_WS}, s61\ns_addc_u32 s43, s{P_WS+1}, 0\nv_and_b32 v5, 1, v{VL}\nv_lshlrev_b32 v5, 8, v5\nbuffer_load_dwordx2 v[32:33], v5, {sr(SWS)}, s61 offen sc1"); vm.op('old')
    sl=[f"s_load_dword s95, s[76:77], {q*64}" for q in range(28)]+[f"s_load_dword s95, s[78:79], {(q//2)*1024+(q&1)*64}" for q in range(28)]
    ss=[int(c,16) for c in str(CFG.get('sps','e777777')).zfill(7)]
    def spf(rnd):
        if not CFG.get('spf',1): return
        for _ in range(ss[rnd]):
            if sl: a(sl.pop(0))
    def gather():
        a(f"buffer_load_dwordx4 v[24:27], v20, {sr(SWS)}, s87 offen sc1\nbuffer_load_dwordx4 v[28:31], v22, {sr(SWS)}, s88 offen sc1")
    def watch(base):
        np_=a.lab('nopoll'); lp=a.lab('poll')
        a(f"s_cmp_lg_u32 s74, 3\ns_cbranch_scc1 {np_}\ns_mov_b32 s89, {SPIN}\n{lp}:")
        R=(64,66,68,70,72,76,78)
        for q in range(7): a(f"s_load_dwordx2 s[{R[q]}:{R[q]+1}], s[{base}:{base+1}], {q*1024} glc")
        a(f"s_sub_u32 s89, s89, 1\ns_cbranch_scc1 {np_}\ns_waitcnt lgkmcnt(0)")
        for q in range(7): a(f"s_cmp_lg_u64 s[{R[q]}:{R[q]+1}], s[{S_TAG}:{S_TAG+1}]\ns_cbranch_scc1 {lp}")
        a(f"{np_}:")
    def raise_flag(h):
        sk=a.lab('nf')
        a(f"s_cmp_lg_u32 s74, 0\ns_cbranch_scc1 {sk}\ns_atomic_add_x2 s[{44+2*h}:{45+2*h}], s[42:43], {256*h}\n{sk}:")
    regq=list(range(19,28))+(list(range(12,18)) if CFG.get('r12',0) else [])
    sched=[int(c,16) for c in str(CFG.get('wrs','011111')).zfill(6)]
    def wregs(k):
        for _ in range(k):
            if regq: L.wreg(regq.pop(0))
    spf(0)
    L.bar(0,'c0')
    L.issue(1,CFG.get('i1',2),4); L.issue(2,0,CFG.get('i2',2)); spf(1); wregs(sched[0])
    epoch_tag(a,9)
    L.bar(1,'c1','old')
    L.extra=[f"v_readlane_b32 s44, v32, 0",f"v_readlane_b32 s45, v33, 0",f"v_readlane_b32 s46, v32, 1",f"v_readlane_b32 s47, v33, 1","s_nop 0",
             f"s_sub_u32 s44, s{S_TAG}, s44\ns_subb_u32 s45, s{S_TAG+1}, s45\ns_sub_u32 s46, s{S_TAG}, s46\ns_subb_u32 s47, s{S_TAG+1}, s47"]
    L.issue(2,CFG.get('i2',2),4); L.issue(3); spf(2); wregs(sched[1])
    L.bar(2,'c2')
    L.issue(4); spf(3); wregs(sched[2])
    L.bar(3,'c3')
    gather(); vm.op('g'); vm.op('g')
    L.issue(5); spf(4); wregs(sched[3])
    L.bar(4,'c4','g')
    check=["v_perm_b32 v3, v29, v28, v15","v_perm_b32 v4, v31, v30, v16",f"v_xor_b32 v5, s{S_TAG}, v25","v_or_b32 v3, v3, v4",f"v_xor_b32 v3, s{S_TAG}, v3","v_or_b32 v3, v3, v5"]
    L.extra=list(check)
    L.issue(6,0,2)
    rt=a.lab('rt'); ok=a.lab('ok')
    a(f"v_cmp_ne_u32 vcc, 0, v3\ns_cbranch_vccz {ok}\ns_mov_b32 s89, {SPIN}\n{rt}:")
    gather(); a("s_waitcnt vmcnt(0)")
    for x in check: a(x)
    a(f"v_cmp_ne_u32 vcc, 0, v3\ns_cbranch_vccz {ok}\ns_sleep 2\ns_sub_u32 s89, s89, 1\ns_cmp_lg_u32 s89, 0\ns_cbranch_scc1 {rt}\n{ok}:")
    L.issue(6,2,4); spf(5); wregs(sched[4])
    L.bar(5,'c5')
    L.issue(7); spf(6); wregs(sched[5])
    L.bar(6,'c6')
    a(f"s_add_u32 m0, s92, {L_CS}\ns_lshr_b32 s61, s92, 1\nbuffer_load_dwordx4 v22, {sr(SWS)}, s88 offen sc1 lds"); vm.op('gd')
    a(f"s_add_u32 m0, s61, {L_STAT}\ns_mov_b32 exec_hi, 0\nbuffer_load_dwordx4 v20, {sr(SWS)}, s87 offen sc1 lds"); vm.op('gd')
    a(f"s_lshr_b32 s61, s92, 3\ns_add_u32 m0, s61, {L_RSTD-12}\ns_nop 0\nbuffer_load_dword v20, {sr(SWS)}, s87 offen offset:12 sc1 lds\ns_mov_b32 exec_hi, -1"); vm.op('gd')
    L.m0=None
    u6=CFG.get('u6',3)
    for n in range(0,u6): L.wd(n)
    L.bar(7,'c7','gd')
    L.thr=CFG.get('thr',0)
    for n in list(range(u6,6))+[18]: L.wd(n)
    wregs(99)
    a(f"v_add_u32 v26, 0x20000, v21")
    ls(a,18); a("s_barrier"); ls(a,19)
    u7=CFG.get('u7',9)
    for n in range(6,u7): L.wd(n,'w8' if n<9 else 'wd')
    ls(a,20); a("s_barrier"); ls(a,21)
    raise_flag(0)
    u8=CFG.get('u8',18)
    if CFG.get('r12',0):
        for n in range(u7,12): L.wd(n)
        a("s_waitcnt vmcnt(0)")
        for n in range(12,18): L.put(n)
    else:
        for n in range(u7,u8): L.wd(n)
        a(f"s_waitcnt vmcnt({vm.need('w8')})")
    ls(a,22)
    watch(34)
    ls(a,28)
    a("s_barrier")
    if not CFG.get('r12',0):
        for n in range(u8,18): L.wd(n)
    a(f"s_waitcnt vmcnt(0) lgkmcnt(0)\ns_barrier")
    raise_flag(1)
    if CFG.get('lprio',2): a(f"s_setprio {CFG.get('lprio',2)}")
    for n in range(19,28): L.put(n)
    ls(a,27)
    watch(36)
    a("s_waitcnt lgkmcnt(0)")
    ls(a,23)
    a("s_barrier")
    if CFG.get('gap'): ls_dump(a)
    lp=a.lab('poll'); ok=a.lab('ok')
    a(f"s_mov_b32 s87, {WS_FL+14*512+256}\ns_mov_b32 s89, {SPIN}\n{lp}:")
    a(f"buffer_load_dwordx2 v[24:25], v14, {sr(SWS)}, s87 offen sc1\ns_waitcnt vmcnt(0)\nv_cmp_ne_u64 vcc, s[{S_TAG}:{S_TAG+1}], v[24:25]\ns_cbranch_vccz {ok}")
    a(f"s_sleep 2\ns_sub_u32 s89, s89, 1\ns_cmp_lg_u32 s89, 0\ns_cbranch_scc1 {lp}\n{ok}:")
    for k in range(4):
        a(f"buffer_load_dwordx4 {vr(GA+4*k,4)}, v19, {sr(SWS)}, s91 offen sc1\ns_add_u32 s91, s91, {4*4096}")
    ls(a,24)
    for k in range(4):
        a(f"s_waitcnt vmcnt({3-k})")
        for tb in range(4):
            a(f"{MF} {vr(YA+4*tb,4)}, {vr(GA+4*k,4)}, {vr(CB+(tb*4+k)*4,4)}, {'0' if k==0 else vr(YA+4*tb,4)}")
    nb=a.lab('nobump')
    a(f"s_or_b32 s60, s2, s74\ns_cbranch_scc1 {nb}\ns_mov_b32 s60, {WS_EP}\nv_mov_b32 v24, s{S_TAG}\ns_mov_b64 exec, 1\nbuffer_store_dword v24, off, {sr(SWS)}, s60 sc1\ns_mov_b64 exec, -1\n{nb}:")
    a(f"s_lshl_b32 s60, s74, 12\ns_add_u32 s60, s60, {L_Y}\nv_lshl_add_u32 v1, v{VL}, 4, s60\ns_nop 3")
    ls(a,29)
    a("s_barrier")
    for tb in range(4):
        a(f"ds_write_b128 v1, {vr(YA+4*tb,4)} offset:{1024*tb}")
    a("s_waitcnt lgkmcnt(0)")
    ls(a,25)
    a("s_barrier")
    ls(a,26)
    if not CFG.get('gap'): ls_dump(a)

def kernel_main(a,name):
    kbegin(a,name)
    end=a.lab('end'); ld=a.lab('ld'); sp=a.lab('sp'); s2=a.lab('stage2')
    r1=a.lab('r1'); r3=a.lab('r3'); rj=a.lab('rj'); rt=a.lab('rt'); rz=a.lab('rz'); c0=a.lab('c0'); c1=a.lab('c1')
    a(f"s_cmp_ge_u32 s2, 256\ns_cbranch_scc1 {end}")
    if diag(): a("s_memrealtime s[94:95]")
    a("s_load_dwordx16 s[32:47], s[0:1], 0\ns_load_dwordx8 s[48:55], s[0:1], 64")
    if CFG.get('cpf',1):
        a(f"""
        s_getpc_b64 s[60:61]
        L_pc_here:
        s_bfe_u32 s62, s2, 0x20003
        v_lshl_add_u32 v1, v0, 2, s62
        v_lshlrev_b32 v1, 7, v1
        v_min_u32 v1, L_code_end-L_pc_here-4, v1
        global_load_dword v252, v1, s[60:61]
        """)
    a(f"v_lshrrev_b32 v1, 6, v0\nv_and_b32 v{VL}, 63, v0\nv_readfirstlane_b32 s{S_WAVE}, v1")
    tile_map(a)
    srd_hi(a,SX,XB_BYTES)
    a(f"s_cmp_ge_u32 s{S_WAVE}, 4\ns_cbranch_scc1 {ld}")
    a(f"s_cmp_eq_u32 s{S_WAVE}, 3\ns_cbranch_scc1 {r3}")
    a(f"s_cmp_lg_u32 s{S_WAVE}, 0\ns_cbranch_scc1 {r1}")
    cs_ids(a)
    a(f"s_cmp_ge_u32 s{S_J}, 14\ns_cbranch_scc1 {rt}")
    colsum_loads(a)
    cs_addr(a,68)
    a(f"s_mov_b32 s87, 0\ns_branch {rz}\n{r1}:")
    row_ids(a); rows_loads(a)
    st_addr(a,68)
    a(f"s_lshl4_add_u32 s68, s60, s68\ns_mov_b32 s87, 1\ns_branch {rz}\n{ld}:")
    L=Loader(a)
    loader_start(a,L)
    loader(a,L)
    a(f"s_endpgm\n{rt}:")
    table_touch(a)
    a(f"s_mov_b32 s87, 2\ns_branch {rz}\n{r3}:")
    if CFG.get('warm',1):
        row_ids(a); st_addr(a,72)
        a(f"v_mov_b32 v1, s72")
    a(f"s_waitcnt lgkmcnt(0)")
    epoch_load(a,128)
    if CFG.get('warm',1):
        a(f"global_load_dword v252, v1, s[{P_WS}:{P_WS+1}] sc1")
    a(f"s_mov_b32 s87, 2\n{rz}:\nv_mov_b32 v{SA}, {OOB}")
    ls_first(a)
    if CFG.get('prio',1): a("s_setprio 1")
    scalars2(a)
    sp0=a.lab('sp0'); j0=a.lab('j0')
    a(f"s_cmp_ge_u32 s{S_J}, 14\ns_cbranch_scc1 {sp0}")
    compute1_setup(a,False); epilogue_ffn_setup(a)
    a(f"s_branch {j0}\n{sp0}:")
    compute1_setup(a,True); dft32_consts(a)
    a(f"s_sub_u32 s62, s{S_J}, 14\ns_lshl2_add_u32 s62, s62, s{S_WAVE}\ns_lshl3_add_u32 s62, s{S_I}, s62\ns_lshl_b32 s62, s62, 9\ns_add_u32 s90, s62, {WS_G}")
    a(f"{j0}:")
    zero_acc(a)
    a(f"s_cmp_eq_u32 s87, 1\ns_cbranch_scc1 {c1}\ns_cmp_eq_u32 s87, 0\ns_cbranch_scc1 {c0}")
    a("s_waitcnt vmcnt(0)"); epoch_tag(a,128)
    a(f"s_branch {rj}\n{c0}:")
    colsum_finish(a)
    a(f"s_branch {rj}\n{c1}:")
    rows_finish(a)
    a(f"{rj}:")
    a(f"s_cmp_ge_u32 s{S_J}, 14\ns_cbranch_scc1 {sp}")
    stage1_ffn(a)
    a(f"{s2}:")
    compute2(a)
    a(f"s_endpgm\n{sp}:")
    stage1_spec(a)
    a(f"s_branch {s2}")
    a(f"{end}:\ns_endpgm\nL_code_end:")

def build(cfg):
    CFG.clear(); CFG.update(cfg)
    a=Asm()
    name=NAME+'_kernel'
    if cfg.get('probe'):
        a(f"; @launch kernel={name} grid=(256,1,1) block=(512,1,1) lds={LDS}")
        a(f"; @launch kernel=probe_kernel grid=(1,1,1) block=(64,1,1) lds=0")
    else:
        a(f"; @launch grid=(256,1,1) block=(512,1,1) lds={LDS}")
    a('.amdgcn_target "amdgcn-amd-amdhsa--gfx950"\n.text')
    kernel_main(a,name); names=[name]
    if cfg.get('probe'): names.append(kernel_probe(a))
    a('.section .rodata,"a"')
    for n in names:
        a('.p2align 6')
        a.l.append(kd(n,256,102,256))
    return a.text()

if __name__=='__main__':
    cfg={}
    for kv in sys.argv[2:]:
        k,v=kv.split('='); cfg[k]=int(v) if v.lstrip('-').isdigit() else v
    open(sys.argv[1],'w').write(build(cfg))
```

```python
import sys, struct
NAME='recurrent_scan__spectral_fnet__swiglu_ffn__prompt'
LOG2E=1.4426950408889634
def f2u(x): return struct.unpack('<I',struct.pack('<f',x))[0]
def hx(x): return hex(f2u(x))

WS_H=0; WS_G=0x700000; WS_ST=0x900000; WS_CS=0x908000; WS_EP=0x918000; WS_FL=0x9C0000
WS_TRACE=0x940000
CFG={}
def diag(): return CFG.get('probe') or CFG.get('trace')
def ws_end(): return 0xA00000
S_TAG=6
OOB=0x40000000

class Asm:
    def __init__(self): self.l=[]; self.n=0
    def __call__(self,s):
        for line in s.split('\n'):
            line=line.strip()
            if line: self.l.append(('' if line.endswith(':') or line.startswith('.') or line.startswith(';') else '    ')+line)
    def lab(self,b): self.n+=1; return f"L_{b}_{self.n}"
    def text(self): return '\n'.join(self.l)+'\n'

class VM:
    def __init__(self): self.ops=[]
    def op(self,tag): self.ops.append(tag)
    def need(self,*tags):
        last=max(i for i,t in enumerate(self.ops) if t in tags)
        n=len(self.ops)-1-last
        assert n<=63, n
        return n

def kd(name,vgpr,sgpr,accum):
    return f""".amdhsa_kernel {name}
  .amdhsa_next_free_vgpr {vgpr}
  .amdhsa_next_free_sgpr {sgpr}
  .amdhsa_accum_offset {accum}
  .amdhsa_group_segment_fixed_size 0
  .amdhsa_kernarg_size 96
  .amdhsa_user_sgpr_count 2
  .amdhsa_user_sgpr_kernarg_segment_ptr 1
  .amdhsa_system_sgpr_workgroup_id_x 1
  .amdhsa_float_denorm_mode_32 3
.end_amdhsa_kernel
"""
def kbegin(a,name): a(f".globl {name}\n.p2align 8\n.type {name},@function\n{name}:")
def srd(a,d,base,nbytes):
    a(f"s_mov_b64 s[{d}:{d+1}], s[{base}:{base+1}]\ns_mov_b32 s{d+2}, {nbytes}\ns_mov_b32 s{d+3}, 0x00020000")
def srd_hi(a,d,nbytes): a(f"s_mov_b32 s{d+2}, {nbytes}\ns_mov_b32 s{d+3}, 0x00020000")
def srd_lo(a,d,base): a(f"s_mov_b64 s[{d}:{d+1}], s[{base}:{base+1}]")
def vr(b,n): return f"v[{b}:{b+n-1}]" if n>1 else f"v{b}"
def sr(b): return f"s[{b}:{b+3}]"
MF="v_mfma_f32_16x16x32_bf16"

P_X,P_HRE,P_HIM,P_WG,P_WU,P_WD,P_OUT,P_DBG,P_WS=32,38,40,44,46,48,50,52,54
SX,SB0,SB1,SWS,SWD,SOUT=8,12,16,20,24,28
S_WAVE=56; S_I=57; S_J=58; S_T1=59; S_NB=3; S_A=100; S_G=101; S_LOC=93; S_X=4
VL=255
SPIN=100000
XB_BYTES=2048*512*2; W_BYTES=512*1792*2; T_BYTES=512*512*2

def ls(a,idx):
    if diag() and not CFG.get('gap'): a(f"s_memrealtime s[96:97]\ns_waitcnt lgkmcnt(0)\nv_writelane_b32 v254, s96, {idx}")
def ls_first(a):
    if diag(): a(f"v_writelane_b32 v254, s94, 0")
def ls_dump(a):
    if diag(): a(f"s_lshl_b32 s98, s2, 11\ns_lshl_b32 s99, s{S_WAVE}, 8\ns_add_u32 s98, s98, s99\ns_add_u32 s98, s98, {WS_TRACE}\nv_lshlrev_b32 v253, 2, v{VL}\nbuffer_store_dword v254, v253, {sr(SWS)}, s98 offen sc1")
def kernel_probe(a):
    pa,pb=CFG['probe'].split(':'); K=CFG.get('K',10)
    name='probe_kernel'; kbegin(a,name); end=a.lab('end')
    a(f"s_memrealtime s[70:71]\ns_cmp_ge_u32 s2, 1\ns_cbranch_scc1 {end}")
    a("s_load_dwordx2 s[54:55], s[0:1], 88\ns_waitcnt lgkmcnt(0)")
    srd(a,SWS,P_WS,ws_end())
    a("v_lshlrev_b32 v1, 11, v0")
    for r,p in ((4,pa),(8,pb)):
        w,i=p[3:].split('.')
        for q in range(4):
            a(f"s_mov_b32 s60, {WS_TRACE+int(w)*256+int(i)*4+q*64*2048}\nbuffer_load_dword v{r+q}, v1, {sr(SWS)}, s60 offen")
    a("s_waitcnt vmcnt(0)\ns_nop 0\nv_readfirstlane_b32 s61, v4\ns_nop 3")
    for r in range(4,12): a(f"v_subrev_u32 v{r}, s61, v{r}")
    for r,p,sd in ((4,pa,62),(8,pb,63)):
        op=p[:3]
        vop={'min':'v_min_i32','max':'v_max_i32','avg':'v_add_u32'}[op]; sop={'min':'s_min_i32','max':'s_max_i32','avg':'s_add_u32'}[op]
        a(f"{vop} v{r}, v{r}, v{r+1}\n{vop} v{r+2}, v{r+2}, v{r+3}\n{vop} v{r}, v{r}, v{r+2}\ns_nop 0")
        a(f"v_readlane_b32 s{sd}, v{r}, 0")
        for l in range(1,64): a(f"v_readlane_b32 s64, v{r}, {l}\ns_nop 0\n{sop} s{sd}, s{sd}, s64")
        a(f"s_mul_i32 s{sd}, s{sd}, {K}")
        if op=='avg': a(f"s_ashr_i32 s{sd}, s{sd}, 8")
    if CFG.get('gap'): a(f"s_sub_u32 s63, s70, s61\ns_mul_i32 s63, s63, {K}")
    a("s_sub_u32 s62, s63, s62\ns_max_i32 s62, s62, 0\ns_min_i32 s62, s62, 100000")
    a("s_memrealtime s[66:67]\ns_waitcnt lgkmcnt(0)")
    lp=a.lab('spin')
    a(f"{lp}:\ns_memrealtime s[68:69]\ns_waitcnt lgkmcnt(0)\ns_sub_u32 s68, s68, s66\ns_cmp_lt_u32 s68, s62\ns_cbranch_scc1 {lp}")
    a(f"{end}:\ns_endpgm")
    return name

SLOT=49152
L_STAT=3*SLOT+8192; L_RSTD=L_STAT+2048; L_CS=L_RSTD+512
L_Y=16384; L_RED=32768; LDS=163840; L_SIG=LDS-16
NPRE=9
def pos(n):
    if n>=19: n-=19
    if n<6: return 2*SLOT+n*8192
    if n==6: return 3*SLOT
    return (n-7)*8192

def tile_map(a):
    a(f"""
    s_lshr_b32 s{S_LOC}, s2, 3
    s_and_b32 s{S_A}, s2, 1
    s_bfe_u32 s{S_G}, s2, 0x20001
    s_bfe_u32 s60, s2, 0x10002
    s_bfe_u32 s61, s2, 0x10001
    s_mul_i32 s62, s60, 7
    s_lshr_b32 s63, s2, 6
    s_lshl2_add_u32 s63, s61, s63
    s_and_b32 s64, s{S_LOC}, 3
    s_lshl2_add_u32 s65, s61, s64
    s_and_b32 s66, s{S_LOC}, 7
    s_cmp_ge_u32 s{S_LOC}, 24
    s_cselect_b32 s63, 3, s63
    s_cselect_b32 s66, s65, s66
    s_add_u32 s{S_J}, s62, s63
    s_lshl3_add_u32 s{S_X}, s{S_A}, s66
    s_lshl2_add_u32 s64, s{S_A}, s64
    s_lshl3_add_u32 s64, s61, s64
    s_add_u32 s60, s60, 14
    s_cmp_ge_u32 s{S_LOC}, 28
    s_cselect_b32 s{S_J}, s60, s{S_J}
    s_cselect_b32 s{S_I}, s64, s{S_X}
    """)
def tile_map2(a):
    a(f"""
    s_and_b32 s60, s2, 7
    s_bfe_u32 s62, s{S_LOC}, 0x10001
    s_lshl1_add_u32 s{S_T1}, s60, s62
    s_sub_u32 s62, 32, s{S_T1}
    s_cmp_eq_u32 s{S_T1}, 0
    s_cselect_b32 s62, 16, s62
    s_bitcmp1_b32 s{S_LOC}, 0
    s_cselect_b32 s{S_T1}, s62, s{S_T1}
    s_lshr_b32 s{S_NB}, s{S_LOC}, 2
    """)

def stage_rot(a,s,sh):
    r=CFG.get('rot',0)
    if r==0:
        for sg in range(7): a(f"s_mov_b32 s{80+sg}, {sg<<(sh+1)}")
        return
    a(f"s_and_b32 s{s}, s{S_LOC}, 1\ns_mul_i32 s{s}, s{s}, {3 if r==2 else 0}\ns_add_u32 s{s}, s{s}, s{S_NB}\ns_sub_u32 s62, s{s}, 7\ns_cmp_ge_u32 s{s}, 7\ns_cselect_b32 s{s}, s62, s{s}")
    for sg in range(7):
        a(f"s_lshl_b32 s{80+sg}, s{s}, {sh+1}\ns_add_u32 s{s}, s{s}, 1\ns_cmp_eq_u32 s{s}, 7\ns_cselect_b32 s{s}, 0, s{s}")

def epoch_load(a,v):
    a(f"v_mov_b32 v{v}, {WS_EP}\nglobal_load_dword v{v}, v{v}, s[{P_WS}:{P_WS+1}] sc1")
def epoch_tag(a,v):
    a(f"v_readfirstlane_b32 s{S_TAG}, v{v}\ns_nop 0\ns_mul_i32 s{S_TAG}, s{S_TAG}, 0x9e3779b1\ns_add_u32 s{S_TAG}, s{S_TAG}, 0x7f4a7c15\ns_not_b32 s{S_TAG+1}, s{S_TAG}")

SD=160; SA=253
def cs_ids(a):
    a(f"""
    s_and_b32 s61, s{S_X}, 3
    s_bfe_u32 s63, s{S_X}, 0x10002
    s_lshl1_add_u32 s63, s{S_J}, s63
    s_lshr_b32 s69, s{S_X}, 3
    """)
def cs_addr(a,sd):
    a(f"""
    s_mul_i32 s{sd}, s61, {3584*4}
    s_mul_i32 s62, s69, {1792*4}
    s_add_u32 s{sd}, s{sd}, s62
    s_lshl_b32 s62, s63, 8
    s_add_u32 s{sd}, s{sd}, s62
    s_add_u32 s{sd}, s{sd}, {WS_CS}
    """)
def row_ids(a):
    a(f"""
    s_and_b32 s71, s{S_LOC}, 7
    s_lshr_b32 s70, s{S_LOC}, 3
    s_and_b32 s62, s{S_G}, 1
    s_lshl2_add_u32 s70, s62, s70
    s_lshl3_add_u32 s70, s{S_A}, s70
    s_lshr_b32 s62, s{S_G}, 1
    s_lshl4_add_u32 s70, s62, s70
    """)
def st_addr(a,sd):
    a(f"s_lshl3_add_u32 s{sd}, s70, s71\ns_lshl_b32 s{sd}, s{sd}, 7\ns_add_u32 s{sd}, s{sd}, {WS_ST}")
def flag_addr(a,sd):
    a(f"s_lshl4_add_u32 s{sd}, s{S_I}, s{S_J}\ns_lshl_b32 s{sd}, s{sd}, 9\ns_add_u32 s{sd}, s{sd}, {WS_FL}")

def colsum_loads(a):
    a(f"""
    s_mul_i32 s72, s61, 3584
    s_lshl_b32 s62, s63, 7
    s_add_u32 s72, s72, s62
    s_lshl2_add_u32 s62, s63, s61
    s_lshl_b32 s62, s62, 14
    s_sub_u32 s62, s62, {28*4*16384-1024}
    s_movk_i32 s70, {4*3584}
    s_mov_b32 s73, {32*3584}
    s_mov_b32 s66, {W_BYTES}
    s_mov_b32 s67, s{SX+3}
    s_cmp_ge_u32 s{S_J}, 14
    s_cselect_b32 s72, s62, s72
    s_cselect_b32 s70, 0x800, s70
    s_cselect_b32 s73, 0x80, s73
    s_cselect_b32 s66, {T_BYTES}, s66
    s_cselect_b32 s87, 2, 0
    v_lshrrev_b32 v1, 3, v{VL}
    v_mul_u32_u24 v1, s70, v1
    v_and_b32 v2, 7, v{VL}
    v_lshl_add_u32 v1, v2, 4, v1
    s_waitcnt lgkmcnt(0)
    s_cselect_b64 s[64:65], s[{P_HRE}:{P_HRE+1}], s[{P_WG}:{P_WG+1}]
    s_cselect_b64 s[70:71], s[{P_HIM}:{P_HIM+1}], s[{P_WU}:{P_WU+1}]
    s_cmp_eq_u32 s69, 1
    s_cselect_b64 s[64:65], s[70:71], s[64:65]
    """)
    epoch_load(a,128)
    for n in range(16):
        a(f"buffer_load_dwordx4 {vr(160+4*n,4)}, v1, s[64:67], s72 offen")
        if n<15: a(f"s_add_u32 s72, s72, s73")
def colsum_finish(a):
    a(f"""
    v_and_b32 v140, 15, v{VL}
    v_and_b32 v141, 1, v140
    v_lshlrev_b32 v141, 4, v141
    v_mov_b32 v142, 0x3f80
    v_lshlrev_b32 v141, v141, v142
    v_lshrrev_b32 v140, 1, v140
    """)
    for p in range(4):
        a(f"v_cmp_eq_u32 vcc, {p}, v140\ns_nop 1\nv_cndmask_b32 v{132+p}, 0, v141, vcc")
    a(f"""
    v_and_b32 v140, 7, v{VL}
    v_lshlrev_b32 v140, 5, v140
    v_and_b32 v141, 16, v{VL}
    v_add3_u32 v140, v140, v141, s68
    v_and_b32 v141, 0x28, v{VL}
    v_cmp_eq_u32 vcc, 0, v141
    s_nop 1
    v_cndmask_b32 v{SA}, v{SA}, v140, vcc
    v_mov_b32 v140, 0x07060500
    v_mov_b32 v141, 0x07060501
    v_mov_b32 v142, 0x07060502
    v_mov_b32 v143, 0x07060503
    """)
    a("s_waitcnt vmcnt(16)"); epoch_tag(a,128)
    for n in range(16):
        a(f"s_waitcnt vmcnt({15-n})")
        a(f"{MF} v[136:139], v[132:135], {vr(160+4*n,4)}, {'0' if n==0 else 'v[136:139]'}")
    a("s_nop 7\ns_nop 1")
    for j in range(4):
        a(f"v_add_f32_dpp v{SD+j}, v{136+j}, v{136+j} row_ror:8 row_mask:0xf bank_mask:0xf")
    for j in range(4):
        a(f"v_perm_b32 v{SD+j}, v{SD+j}, s{S_TAG}, v{140+j}")
def table_touch(a):
    a(f"""
    s_sub_u32 s63, s63, 28
    s_lshl2_add_u32 s63, s63, s61
    s_lshl_b32 s63, s63, 14
    s_add_u32 s63, s63, 1024
    v_lshlrev_b32 v1, 8, v{VL}
    """)
    srd_hi(a,64,T_BYTES)
    a(f"s_cmp_eq_u32 s69, 1\ns_waitcnt lgkmcnt(0)\ns_cselect_b64 s[64:65], s[{P_HIM}:{P_HIM+1}], s[{P_HRE}:{P_HRE+1}]")
    epoch_load(a,128)
    a(f"buffer_load_dword v252, v1, s[64:67], s63 offen\nbuffer_load_dword v252, v1, s[64:67], s63 offen offset:128")

def rows_loads(a):
    a(f"""
    s_sub_u32 s60, s{S_WAVE}, 1
    s_lshl1_add_u32 s63, s70, s60
    s_lshl_b32 s62, s71, 8
    s_add_u32 s63, s63, s62
    s_lshl_b32 s63, s63, 10
    v_lshrrev_b32 v1, 4, v{VL}
    v_and_b32 v2, 15, v{VL}
    v_lshlrev_b32 v3, 4, v2
    v_lshl_add_u32 v3, v1, 16, v3
    s_waitcnt lgkmcnt(0)
    """)
    srd_lo(a,SX,P_X)
    epoch_load(a,128)
    for p in range(4):
        a(f"buffer_load_dwordx4 {vr(168+4*p,4)}, v3, {sr(SX)}, s63 offen offset:{256*p}")
def rows_finish(a):
    a(f"""
    v_and_b32 v141, 15, v{VL}
    v_cmp_eq_u32 vcc, 0, v141
    v_lshl_add_u32 v140, v{VL}, 1, s68
    v_mov_b32 v131, 0x3f803f80
    v_cndmask_b32 v{SA}, v{SA}, v140, vcc
    v_mov_b32 v132, 0
    v_mov_b32 v133, 0
    v_mov_b32 v134, 0x00003f80
    v_mov_b32 v135, 0x3f800000
    v_mov_b32 v136, 0
    v_mov_b32 v137, 0
    """)
    a("s_waitcnt vmcnt(4)"); epoch_tag(a,128)
    for p in range(4):
        a(f"s_waitcnt vmcnt({3-p})")
        for r in range(4):
            a(f"v_dot2c_f32_bf16 v{132+(r&1)}, v{168+4*p+r}, v131")
    a("s_nop 2\nv_add_f32 v132, v132, v133")
    def red(v):
        for s in (8,4,2,1):
            a(f"s_nop 1\nv_add_f32_dpp v{v}, v{v}, v{v} row_ror:{s} row_mask:0xf bank_mask:0xf")
    red(132)
    a(f"v_mul_f32 v132, {hx(-1.0/512)}, v132")
    for p in range(4):
        for r in range(4):
            a(f"v_dot2_f32_bf16 v{144+2*r}, v{168+4*p+r}, v134, v132\nv_dot2_f32_bf16 v{145+2*r}, v{168+4*p+r}, v135, v132")
        for r in range(8):
            a(f"v_fmac_f32 v{136+(r&1)}, v{144+r}, v{144+r}")
    a("v_add_f32 v136, v136, v137")
    red(136)
    a(f"""
    v_mul_f32 v136, {hx(1.0/512)}, v136
    v_cvt_pk_bf16_f32 v136, v136, v132
    v_and_b32 v{SD}, 0xffff0000, v136
    v_lshlrev_b32 v136, 16, v136
    v_add_f32 v136, {hx(1e-5)}, v136
    v_cvt_pk_bf16_f32 v136, v136, v136
    v_lshlrev_b32 v136, 16, v136
    v_sqrt_f32 v136, v136
    s_nop 0
    v_cvt_pk_bf16_f32 v136, v136, v136
    v_lshlrev_b32 v136, 16, v136
    v_rcp_f32 v{SD+3}, v136
    v_mul_f32 v{SD+2}, v136, v136
    v_mov_b32 v{SD+1}, s{S_TAG}
    """)

XA,XB,WA,WB=128,160,192,208
AX0,AX1,AW0,AW1=224,225,226,227
FC,FS,FN=228,236,244

def compute1_setup(a,spec):
    a(f"""
    v_and_b32 v129, 15, v{VL}
    v_lshrrev_b32 v130, 4, v{VL}
    v_lshrrev_b32 v131, 1, v129
    v_xor_b32 v131, v131, v130
    v_lshlrev_b32 v131, 4, v131
    v_lshl_add_u32 v{AX0}, v129, 7, v131
    v_xor_b32 v{AX1}, 64, v{AX0}
    s_mov_b32 s73, {SLOT}
    """)
    if spec:
        a(f"s_lshl_b32 s62, s{S_WAVE}, 12\nv_add_u32 v{AW0}, s62, v{AX0}\nv_add_u32 v{AW1}, s62, v{AX1}")
    else:
        a(f"""
        v_lshrrev_b32 v131, 2, v129
        v_and_b32 v132, 3, v129
        v_and_b32 v133, 1, v130
        v_lshl_or_b32 v133, v133, 2, v131
        s_lshl_b32 s62, s{S_WAVE}, 1
        v_xor_b32 v133, s62, v133
        v_lshlrev_b32 v133, 5, v133
        v_lshl_add_u32 v133, v132, 3, v133
        v_lshl_add_u32 v131, v130, 3, v131
        v_lshl_add_u32 v{AW0}, v131, 8, v133
        v_xor_b32 v{AW1}, 32, v{AW0}
        """)

def dft32_consts(a):
    a(f"v_lshlrev_b32 v130, 2, v130\nv_cvt_f32_u32 v130, v130\nv_cvt_f32_u32 v129, v129")
    for tb in range(2):
        a(f"v_add_f32 v131, {hx(16.0*tb)}, v129\nv_mul_f32 v131, {hx(1/32.)}, v131")
        for j in range(8):
            a(f"v_add_f32 v132, {hx(16.0*(j>>2)+(j&3))}, v130\nv_mul_f32 v132, v132, v131\nv_cos_f32 v{136+j}, v132\nv_sin_f32 v{144+j}, v132")
        for p in range(4):
            a(f"v_cvt_pk_bf16_f32 v{FC+4*tb+p}, v{136+2*p}, v{137+2*p}\nv_cvt_pk_bf16_f32 v{FS+4*tb+p}, v{144+2*p}, v{145+2*p}")
            a(f"v_xor_b32 v{FN+4*tb+p}, 0x80008000, v{FS+4*tb+p}")

def zero_acc(a):
    for r in range(0,128,2): a(f"v_mov_b64 v[{r}:{r+1}], 0")

def scalars2(a):
    tile_map2(a)
    srd(a,SX,P_X,XB_BYTES); srd(a,SWS,P_WS,ws_end()); srd(a,SOUT,P_OUT,XB_BYTES)
    a(f"""
    s_lshr_b32 s74, s{S_WAVE}, 1
    s_and_b32 s75, s{S_WAVE}, 1
    s_lshl_b32 s62, s75, 10
    s_add_u32 s62, s62, s{S_T1}
    s_lshl3_add_u32 s62, s62, s{S_NB}
    s_lshl1_add_u32 s62, s62, s74
    s_lshl_b32 s77, s62, 6
    s_add_u32 s78, s77, {16*32*1024}
    s_lshl1_add_u32 s62, s{S_T1}, s75
    s_mul_i32 s79, s62, {112*1024}
    s_and_b32 s63, s{S_T1}, 1
    s_lshl1_add_u32 s62, s63, s74
    s_lshl_b32 s62, s62, 11
    s_add_u32 s79, s79, s62
    """)
    stage_rot(a,76,12)

class S1:
    def __init__(self,a,spec): self.a=a; self.spec=spec
    def reads(self,k,buf,ts=range(8)):
        xb,wb=((XA,WA),(XB,WB))[buf]
        xs=[f"ds_read_b128 {vr(xb+4*i,4)}, v{AX0+k} offset:{t*2048}" for i,t in enumerate(ts)]
        ws=[]
        for g in range(4):
            if self.spec:
                ws.append(f"ds_read_b128 {vr(wb+4*g,4)}, v{AW0+k} offset:{16384+(g>>1)*16384+(g&1)*2048}")
            else:
                for rho in range(2):
                    ws.append(f"ds_read_b64_tr_b16 {vr(wb+4*g+2*rho,2)}, v{AW0+(g&1)} offset:{16384+(g>>1)*16384+k*8192+rho*1024}")
        return ws+xs
    def mfmas(self,buf,ts=range(8)):
        xb,wb=((XA,WA),(XB,WB))[buf]
        out=[]
        for i,t in enumerate(ts):
            for gg in range(4):
                g=gg if t%2==0 else 3-gg
                d=(t*4+g)*4
                x=vr(xb+4*i,4); w=vr(wb+4*g,4)
                p,q=(x,w) if self.spec else (w,x)
                out.append(f"{MF} {vr(d,4)}, {p}, {q}, {vr(d,4)}")
        return out
    def move(self,delta): return [f"v_add_u32 v{r}, {delta}, v{r}" for r in (AX0,AX1,AW0,AW1)]
    def weave(self,m,others):
        others=list(others)
        per=2 if len(m)==16 else 1
        assert len(others)<=per*len(m)
        for x in m:
            self.a(x)
            for _ in range(per):
                if others: self.a(others.pop(0))
    def loop(self):
        a=self.a
        a(f"s_mov_b32 s70, 0\ns_mov_b32 s72, 6")
        if CFG.get('mt'): a("s_mov_b32 m0, 20")
        ls(a,1)
        a("s_barrier")
        ls(a,2)
        for l in self.reads(0,0): a(l)
        a(f"buffer_store_dwordx4 {vr(SD,4)}, v{SA}, {sr(SWS)}, 0 offen sc1")
        loop=a.lab('loop')
        if CFG.get('al',1): a(".p2align 6")
        a(f"{loop}:")
        a("s_waitcnt lgkmcnt(0)")
        if CFG.get('mt'): a("v_writelane_b32 v254, s96, m0\ns_add_u32 m0, m0, 1")
        self.weave(self.mfmas(0),self.reads(1,1)+["s_add_u32 s70, s70, 1\ns_cmp_eq_u32 s70, 3",f"s_cselect_b32 s71, {-2*SLOT}, s73\ns_cselect_b32 s70, 0, s70"]+self.move("s71"))
        a("s_waitcnt lgkmcnt(0)\ns_barrier")
        if CFG.get('mt'): a("s_memrealtime s[96:97]")
        self.weave(self.mfmas(1),self.reads(0,0)+["s_sub_u32 s72, s72, 1\ns_cmp_lg_u32 s72, 0"])
        a(f"s_cbranch_scc1 {loop}")
    def half(self,h,last,spread=()):
        a=self.a; ts=range(4*h,4*h+4); sp=list(spread)
        def ex(l,k):
            l=list(l)
            if not sp: return l
            l+=[""]*(20-len(l))
            return l+[sp[2*k],"","","","","",sp[2*k+1]]
        a("s_waitcnt lgkmcnt(0)")
        self.weave(self.mfmas(0,ts),ex(self.reads(1,1,ts)+self.move(SLOT),0))
        a("s_waitcnt lgkmcnt(0)\ns_barrier")
        self.weave(self.mfmas(1,ts),ex(self.reads(0,0,ts),1))
        a("s_waitcnt lgkmcnt(0)")
        self.weave(self.mfmas(0,ts),ex(self.reads(1,1,ts)+(self.move(-SLOT) if h==0 else []),2))
        if h==1: a(f"s_waitcnt {'' if self.spec else 'vmcnt(0) '}lgkmcnt(0)\ns_barrier")
        else: a("s_waitcnt lgkmcnt(0)")
        self.weave(self.mfmas(1,ts),ex(last,3))

def epilogue_ffn_setup(a):
    a(f"""
    v_lshlrev_b32 v229, 4, v129
    v_add_u32 v229, {L_STAT}, v229
    v_and_b32 v131, 1, v130
    v_lshl_add_u32 v228, v131, 4, v129
    v_lshrrev_b32 v131, 1, v130
    v_lshl_add_u32 v228, v131, 7, v228
    s_lshl_b32 s62, s{S_WAVE}, 5
    v_add_u32 v228, s62, v228
    v_lshlrev_b32 v228, 2, v228
    v_add_u32 v228, {L_CS}, v228
    v_lshlrev_b32 v230, 4, v{VL}
    s_mul_i32 s62, s{S_I}, {8*56}
    s_lshl2_add_u32 s62, s{S_J}, s62
    s_add_u32 s62, s62, s{S_WAVE}
    s_lshl_b32 s62, s62, 10
    s_add_u32 s63, s62, {4*56*1024}
    s_bitcmp1_b32 s{S_J}, 0
    s_cselect_b32 s90, s63, s62
    s_cselect_b32 s92, s62, s63
    """)
ST=144
def ffn_stat_reads(h):
    out=[f"ds_read_b32 v{231+q}, v228 offset:{1024*q}" for q in range(4)] if h==0 else []
    return out+[f"ds_read_b128 {vr(ST+4*i,4)}, v229 offset:{256*(4*h+i)}" for i in range(4)]
def epilogue_ffn(a,h,nafter):
    a(f"s_waitcnt lgkmcnt({nafter})")
    if h==0:
        for q in range(4): a(f"v_and_b32 v{231+q}, 0xffffff00, v{231+q}")
        a("v_add_f32 v231, v231, v232\nv_add_f32 v233, v233, v234\nv_add_f32 v231, v231, v233\ns_nop 1")
    else: a("s_mov_b32 s90, s92")
    def corr(i): return f"v_mfma_f32_16x16x1_4b_f32 {vr(16*(4*h+i),16)}, v231, v{ST+4*i}, {vr(16*(4*h+i),16)}"
    def parts(i):
        t=4*h+i; b=16*t; s=ST+4*i; o=184+4*(i&1); T=(176,168)[i&1]
        A=[f"v_pk_mul_f32 {vr(T+2*p,2)}, {vr(b+2*p,2)}, {vr(s,2)} op_sel:[0,1] op_sel_hi:[1,1]" for p in range(4)]
        B=[f"v_exp_f32 v{T+p}, v{T+p}" for p in range(8)]
        C=[f"v_pk_mul_f32 {vr(b+2*p,2)}, {vr(b+2*p,2)}, {vr(b+8+2*p,2)}" for p in range(4)]
        D=[f"v_pk_fma_f32 {vr(T+2*p,2)}, {vr(T+2*p,2)}, {vr(s+2,2)}, {vr(s+2,2)} op_sel:[0,0,0] op_sel_hi:[1,0,0]" for p in range(4)]
        E=[f"v_rcp_f32 v{T+p}, v{T+p}" for p in range(8)]
        F=[f"v_pk_mul_f32 {vr(b+2*p,2)}, {vr(b+2*p,2)}, {vr(T+2*p,2)}" for p in range(4)]
        G=[f"v_cvt_pk_bf16_f32 v{o+p}, v{b+2*p}, v{b+2*p+1}" for p in range(4)]
        S=[f"buffer_store_dwordx4 {vr(o,4)}, v230, {sr(SWS)}, s90 offen sc1"+(f"\ns_add_u32 s90, s90, {56*1024}" if i<3 else "")]
        return A,B,C,D,E,F,G,S
    a(corr(0))
    for i in range(4): a(f"v_mul_f32 v{ST+4*i+1}, {hx(-LOG2E)}, v{ST+4*i+3}")
    a("s_nop 5")
    for i in range(4):
        A,B,C,D,E,F,G,S=parts(i)
        for x in A: a(x)
        if i<3: a(corr(i+1))
        for x in B+C+D+E+F+G+S: a(x)
def stage1_ffn(a):
    S=S1(a,False)
    S.loop()
    nxt=S.reads(0,0,range(4,8))
    S.half(0,ffn_stat_reads(0)+nxt)
    ls(a,3)
    epilogue_ffn(a,0,len(nxt))
    ls(a,14)
    S.half(1,ffn_stat_reads(1))
    ls(a,15)
    epilogue_ffn(a,1,0)
    head2(a,[])

def spec_acc(tb,eb,b,ri): return 64*(b>>1)+(((tb*2+eb)*2+(b&1))*2+ri)*4
def epilogue_spec(a,h,nafter):
    R=144; Z=160
    a(f"s_waitcnt lgkmcnt({nafter})")
    for i in range(4):
        t=4*h+i
        for g in range(4):
            d=(t*4+g)*4
            for p in range(2):
                a(f"v_pk_mul_f32 {vr(d+2*p,2)}, {vr(d+2*p,2)}, {vr(R+4*i+2*p,2)}")
        for g in range(4):
            d=(t*4+g)*4
            z=Z+((i>>1)*4+g)*4+(i&1)*2
            for p in range(2):
                a(f"v_cvt_pk_bf16_f32 v{z+p}, v{d+2*p}, v{d+2*p+1}")
    a("s_nop 1")
    acc=spec_acc
    def group(tb,eb):
        out=[]
        for bl in range(2):
            b=2*h+bl
            zr=vr(Z+(bl*4+eb)*4,4); zi=vr(Z+(bl*4+2+eb)*4,4)
            out+=[f"{MF} {vr(acc(tb,eb,b,0),4)}, {vr(FC+4*tb,4)}, {zr}, 0",
                  f"{MF} {vr(acc(tb,eb,b,1),4)}, {vr(FC+4*tb,4)}, {zi}, 0",
                  f"{MF} {vr(acc(tb,eb,b,0),4)}, {vr(FS+4*tb,4)}, {zi}, {vr(acc(tb,eb,b,0),4)}",
                  f"{MF} {vr(acc(tb,eb,b,1),4)}, {vr(FN+4*tb,4)}, {zr}, {vr(acc(tb,eb,b,1),4)}"]
        return out
    def pack(tb):
        out=[]
        for j in range(4):
            o=PK[h][tb]+4*j
            for eb in range(2):
                for bl in range(2):
                    b=2*h+bl
                    out.append(f"v_cvt_pk_bf16_f32 v{o+2*eb+bl}, v{acc(tb,eb,b,0)+j}, v{acc(tb,eb,b,1)+j}")
        return out
    for x in group(0,0)+group(0,1)+group(1,0): a(x)
    pk=pack(0)
    for x in group(1,1):
        a(x)
        for _ in range(2): a(pk.pop(0))
    a("s_nop 5")
    for x in pack(1): a(x)
PK=((144,0),(0,16))
def spec_stores(h):
    return [f"s_add_u32 s63, s90, {(16*tb+j)*65536}\nbuffer_store_dwordx4 {vr(PK[h][tb]+4*j,4)}, v253, {sr(SWS)}, s63 offen offset:{h*2048} sc1" for tb in range(2) for j in range(4)]
def stage1_spec(a):
    S=S1(a,True)
    S.loop()
    a(f"""
    s_waitcnt vmcnt(0)
    v_lshrrev_b32 v252, 4, v{VL}
    v_and_b32 v253, 15, v{VL}
    v_lshlrev_b32 v253, 4, v253
    v_lshl_add_u32 v253, v252, 18, v253
    v_lshlrev_b32 v252, 4, v252
    v_add_u32 v252, {L_RSTD}, v252
    """)
    rr=lambda h: [f"ds_read_b128 {vr(144+4*i,4)}, v252 offset:{64*(4*h+i)}" for i in range(4)]
    nxt=S.reads(0,0,range(4,8))
    S.half(0,rr(0)+nxt)
    ls(a,3)
    epilogue_spec(a,0,len(nxt))
    ls(a,14)
    S.half(1,rr(1),spread=spec_stores(0))
    ls(a,15)
    epilogue_spec(a,1,0)
    head2(a,spec_stores(1))

PF=6
ACC=0; HF=32; WF=80; XP=224; AW=232; AH=244; AO=246
def wreads(n):
    b=WF+16*(n%NPRE); u=pos(n); k=u>>16
    return [f"ds_read_b64_tr_b16 {vr(b+4*eb+2*rho,2)}, v{AW+4*k+eb} offset:{(u&0xffff)+rho*2048}" for eb in range(4) for rho in range(2)]
def head2(a,stores):
    ls(a,4)
    stores=list(stores)
    if stores: a(stores.pop(0))
    a(f"""
    v_and_b32 v38, 15, v{VL}
    v_lshrrev_b32 v34, 4, v{VL}
    v_lshrrev_b32 v35, 2, v38
    v_and_b32 v36, 3, v38
    v_lshl_add_u32 v35, v34, 2, v35
    v_bfe_u32 v37, v35, 1, 2
    s_lshl_b32 s62, s74, 1
    v_xor_b32 v37, s62, v37
    v_lshlrev_b32 v37, 5, v37
    v_lshl_add_u32 v37, v36, 3, v37
    v_lshl_add_u32 v37, v35, 7, v37
    s_lshl_b32 s62, s74, 12
    v_add_u32 v{AW}, s62, v37
    """)
    for eb in range(1,4): a(f"v_xor_b32 v{AW+eb}, {eb<<5}, v{AW}")
    for eb in range(4): a(f"v_add_u32 v{AW+4+eb}, 0x10000, v{AW+eb}")
    other=[f"v_add_u32 v{AW+8+eb}, 0x20000, v{AW+eb}" for eb in range(4)]+f"""
    v_lshlrev_b32 v35, 15, v38
    v_and_b32 v36, 1, v34
    v_lshlrev_b32 v36, 5, v36
    v_lshrrev_b32 v37, 1, v34
    v_lshl_add_u32 v36, v37, 4, v36
    v_add_u32 v{AO}, v35, v36
    v_lshl_add_u32 v{AH}, v{VL}, 4, s79
    v_add_u32 v{AH+1}, {56*1024}, v{AH}
    """.split('\n')
    other=[x for x in other if x.strip()]
    for n in range(7):
        if stores: a(stores.pop(0))
        for l in wreads(n):
            a(l)
            if other and n>=1: a(other.pop(0))
    assert not other and not stores

def compute2(a):
    LC=CFG.get('lc',8); BY=CFG.get('by',25)
    vm=VM(); vm.op('st')
    def hload(n,t):
        sg,k=divmod(n,2); b=HF+8*(n%PF)
        a(f"buffer_load_dwordx4 {vr(b+4*t,4)}, v{AH+t}, {sr(SWS)}, s{80+sg%7} offen offset:{k*1024} sc1"); vm.op(f"h{n}")
    ls(a,5)
    a("s_barrier")
    ls(a,18)
    nh=CFG.get('nh',3)
    for n in range(nh):
        for t in range(2): hload(n,t)
    for l in wreads(7)+wreads(8): a(l)
    ls(a,7)
    a(f"s_waitcnt vmcnt({vm.need('st')}) lgkmcnt(0)\ns_barrier")
    for n in range(nh,PF):
        for t in range(2): hload(n,t)
    ls(a,12)
    XR=WF+16*2
    tailwork=[]
    for t in range(2):
        tailwork+=[f"v_permlane16_swap_b32 v{XP+4*t}, v{XP+4*t+2}",f"v_permlane16_swap_b32 v{XP+4*t+1}, v{XP+4*t+3}"]
    for i in range(8):
        tailwork+=[f"v_lshlrev_b32 v{XR+2*i}, 16, v{XP+i}",f"v_and_b32 v{XR+2*i+1}, 0xffff0000, v{XP+i}"]
    tailwork+=[f"v_lshlrev_b32 v249, 4, v{VL}",f"s_lshl_b32 s62, s{S_WAVE}, 12",f"s_add_u32 s62, s62, {L_RED}","v_add_u32 v250, s62, v249","v_xor_b32 v251, 8192, v250",
               "s_lshl2_add_u32 s62, s74, s75","s_lshl_b32 s62, s62, 11",f"s_add_u32 s62, s62, {L_Y}","v_add_u32 v252, s62, v249",f"s_mov_b32 s64, {hx(-LOG2E)}","s_mov_b32 s65, s64"]
    for n in range(28):
        need=[f"h{n}"]
        if n==23: need.append('x')
        w=f"s_waitcnt vmcnt({vm.need(*need)})"
        if n>=NPRE: w+=f" lgkmcnt({8 if n<27 else 0})"
        a(w)
        if n==0: ls(a,11)
        if n==LC:
            if CFG.get('ct'): ls(a,13)
            a("s_barrier")
            if CFG.get('ct'): ls(a,19)
            a(f"v_xor_b32 v{AH}, 4096, v{AH}\nv_xor_b32 v{AH+1}, 4096, v{AH+1}")
            for m in range(14,LC+PF):
                for t in range(2): hload(m,t)
        if n==BY:
            if CFG.get('ct'): ls(a,16)
            a("s_barrier")
            if CFG.get('ct'): ls(a,17)
        r=wreads(n+2) if NPRE<=n+2<28 else []
        hb=HF+8*(n%PF); wb=WF+16*(n%NPRE)
        order=[(t,(ee if t==0 else 3-ee)) for t in range(2) for ee in range(4)]
        if n==27: order=[(0,2),(0,3),(1,3),(1,2),(1,1),(1,0),(0,0),(0,1)]
        for i,(t,eb) in enumerate(order):
            d=ACC+(t*4+eb)*4
            a(f"{MF} {vr(d,4)}, {vr(wb+4*eb,4)}, {vr(hb+4*t,4)}, {'0' if n==0 else vr(d,4)}")
            if i<len(r): a(r[i])
            if n+PF<28 and i in (3,7) and (n+PF<14 or n>=LC): hload(n+PF,i//4)
            if n==CFG.get('xs',LC-1) and i in (1,5):
                t2=i//4
                a(f"buffer_load_dwordx4 {vr(XP+4*t2,4)}, v{AO}, {sr(SX)}, s{77+t2} offen"); vm.op('x')
            if n>=23 and tailwork: a(tailwork.pop(0))
    assert not tailwork and LC>=14-PF
    ls(a,8)
    a("s_nop 3")
    for t,eb in ((0,0),(0,1),(1,1),(1,0)):
        a(f"ds_write_b128 v250, {vr(ACC+(t*4+2+eb)*4,4)} offset:{(t*2+eb)*1024}")
    a("s_waitcnt lgkmcnt(0)\ns_barrier")
    RD=32; Y=48; T=64
    for t in range(2):
        for eb in range(2):
            a(f"ds_read_b128 {vr(RD+(t*2+eb)*4,4)}, v251 offset:{(t*2+eb)*1024}")
        for eb in range(2):
            a(f"ds_read_b128 {vr(Y+(t*2+eb)*4,4)}, v252 offset:{eb*4096+t*1024}")
    ofl=CFG.get('ofl','sc1').replace('none','').replace('+',' ')
    for t in range(2):
        b=ACC+t*16
        a(f"s_waitcnt lgkmcnt({6-4*t})")
        for p in range(4): a(f"v_pk_add_f32 {vr(b+2*p,2)}, {vr(b+2*p,2)}, {vr(RD+t*8+2*p,2)}")
        for p in range(4): a(f"v_pk_mul_f32 {vr(T+2*p,2)}, {vr(b+2*p,2)}, s[64:65]")
        for p in range(8): a(f"v_exp_f32 v{T+p}, v{T+p}")
        a(f"s_waitcnt lgkmcnt({4-4*t})")
        for p in range(4): a(f"v_pk_mul_f32 {vr(b+2*p,2)}, {vr(b+2*p,2)}, {vr(Y+t*8+2*p,2)}")
        for p in range(4): a(f"v_pk_add_f32 {vr(T+2*p,2)}, {vr(T+2*p,2)}, 1.0 op_sel_hi:[1,0]")
        for p in range(8): a(f"v_rcp_f32 v{T+p}, v{T+p}")
        for p in range(4): a(f"v_pk_fma_f32 {vr(b+2*p,2)}, {vr(b+2*p,2)}, {vr(T+2*p,2)}, {vr(XR+t*8+2*p,2)}")
        o=72+4*t
        for p in range(4): a(f"v_cvt_pk_bf16_f32 v{o+p}, v{b+2*p}, v{b+2*p+1}")
        a(f"s_nop 1\nv_permlane16_swap_b32 v{o}, v{o+2}\nv_permlane16_swap_b32 v{o+1}, v{o+3}")
        a(f"buffer_store_dwordx4 {vr(o,4)}, v{AO}, {sr(SOUT)}, s{77+t} offen {ofl}")
    ls(a,9)
    if diag() and not CFG.get('gap'):
        a("s_waitcnt vmcnt(0)"); ls(a,10)
        ls_dump(a)

class Loader:
    def __init__(self,a): self.a=a; self.vm=VM(); self.m0=None; self.fill=[]; self.extra=[]; self.thr=0; self.regs={}
    def setm0(self,val):
        a=self.a
        if self.m0 is not None and -32768<=val-self.m0<=32767: a(f"s_addk_i32 m0, {val-self.m0}")
        else: a(f"s_add_u32 m0, s92, {val}")
        self.m0=val
    def dma(self,lds,vaddr,srdn,soff,tag,pre=None):
        self.setm0(lds)
        self.a(pre if pre else (self.fill.pop(0) if self.fill else "s_nop 0"))
        self.a(f"buffer_load_dwordx4 v{vaddr}, {sr(srdn)}, {soff} offen lds"); self.vm.op(tag)
        if self.extra: self.a(self.extra.pop(0))
        if self.thr: self.a(f"s_waitcnt vmcnt({self.thr})")
    def issue(self,c,lo=0,hi=4):
        slot=c%3
        for p in range(lo,hi):
            self.dma(slot*SLOT+p*4096,10,SX,f"s{64+p}",f"c{c}")
            self.fill.append(f"s_addk_i32 s{64+p}, 128")
            self.dma(slot*SLOT+16384+p*4096,11,SB0,f"s{68+p}",f"c{c}")
            self.dma(slot*SLOT+32768+p*4096,11,SB1,f"s{68+p}",f"c{c}")
            self.fill.append(f"s_add_u32 s{68+p}, s{68+p}, s72")
    def wd_off(self,n,kh):
        sg,k=divmod(n,2)
        return f"s_add_u32 s62, s{80+sg%7}, {(kh*64+32*k)*1024}"
    def wd(self,n,tag='wd'):
        for kh in range(2):
            self.dma(pos(n)+kh*4096,18 if n<14 else 17,SWD,"s62",tag,pre=self.wd_off(n,kh))
    def wreg(self,n):
        self.regs[n]=128+8*len(self.regs)
        for kh in range(2):
            self.a(self.wd_off(n,kh))
            self.a(f"buffer_load_dwordx4 {vr(self.regs[n]+4*kh,4)}, v{18 if n<14 else 17}, {sr(SWD)}, s62 offen"); self.vm.op('wr')
            if self.thr: self.a(f"s_waitcnt vmcnt({self.thr})")
    def put(self,n):
        u=pos(n)
        for kh in range(2):
            self.a(f"ds_write_b128 v{(21,23,26)[u>>16]}, {vr(self.regs[n]+4*kh,4)} offset:{(u&0xffff)+kh*4096}")
    def bar(self,c,*tags):
        a=self.a
        a(f"s_waitcnt vmcnt({self.vm.need(*tags)})")
        if CFG.get('lt',1): ls(a,2+2*c)
        a("s_barrier")
        if CFG.get('lt',1): ls(a,3+2*c)

def loader_start(a,L):
    sp=a.lab('lsp'); jn=a.lab('ljn')
    a(f"""
    s_sub_u32 s74, s{S_WAVE}, 4
    s_lshl_b32 s92, s74, 10
    v_lshrrev_b32 v1, 3, v{VL}
    v_lshl_add_u32 v1, s74, 3, v1
    v_bfe_u32 v2, v1, 1, 3
    v_and_b32 v3, 7, v{VL}
    v_xor_b32 v2, v2, v3
    v_lshlrev_b32 v2, 4, v2
    s_cmp_ge_u32 s{S_J}, 14
    s_cbranch_scc1 {sp}
    v_lshl_add_u32 v10, v1, 15, v2
    v_lshrrev_b32 v3, 4, v{VL}
    v_lshl_add_u32 v4, s74, 2, v3
    v_mul_u32_u24 v4, 3584, v4
    s_lshr_b32 s62, s74, 1
    v_lshl_or_b32 v3, s62, 2, v3
    v_lshlrev_b32 v3, 1, v3
    v_and_b32 v5, 15, v{VL}
    v_xor_b32 v3, v3, v5
    v_lshl_add_u32 v11, v3, 4, v4
    s_and_b32 s64, s{S_J}, 1
    s_lshl1_add_u32 s64, s{S_I}, s64
    s_lshl_b32 s64, s64, 10
    s_add_u32 s65, s64, 0x100000
    s_xor_b32 s66, s64, 0x400
    s_xor_b32 s67, s65, 0x400
    s_lshl_b32 s68, s{S_J}, 8
    s_mov_b32 s62, {16*3584}
    s_mov_b32 s72, {64*3584}
    s_mov_b32 s{SB0+2}, {W_BYTES}
    s_branch {jn}
    {sp}:
    v_lshl_add_u32 v10, v1, 16, v2
    v_and_b32 v3, 15, v1
    v_lshrrev_b32 v4, 4, v1
    v_lshl_add_u32 v3, v3, 1, v4
    v_lshl_add_u32 v11, v3, 10, v2
    s_lshl_b32 s64, s{S_I}, 12
    s_add_u32 s65, s64, 0x400
    s_add_u32 s66, s64, 0x800
    s_add_u32 s67, s64, 0xc00
    s_sub_u32 s68, s{S_J}, 14
    s_lshl_b32 s68, s68, 17
    s_add_u32 s68, s68, 0x400
    s_mov_b32 s62, 0x8000
    s_movk_i32 s72, 128
    s_mov_b32 s{SB0+2}, {T_BYTES}
    {jn}:
    s_mov_b32 s{SB0+3}, 0x00020000
    s_mov_b32 s{SB1+3}, 0x00020000
    s_mov_b32 s{SB1+2}, s{SB0+2}
    s_add_u32 s69, s68, s62
    s_add_u32 s70, s69, s62
    s_add_u32 s71, s70, s62
    s_cmp_ge_u32 s{S_J}, 14
    s_waitcnt lgkmcnt(0)
    s_cselect_b64 s[{SB0}:{SB0+1}], s[{P_HRE}:{P_HRE+1}], s[{P_WG}:{P_WG+1}]
    s_cselect_b64 s[{SB1}:{SB1+1}], s[{P_HIM}:{P_HIM+1}], s[{P_WU}:{P_WU+1}]
    """)
    srd_lo(a,SX,P_X)
    ls_first(a)
    if CFG.get('ldelay',0): a(f"s_sleep {CFG['ldelay']}")
    ls(a,1)

def loader(a,L):
    vm=L.vm
    CB=64; GA=208; YA=224
    epoch_load(a,9)
    n0=CFG.get('n0',2)
    L.issue(0,0,n0)
    tile_map2(a)
    a(f"""
    v_and_b32 v12, 15, v{VL}
    v_lshrrev_b32 v13, 4, v{VL}
    s_mov_b32 s63, {hx(1/2048.)}
    s_mov_b32 s60, 0x8000
    s_mov_b32 s61, 0x80000000
    s_cmp_ge_u32 s{S_NB}, 4
    s_cselect_b32 s90, {hx(-1/2048.)}, s63
    s_cselect_b32 s75, s61, s60
    s_cselect_b32 s73, s60, s61
    v_lshlrev_b32 v2, 2, v13
    v_cvt_f32_u32 v2, v2
    v_lshl_add_u32 v3, v12, 5, s{S_T1}
    v_cvt_f32_u32 v3, v3
    v_mul_f32 v3, s90, v3
    """)
    for k in range(4):
        c=lambda tb,b: CB+(tb*4+k)*4+b
        a(f"v_add_f32 v40, {hx(16.0*k)}, v2\nv_mul_f32 v40, v40, v3\nv_add_f32 v41, v40, v3\nv_add_f32 v42, v41, v3\nv_add_f32 v43, v42, v3")
        for b in range(4): a(f"v_cos_f32 v{44+b}, v{40+b}\nv_sin_f32 v{48+b}, v{40+b}")
        for b in range(4): a(f"v_cvt_pk_bf16_f32 v{c(0,b)}, v{44+b}, v{48+b}")
        a(f"v_cvt_pk_bf16_f32 v40, v49, v45\nv_cvt_pk_bf16_f32 v41, v51, v47")
        for tb in range(1,4): a(f"v_mov_b32 v{c(tb,0)}, v{c(0,0)}")
        a(f"v_xor_b32 v{c(1,1)}, s75, v40\nv_xor_b32 v{c(3,1)}, s73, v40\nv_xor_b32 v{c(1,3)}, s73, v41\nv_xor_b32 v{c(3,3)}, s75, v41")
        a(f"v_xor_b32 v{c(2,1)}, 0x80008000, v{c(0,1)}\nv_xor_b32 v{c(2,3)}, 0x80008000, v{c(0,3)}")
        a(f"v_xor_b32 v{c(1,2)}, 0x80008000, v{c(0,2)}\nv_mov_b32 v{c(2,2)}, v{c(0,2)}\nv_mov_b32 v{c(3,2)}, v{c(1,2)}")
    L.issue(0,n0,4); L.issue(1,0,CFG.get('i1',2))
    srd(a,SWS,P_WS,ws_end()); srd(a,SWD,P_WD,W_BYTES)
    a(f"""
    v_and_b32 v6, 7, v{VL}
    v_lshlrev_b32 v5, 1, v13
    v_xor_b32 v6, v6, v5
    v_lshlrev_b32 v6, 4, v6
    v_lshl_add_u32 v6, v1, 10, v6
    s_and_b32 s60, s{S_T1}, 1
    s_lshl_b32 s60, s60, 10
    s_add_u32 s60, s60, s{S_NB}
    v_lshl_add_u32 v18, s60, 7, v6
    v_xor_b32 v17, 0x20000, v18
    """)
    stage_rot(a,60,17)
    a(f"""
    s_lshl2_add_u32 s60, s2, s74
    s_mul_i32 s60, s60, 1792
    s_add_u32 s76, s{P_WD}, s60
    s_addc_u32 s77, s{P_WD+1}, 0
    s_lshl2_add_u32 s60, s{S_LOC}, s74
    s_mul_i32 s60, s60, {14*1024}
    s_add_u32 s60, s60, 384
    s_add_u32 s78, s{P_WD}, s60
    s_addc_u32 s79, s{P_WD+1}, 0
    """)
    sp2=a.lab('gspec'); j2=a.lab('gjoin')
    a(f"v_and_b32 v5, 31, v{VL}\ns_and_b32 s60, s74, 1\ns_lshr_b32 s63, s74, 1\ns_cmp_ge_u32 s{S_J}, 14\ns_cbranch_scc1 {sp2}")
    a(f"v_and_b32 v3, 1, v5\nv_lshlrev_b32 v3, 10, v3\nv_and_b32 v4, 30, v5\ns_and_b32 s61, s{S_J}, 1\ns_xor_b32 s63, s63, s61\ns_lshl1_add_u32 s61, s{S_I}, s60\ns_lshl_b32 s61, s61, 5\ns_add_u32 s61, s61, s63\nv_add3_u32 v20, v3, v4, s61\ns_branch {j2}\n{sp2}:")
    a(f"s_lshl1_add_u32 s61, s{S_I}, s63\ns_lshl_b32 s61, s61, 6\ns_add_u32 s61, s61, s60\nv_lshl_add_u32 v20, v5, 1, s61\n{j2}:")
    a(f"""
    v_lshlrev_b32 v20, 4, v20
    v_lshlrev_b32 v5, 4, v5
    v_lshrrev_b32 v6, 5, v{VL}
    v_mul_u32_u24 v6, {1792*4}, v6
    s_min_u32 s61, s{S_J}, 13
    s_lshl_b32 s61, s61, 9
    v_add3_u32 v22, v5, v6, s61
    s_mul_i32 s88, s74, {3584*4}
    s_add_u32 s88, s88, {WS_CS}
    s_mov_b32 s87, {WS_ST}
    v_mov_b32 v15, 0x0c0c0400
    v_mov_b32 v16, 0x04000c0c
    v_lshl_add_u32 v21, v{VL}, 4, s92
    v_add_u32 v23, 0x10000, v21
    """)
    a(f"""
    s_lshl2_add_u32 s60, s{S_NB}, s74
    s_lshl_b32 s60, s60, 4
    v_add_u32 v3, s60, v12
    v_sub_u32 v4, 512, v3
    s_sub_u32 s61, 32, s{S_T1}
    s_and_b32 s61, s61, 31
    s_sub_u32 s63, 496, s60
    s_max_u32 s73, s60, 1
    s_sub_u32 s73, s73, 1
    s_add_u32 s75, s60, 14
    s_cmp_ge_u32 s{S_NB}, 4
    s_cselect_b32 s61, s61, s{S_T1}
    s_cselect_b64 vcc, -1, 0
    s_cselect_b32 s73, s63, s73
    s_cselect_b32 s75, s63, s75
    v_cndmask_b32 v4, v3, v4, vcc
    v_subrev_u32 v4, 1, v4
    v_lshlrev_b32 v4, 3, v4
    v_lshl_add_u32 v4, v13, 12, v4
    v_cmp_eq_u32 vcc, 0, v3
    v_mov_b32 v5, {OOB}
    s_lshl_b32 s61, s61, 16
    v_cndmask_b32 v19, v4, v5, vcc
    s_add_u32 s91, s61, {WS_G}
    s_lshr_b32 s73, s73, 7
    s_lshr_b32 s75, s75, 7
    s_sub_u32 s75, s75, s73
    v_and_b32 v5, 1, v13
    v_mul_u32_u24 v5, s75, v5
    v_lshl_add_u32 v5, v12, 4, v5
    v_add_lshl_u32 v14, v5, s73, 9
    s_lshr_b32 s61, s{S_T1}, 1
    s_and_b32 s63, s{S_T1}, 1
    s_lshl4_add_u32 s61, s61, s63
    s_lshl_b32 s61, s61, 9
    s_add_u32 s61, s61, {WS_FL}
    s_xor_b32 s63, s61, 0x300
    s_add_u32 s34, s{P_WS}, s61
    s_addc_u32 s35, s{P_WS+1}, 0
    s_add_u32 s36, s{P_WS}, s63
    s_addc_u32 s37, s{P_WS+1}, 0
    """)
    flag_addr(a,61)
    a(f"s_add_u32 s42, s{P_WS}, s61\ns_addc_u32 s43, s{P_WS+1}, 0\nv_and_b32 v5, 1, v{VL}\nv_lshlrev_b32 v5, 8, v5\nbuffer_load_dwordx2 v[32:33], v5, {sr(SWS)}, s61 offen sc1"); vm.op('old')
    sl=[f"s_load_dword s95, s[76:77], {q*64}" for q in range(28)]+[f"s_load_dword s95, s[78:79], {(q//2)*1024+(q&1)*64}" for q in range(28)]
    ss=[int(c,16) for c in str(CFG.get('sps','e777777')).zfill(7)]
    def spf(rnd):
        if not CFG.get('spf',1): return
        for _ in range(ss[rnd]):
            if sl: a(sl.pop(0))
    def gather():
        a(f"buffer_load_dwordx4 v[24:27], v20, {sr(SWS)}, s87 offen sc1\nbuffer_load_dwordx4 v[28:31], v22, {sr(SWS)}, s88 offen sc1")
    R=(64,66,68,70,72,76,78)
    def watch_issue(base):
        sk=a.lab('nw')
        a(f"s_cmp_lg_u32 s74, 3\ns_cbranch_scc1 {sk}")
        for q in range(7): a(f"s_load_dwordx2 s[{R[q]}:{R[q]+1}], s[{base}:{base+1}], {q*1024} glc")
        a(f"{sk}:")
    def watch(base):
        np_=a.lab('nopoll'); lp=a.lab('poll'); ck=a.lab('chk')
        a(f"s_cmp_lg_u32 s74, 3\ns_cbranch_scc1 {np_}\ns_mov_b32 s89, {SPIN}\ns_branch {ck}\n{lp}:")
        for q in range(7): a(f"s_load_dwordx2 s[{R[q]}:{R[q]+1}], s[{base}:{base+1}], {q*1024} glc")
        a(f"s_sub_u32 s89, s89, 1\ns_cbranch_scc1 {np_}\n{ck}:\ns_waitcnt lgkmcnt(0)")
        for q in range(7): a(f"s_cmp_lg_u64 s[{R[q]}:{R[q]+1}], s[{S_TAG}:{S_TAG+1}]\ns_cbranch_scc1 {lp}")
        a(f"{np_}:")
    def raise_flag(h):
        sk=a.lab('nf')
        a(f"s_cmp_lg_u32 s74, 0\ns_cbranch_scc1 {sk}\ns_atomic_add_x2 s[{44+2*h}:{45+2*h}], s[42:43], {256*h}\n{sk}:")
    regq=list(range(19,28))+(list(range(13,19)) if CFG.get('r12',0) else [])
    sched=[int(c,16) for c in str(CFG.get('wrs','0')).zfill(6)]
    def wregs(k):
        for _ in range(k):
            if regq: L.wreg(regq.pop(0))
    spf(0)
    L.bar(0,'c0')
    L.issue(1,CFG.get('i1',2),4); L.issue(2,0,CFG.get('i2',2)); spf(1); wregs(sched[0])
    epoch_tag(a,9)
    L.bar(1,'c1','old')
    L.extra=[f"v_readlane_b32 s44, v32, 0",f"v_readlane_b32 s45, v33, 0",f"v_readlane_b32 s46, v32, 1",f"v_readlane_b32 s47, v33, 1","s_nop 0",
             f"s_sub_u32 s44, s{S_TAG}, s44\ns_subb_u32 s45, s{S_TAG+1}, s45\ns_sub_u32 s46, s{S_TAG}, s46\ns_subb_u32 s47, s{S_TAG+1}, s47"]
    L.issue(2,CFG.get('i2',2),4); L.issue(3); spf(2); wregs(sched[1])
    L.bar(2,'c2')
    L.issue(4); spf(3); wregs(sched[2])
    L.bar(3,'c3')
    gather(); vm.op('g'); vm.op('g')
    L.issue(5); spf(4); wregs(sched[3])
    L.bar(4,'c4','g')
    check=["v_perm_b32 v3, v29, v28, v15","v_perm_b32 v4, v31, v30, v16",f"v_xor_b32 v5, s{S_TAG}, v25","v_or_b32 v3, v3, v4",f"v_xor_b32 v3, s{S_TAG}, v3","v_or_b32 v3, v3, v5"]
    L.extra=list(check)
    L.issue(6,0,2)
    rt=a.lab('rt'); ok=a.lab('ok')
    a(f"v_cmp_ne_u32 vcc, 0, v3\ns_cbranch_vccz {ok}\ns_mov_b32 s89, {SPIN}\n{rt}:")
    gather(); a("s_waitcnt vmcnt(0)")
    for x in check: a(x)
    a(f"v_cmp_ne_u32 vcc, 0, v3\ns_cbranch_vccz {ok}\ns_sleep 2\ns_sub_u32 s89, s89, 1\ns_cmp_lg_u32 s89, 0\ns_cbranch_scc1 {rt}\n{ok}:")
    L.issue(6,2,4); spf(5); wregs(sched[4])
    L.bar(5,'c5')
    L.issue(7); spf(6); wregs(sched[5])
    L.bar(6,'c6')
    a(f"s_add_u32 m0, s92, {L_CS}\ns_lshr_b32 s61, s92, 1\nbuffer_load_dwordx4 v22, {sr(SWS)}, s88 offen sc1 lds"); vm.op('gd')
    a(f"s_add_u32 m0, s61, {L_STAT}\ns_mov_b32 exec_hi, 0\nbuffer_load_dwordx4 v20, {sr(SWS)}, s87 offen sc1 lds"); vm.op('gd')
    a(f"s_lshr_b32 s61, s92, 3\ns_add_u32 m0, s61, {L_RSTD-12}\ns_nop 0\nbuffer_load_dword v20, {sr(SWS)}, s87 offen offset:12 sc1 lds\ns_mov_b32 exec_hi, -1"); vm.op('gd')
    L.m0=None
    u6=CFG.get('u6',3)
    for n in range(0,u6): L.wd(n)
    L.bar(7,'c7','gd')
    L.thr=CFG.get('thr',0)
    for n in range(u6,7): L.wd(n,'w6')
    wregs(99)
    a(f"v_add_u32 v26, 0x20000, v21")
    ls(a,18); a("s_barrier"); ls(a,19)
    u7=CFG.get('u7',10)
    for n in range(7,u7): L.wd(n,'w8' if n<9 else 'wd')
    a(f"s_waitcnt vmcnt({vm.need('w6')})")
    ls(a,20); a("s_barrier"); ls(a,21)
    raise_flag(0)
    if CFG.get('r12',0):
        for n in range(u7,13): L.wd(n)
        a("s_waitcnt vmcnt(0)")
        watch_issue(34)
        for n in range(13,19): L.put(n)
    else:
        for n in range(u7,19):
            if n==CFG.get('we',15): watch_issue(34)
            L.wd(n)
        a(f"s_waitcnt vmcnt({vm.need('w8')})")
    ls(a,22)
    watch(34)
    ls(a,28)
    a("s_barrier")
    a(f"s_waitcnt vmcnt(0) lgkmcnt(0)\ns_barrier")
    raise_flag(1)
    if CFG.get('lprio',2): a(f"s_setprio {CFG.get('lprio',2)}")
    for n in range(19,28):
        if n==CFG.get('wl',23): watch_issue(36)
        L.put(n)
    ls(a,27)
    watch(36)
    a("s_waitcnt lgkmcnt(0)")
    ls(a,23)
    a("s_barrier")
    if CFG.get('gap'): ls_dump(a)
    lp=a.lab('poll'); ok=a.lab('ok')
    if CFG.get('g0',0): a(f"s_sleep {CFG['g0']}")
    a(f"s_mov_b32 s87, {WS_FL+14*512+256}\ns_mov_b32 s89, {SPIN}\n{lp}:")
    a(f"buffer_load_dwordx2 v[24:25], v14, {sr(SWS)}, s87 offen sc1\ns_waitcnt vmcnt(0)\nv_cmp_ne_u64 vcc, s[{S_TAG}:{S_TAG+1}], v[24:25]\ns_cbranch_vccz {ok}")
    a(f"s_sleep {CFG.get('gs',6)}\ns_sub_u32 s89, s89, 1\ns_cmp_lg_u32 s89, 0\ns_cbranch_scc1 {lp}\n{ok}:")
    for k in range(4):
        a(f"buffer_load_dwordx2 {vr(GA+4*k,2)}, v19, {sr(SWS)}, s91 offen sc1\nbuffer_load_dwordx2 {vr(GA+4*k+2,2)}, v19, {sr(SWS)}, s91 offen offset:2048 sc1\ns_add_u32 s91, s91, {4*4096}")
    ls(a,24)
    for k in range(4):
        a(f"s_waitcnt vmcnt({6-2*k})")
        for tb in range(4):
            a(f"{MF} {vr(YA+4*tb,4)}, {vr(GA+4*k,4)}, {vr(CB+(tb*4+k)*4,4)}, {'0' if k==0 else vr(YA+4*tb,4)}")
    nb=a.lab('nobump')
    a(f"s_or_b32 s60, s2, s74\ns_cbranch_scc1 {nb}\ns_mov_b32 s60, {WS_EP}\nv_mov_b32 v24, s{S_TAG}\ns_mov_b64 exec, 1\nbuffer_store_dword v24, off, {sr(SWS)}, s60 sc1\ns_mov_b64 exec, -1\n{nb}:")
    a(f"s_lshl_b32 s60, s74, 12\ns_add_u32 s60, s60, {L_Y}\nv_lshl_add_u32 v1, v{VL}, 4, s60\ns_nop 3")
    ls(a,29)
    a("s_barrier")
    for tb in range(4):
        a(f"ds_write_b128 v1, {vr(YA+4*tb,4)} offset:{1024*tb}")
    a("s_waitcnt lgkmcnt(0)")
    ls(a,25)
    a("s_barrier")
    ls(a,26)
    if not CFG.get('gap'): ls_dump(a)

def kernel_main(a,name):
    kbegin(a,name)
    end=a.lab('end'); ld=a.lab('ld'); sp=a.lab('sp'); s2=a.lab('stage2')
    r1=a.lab('r1'); r3=a.lab('r3'); rj=a.lab('rj'); rt=a.lab('rt'); rz=a.lab('rz'); c0=a.lab('c0'); c1=a.lab('c1')
    a(f"s_cmp_ge_u32 s2, 256\ns_cbranch_scc1 {end}")
    if diag(): a("s_memrealtime s[94:95]")
    a("s_load_dwordx16 s[32:47], s[0:1], 0\ns_load_dwordx8 s[48:55], s[0:1], 64")
    if CFG.get('cpf',1):
        a(f"""
        s_getpc_b64 s[60:61]
        L_pc_here:
        s_bfe_u32 s62, s2, 0x20003
        v_lshl_add_u32 v1, v0, 2, s62
        v_lshlrev_b32 v1, 7, v1
        v_min_u32 v1, L_code_end-L_pc_here-4, v1
        global_load_dword v252, v1, s[60:61]
        """)
    a(f"v_lshrrev_b32 v1, 6, v0\nv_and_b32 v{VL}, 63, v0\nv_readfirstlane_b32 s{S_WAVE}, v1")
    tile_map(a)
    srd_hi(a,SX,XB_BYTES)
    a(f"s_cmp_ge_u32 s{S_WAVE}, 4\ns_cbranch_scc1 {ld}")
    a(f"s_cmp_eq_u32 s{S_WAVE}, 3\ns_cbranch_scc1 {r3}")
    a(f"s_cmp_lg_u32 s{S_WAVE}, 0\ns_cbranch_scc1 {r1}")
    cs_ids(a)
    colsum_loads(a)
    a(f"s_branch {rt}\n{r1}:")
    row_ids(a); rows_loads(a)
    r1b=a.lab('r1b')
    a(f"s_branch {r1b}\n{ld}:")
    L=Loader(a)
    loader_start(a,L)
    loader(a,L)
    a(f"s_endpgm\n{rt}:")
    cs_addr(a,68)
    a(f"s_branch {rz}\n{r1b}:")
    st_addr(a,68)
    a(f"s_lshl4_add_u32 s68, s60, s68\ns_mov_b32 s87, 1\ns_branch {rz}\n{r3}:")
    if CFG.get('warm',1):
        row_ids(a); st_addr(a,72)
        a(f"v_mov_b32 v1, s72")
    a(f"s_waitcnt lgkmcnt(0)")
    epoch_load(a,128)
    if CFG.get('warm',1):
        a(f"global_load_dword v252, v1, s[{P_WS}:{P_WS+1}] sc1")
    if CFG.get('c3',0):
        n3=a.lab('n3')
        a(f"""
        v_and_b32 v1, 15, v{VL}
        v_bfe_u32 v2, v{VL}, 4, 1
        v_lshl_add_u32 v1, v2, 5, v1
        s_lshl2_add_u32 s62, s{S_LOC}, s{S_A}
        v_lshl_add_u32 v1, s62, 4, v1
        v_lshlrev_b32 v1, 10, v1
        s_mov_b32 exec_hi, 0
        global_load_dword v252, v1, s[{P_X}:{P_X+1}] offset:384
        s_mov_b32 exec_hi, -1
        s_cmp_lt_u32 s{S_J}, 14
        s_cbranch_scc1 {n3}
        s_sub_u32 s62, s{S_J}, 14
        s_and_b32 s63, s{S_LOC}, 1
        s_lshl1_add_u32 s62, s62, s63
        v_lshl_add_u32 v1, s62, 6, v{VL}
        v_lshlrev_b32 v1, 10, v1
        s_bitcmp1_b32 s{S_LOC}, 1
        s_cselect_b64 s[64:65], s[{P_HIM}:{P_HIM+1}], s[{P_HRE}:{P_HRE+1}]
        global_load_dword v252, v1, s[64:65] offset:{1024+384}
        {n3}:
        """)
    a(f"s_mov_b32 s87, 2\n{rz}:\nv_mov_b32 v{SA}, {OOB}")
    ls_first(a)
    if CFG.get('prio',1): a("s_setprio 1")
    scalars2(a)
    sp0=a.lab('sp0'); j0=a.lab('j0')
    a(f"s_cmp_ge_u32 s{S_J}, 14\ns_cbranch_scc1 {sp0}")
    compute1_setup(a,False); epilogue_ffn_setup(a)
    a(f"s_branch {j0}\n{sp0}:")
    compute1_setup(a,True); dft32_consts(a)
    a(f"s_sub_u32 s62, s{S_J}, 14\ns_lshl2_add_u32 s62, s62, s{S_WAVE}\ns_lshl4_add_u32 s62, s{S_I}, s62\ns_lshl_b32 s62, s62, 8\ns_add_u32 s90, s62, {WS_G}")
    a(f"{j0}:")
    zero_acc(a)
    a(f"s_cmp_eq_u32 s87, 1\ns_cbranch_scc1 {c1}\ns_cmp_eq_u32 s87, 0\ns_cbranch_scc1 {c0}")
    a("s_waitcnt vmcnt(0)"); epoch_tag(a,128)
    a(f"s_branch {rj}\n{c0}:")
    colsum_finish(a)
    a(f"s_branch {rj}\n{c1}:")
    rows_finish(a)
    a(f"{rj}:")
    a(f"s_cmp_ge_u32 s{S_J}, 14\ns_cbranch_scc1 {sp}")
    stage1_ffn(a)
    a(f"{s2}:")
    compute2(a)
    a(f"s_endpgm\n{sp}:")
    stage1_spec(a)
    a(f"s_branch {s2}")
    a(f"{end}:\ns_endpgm\nL_code_end:")

def build(cfg):
    CFG.clear(); CFG.update(cfg)
    a=Asm()
    name=NAME+'_kernel'
    if cfg.get('probe'):
        a(f"; @launch kernel={name} grid=(256,1,1) block=(512,1,1) lds={LDS}")
        a(f"; @launch kernel=probe_kernel grid=(1,1,1) block=(64,1,1) lds=0")
    else:
        a(f"; @launch grid=(256,1,1) block=(512,1,1) lds={LDS}")
    a('.amdgcn_target "amdgcn-amd-amdhsa--gfx950"\n.text')
    kernel_main(a,name); names=[name]
    if cfg.get('probe'): names.append(kernel_probe(a))
    a('.section .rodata,"a"')
    for n in names:
        a('.p2align 6')
        a.l.append(kd(n,256,102,256))
    return a.text()

if __name__=='__main__':
    cfg={}
    for kv in sys.argv[2:]:
        k,v=kv.split('='); cfg[k]=int(v) if v.lstrip('-').isdigit() else v
    t=build(cfg)
    if cfg.get('cyc'): t=t.replace('s_memrealtime','s_memtime')
    open(sys.argv[1],'w').write(t)
```

```python
import sys, struct
NAME='recurrent_scan__spectral_fnet__swiglu_ffn__prompt'
LOG2E=1.4426950408889634
def f2u(x): return struct.unpack('<I',struct.pack('<f',x))[0]
def hx(x): return hex(f2u(x))

WS_H=0; WS_G=0x700000; WS_ST=0x900000; WS_CS=0x908000; WS_EP=0x918000; WS_FL=0x9C0000
WS_TRACE=0x940000
CFG={}
def diag(): return CFG.get('probe') or CFG.get('trace')
def ws_end(): return 0xA00000
S_TAG=6
OOB=0x40000000

class Asm:
    def __init__(self): self.l=[]; self.n=0
    def __call__(self,s):
        for line in s.split('\n'):
            line=line.strip()
            if line: self.l.append(('' if line.endswith(':') or line.startswith('.') or line.startswith(';') else '    ')+line)
    def lab(self,b): self.n+=1; return f"L_{b}_{self.n}"
    def text(self): return '\n'.join(self.l)+'\n'

class VM:
    def __init__(self): self.ops=[]
    def op(self,tag): self.ops.append(tag)
    def need(self,*tags):
        last=max(i for i,t in enumerate(self.ops) if t in tags)
        n=len(self.ops)-1-last
        assert n<=63, n
        return n

def kd(name,vgpr,sgpr,accum):
    return f""".amdhsa_kernel {name}
  .amdhsa_next_free_vgpr {vgpr}
  .amdhsa_next_free_sgpr {sgpr}
  .amdhsa_accum_offset {accum}
  .amdhsa_group_segment_fixed_size 0
  .amdhsa_kernarg_size 96
  .amdhsa_user_sgpr_count 2
  .amdhsa_user_sgpr_kernarg_segment_ptr 1
  .amdhsa_system_sgpr_workgroup_id_x 1
  .amdhsa_float_denorm_mode_32 3
.end_amdhsa_kernel
"""
def kbegin(a,name): a(f".globl {name}\n.p2align 8\n.type {name},@function\n{name}:")
def srd(a,d,base,nbytes):
    a(f"s_mov_b64 s[{d}:{d+1}], s[{base}:{base+1}]\ns_mov_b32 s{d+2}, {nbytes}\ns_mov_b32 s{d+3}, 0x00020000")
def srd_hi(a,d,nbytes): a(f"s_mov_b32 s{d+2}, {nbytes}\ns_mov_b32 s{d+3}, 0x00020000")
def srd_lo(a,d,base): a(f"s_mov_b64 s[{d}:{d+1}], s[{base}:{base+1}]")
def vr(b,n): return f"v[{b}:{b+n-1}]" if n>1 else f"v{b}"
def sr(b): return f"s[{b}:{b+3}]"
MF="v_mfma_f32_16x16x32_bf16"

P_X,P_HRE,P_HIM,P_WG,P_WU,P_WD,P_OUT,P_DBG,P_WS=32,38,40,44,46,48,50,52,54
SX,SB0,SB1,SWS,SWD,SOUT=8,12,16,20,24,28
S_WAVE=56; S_I=57; S_J=58; S_T1=59; S_NB=3; S_A=100; S_G=101; S_LOC=93; S_X=4
VL=255
SPIN=100000
XB_BYTES=2048*512*2; W_BYTES=512*1792*2; T_BYTES=512*512*2

def ls(a,idx):
    if diag() and not CFG.get('gap'): a(f"s_memrealtime s[96:97]\ns_waitcnt lgkmcnt(0)\nv_writelane_b32 v254, s96, {idx}")
def ls_first(a):
    if diag(): a(f"v_writelane_b32 v254, s94, 0")
def ls_dump(a):
    if diag(): a(f"s_lshl_b32 s98, s2, 11\ns_lshl_b32 s99, s{S_WAVE}, 8\ns_add_u32 s98, s98, s99\ns_add_u32 s98, s98, {WS_TRACE}\nv_lshlrev_b32 v253, 2, v{VL}\nbuffer_store_dword v254, v253, {sr(SWS)}, s98 offen sc1")
def kernel_probe(a):
    pa,pb=CFG['probe'].split(':'); K=CFG.get('K',10)
    name='probe_kernel'; kbegin(a,name); end=a.lab('end')
    a(f"s_memrealtime s[70:71]\ns_cmp_ge_u32 s2, 1\ns_cbranch_scc1 {end}")
    a("s_load_dwordx2 s[54:55], s[0:1], 88\ns_waitcnt lgkmcnt(0)")
    srd(a,SWS,P_WS,ws_end())
    a("v_lshlrev_b32 v1, 11, v0")
    for r,p in ((4,pa),(8,pb)):
        w,i=p[3:].split('.')
        for q in range(4):
            a(f"s_mov_b32 s60, {WS_TRACE+int(w)*256+int(i)*4+q*64*2048}\nbuffer_load_dword v{r+q}, v1, {sr(SWS)}, s60 offen")
    a("s_waitcnt vmcnt(0)\ns_nop 0\nv_readfirstlane_b32 s61, v4\ns_nop 3")
    for r in range(4,12): a(f"v_subrev_u32 v{r}, s61, v{r}")
    for r,p,sd in ((4,pa,62),(8,pb,63)):
        op=p[:3]
        vop={'min':'v_min_i32','max':'v_max_i32','avg':'v_add_u32'}[op]; sop={'min':'s_min_i32','max':'s_max_i32','avg':'s_add_u32'}[op]
        a(f"{vop} v{r}, v{r}, v{r+1}\n{vop} v{r+2}, v{r+2}, v{r+3}\n{vop} v{r}, v{r}, v{r+2}\ns_nop 0")
        a(f"v_readlane_b32 s{sd}, v{r}, 0")
        for l in range(1,64): a(f"v_readlane_b32 s64, v{r}, {l}\ns_nop 0\n{sop} s{sd}, s{sd}, s64")
        a(f"s_mul_i32 s{sd}, s{sd}, {K}")
        if op=='avg': a(f"s_ashr_i32 s{sd}, s{sd}, 8")
    if CFG.get('gap'): a(f"s_sub_u32 s63, s70, s61\ns_mul_i32 s63, s63, {K}")
    a("s_sub_u32 s62, s63, s62\ns_max_i32 s62, s62, 0\ns_min_i32 s62, s62, 100000")
    a("s_memrealtime s[66:67]\ns_waitcnt lgkmcnt(0)")
    lp=a.lab('spin')
    a(f"{lp}:\ns_memrealtime s[68:69]\ns_waitcnt lgkmcnt(0)\ns_sub_u32 s68, s68, s66\ns_cmp_lt_u32 s68, s62\ns_cbranch_scc1 {lp}")
    a(f"{end}:\ns_endpgm")
    return name

SLOT=49152
L_STAT=3*SLOT+8192; L_RSTD=L_STAT+2048; L_CS=L_RSTD+512
L_Y=16384; L_RED=32768; LDS=163840; L_SIG=LDS-16
NPRE=9
def pos(n):
    if n>=19: n-=19
    if n<6: return 2*SLOT+n*8192
    if n==6: return 3*SLOT
    return (n-7)*8192

def tile_map(a):
    a(f"""
    s_lshr_b32 s{S_LOC}, s2, 3
    s_and_b32 s{S_A}, s2, 1
    s_bfe_u32 s{S_G}, s2, 0x20001
    s_bfe_u32 s60, s2, 0x10002
    s_bfe_u32 s61, s2, 0x10001
    s_mul_i32 s62, s60, 7
    s_lshr_b32 s63, s2, 6
    s_lshl2_add_u32 s63, s61, s63
    s_and_b32 s64, s{S_LOC}, 3
    s_lshl2_add_u32 s65, s61, s64
    s_and_b32 s66, s{S_LOC}, 7
    s_cmp_ge_u32 s{S_LOC}, 24
    s_cselect_b32 s63, 3, s63
    s_cselect_b32 s66, s65, s66
    s_add_u32 s{S_J}, s62, s63
    s_lshl3_add_u32 s{S_X}, s{S_A}, s66
    s_lshl2_add_u32 s64, s{S_A}, s64
    s_lshl3_add_u32 s64, s61, s64
    s_add_u32 s60, s60, 14
    s_cmp_ge_u32 s{S_LOC}, 28
    s_cselect_b32 s{S_J}, s60, s{S_J}
    s_cselect_b32 s{S_I}, s64, s{S_X}
    """)
def tile_map2(a):
    a(f"""
    s_and_b32 s60, s2, 7
    s_bfe_u32 s62, s{S_LOC}, 0x10001
    s_lshl1_add_u32 s{S_T1}, s60, s62
    s_sub_u32 s62, 32, s{S_T1}
    s_cmp_eq_u32 s{S_T1}, 0
    s_cselect_b32 s62, 16, s62
    s_bitcmp1_b32 s{S_LOC}, 0
    s_cselect_b32 s{S_T1}, s62, s{S_T1}
    s_lshr_b32 s{S_NB}, s{S_LOC}, 2
    """)

def stage_rot(a,s,sh):
    r=CFG.get('rot',0)
    if r==0:
        for sg in range(7): a(f"s_mov_b32 s{80+sg}, {sg<<(sh+1)}")
        return
    a(f"s_and_b32 s{s}, s{S_LOC}, 1\ns_mul_i32 s{s}, s{s}, {3 if r==2 else 0}\ns_add_u32 s{s}, s{s}, s{S_NB}\ns_sub_u32 s62, s{s}, 7\ns_cmp_ge_u32 s{s}, 7\ns_cselect_b32 s{s}, s62, s{s}")
    for sg in range(7):
        a(f"s_lshl_b32 s{80+sg}, s{s}, {sh+1}\ns_add_u32 s{s}, s{s}, 1\ns_cmp_eq_u32 s{s}, 7\ns_cselect_b32 s{s}, 0, s{s}")

def epoch_load(a,v):
    a(f"v_mov_b32 v{v}, {WS_EP}\nglobal_load_dword v{v}, v{v}, s[{P_WS}:{P_WS+1}] sc1")
def epoch_tag(a,v):
    a(f"v_readfirstlane_b32 s{S_TAG}, v{v}\ns_nop 0\ns_mul_i32 s{S_TAG}, s{S_TAG}, 0x9e3779b1\ns_add_u32 s{S_TAG}, s{S_TAG}, 0x7f4a7c15\ns_not_b32 s{S_TAG+1}, s{S_TAG}")

SD=160; SA=253
def cs_ids(a):
    a(f"""
    s_and_b32 s61, s{S_X}, 3
    s_bfe_u32 s63, s{S_X}, 0x10002
    s_lshl1_add_u32 s63, s{S_J}, s63
    s_lshr_b32 s69, s{S_X}, 3
    """)
def cs_addr(a,sd):
    a(f"""
    s_mul_i32 s{sd}, s61, {3584*4}
    s_mul_i32 s62, s69, {1792*4}
    s_add_u32 s{sd}, s{sd}, s62
    s_lshl_b32 s62, s63, 8
    s_add_u32 s{sd}, s{sd}, s62
    s_add_u32 s{sd}, s{sd}, {WS_CS}
    """)
def row_ids(a):
    a(f"""
    s_and_b32 s71, s{S_LOC}, 7
    s_lshr_b32 s70, s{S_LOC}, 3
    s_and_b32 s62, s{S_G}, 1
    s_lshl2_add_u32 s70, s62, s70
    s_lshl3_add_u32 s70, s{S_A}, s70
    s_lshr_b32 s62, s{S_G}, 1
    s_lshl4_add_u32 s70, s62, s70
    """)
def st_addr(a,sd):
    a(f"s_lshl3_add_u32 s{sd}, s70, s71\ns_lshl_b32 s{sd}, s{sd}, 7\ns_add_u32 s{sd}, s{sd}, {WS_ST}")
def flag_addr(a,sd):
    a(f"s_lshl4_add_u32 s{sd}, s{S_I}, s{S_J}\ns_lshl_b32 s{sd}, s{sd}, 9\ns_add_u32 s{sd}, s{sd}, {WS_FL}")

def colsum_loads(a):
    a(f"""
    s_mul_i32 s72, s61, 3584
    s_lshl_b32 s62, s63, 7
    s_add_u32 s72, s72, s62
    s_lshl2_add_u32 s62, s63, s61
    s_lshl_b32 s62, s62, 14
    s_sub_u32 s62, s62, {28*4*16384-1024}
    s_movk_i32 s70, {4*3584}
    s_mov_b32 s73, {32*3584}
    s_mov_b32 s66, {W_BYTES}
    s_mov_b32 s67, s{SX+3}
    s_cmp_ge_u32 s{S_J}, 14
    s_cselect_b32 s72, s62, s72
    s_cselect_b32 s70, 0x800, s70
    s_cselect_b32 s73, 0x80, s73
    s_cselect_b32 s66, {T_BYTES}, s66
    s_cselect_b32 s87, 2, 0
    v_lshrrev_b32 v1, 3, v{VL}
    v_mul_u32_u24 v1, s70, v1
    v_and_b32 v2, 7, v{VL}
    v_lshl_add_u32 v1, v2, 4, v1
    s_waitcnt lgkmcnt(0)
    s_cselect_b64 s[64:65], s[{P_HRE}:{P_HRE+1}], s[{P_WG}:{P_WG+1}]
    s_cselect_b64 s[70:71], s[{P_HIM}:{P_HIM+1}], s[{P_WU}:{P_WU+1}]
    s_cmp_eq_u32 s69, 1
    s_cselect_b64 s[64:65], s[70:71], s[64:65]
    """)
    epoch_load(a,128)
    for n in range(16):
        a(f"buffer_load_dwordx4 {vr(160+4*n,4)}, v1, s[64:67], s72 offen")
        if n<15: a(f"s_add_u32 s72, s72, s73")
def colsum_finish(a):
    a(f"""
    v_and_b32 v140, 15, v{VL}
    v_and_b32 v141, 1, v140
    v_lshlrev_b32 v141, 4, v141
    v_mov_b32 v142, 0x3f80
    v_lshlrev_b32 v141, v141, v142
    v_lshrrev_b32 v140, 1, v140
    """)
    for p in range(4):
        a(f"v_cmp_eq_u32 vcc, {p}, v140\ns_nop 1\nv_cndmask_b32 v{132+p}, 0, v141, vcc")
    a(f"""
    v_and_b32 v140, 7, v{VL}
    v_lshlrev_b32 v140, 5, v140
    v_and_b32 v141, 16, v{VL}
    v_add3_u32 v140, v140, v141, s68
    v_and_b32 v141, 0x28, v{VL}
    v_cmp_eq_u32 vcc, 0, v141
    s_nop 1
    v_cndmask_b32 v{SA}, v{SA}, v140, vcc
    v_mov_b32 v140, 0x07060500
    v_mov_b32 v141, 0x07060501
    v_mov_b32 v142, 0x07060502
    v_mov_b32 v143, 0x07060503
    """)
    a("s_waitcnt vmcnt(16)"); epoch_tag(a,128)
    for n in range(16):
        a(f"s_waitcnt vmcnt({15-n})")
        a(f"{MF} v[136:139], v[132:135], {vr(160+4*n,4)}, {'0' if n==0 else 'v[136:139]'}")
    a("s_nop 7\ns_nop 1")
    for j in range(4):
        a(f"v_add_f32_dpp v{SD+j}, v{136+j}, v{136+j} row_ror:8 row_mask:0xf bank_mask:0xf")
    for j in range(4):
        a(f"v_perm_b32 v{SD+j}, v{SD+j}, s{S_TAG}, v{140+j}")
def table_touch(a):
    a(f"""
    s_sub_u32 s63, s63, 28
    s_lshl2_add_u32 s63, s63, s61
    s_lshl_b32 s63, s63, 14
    s_add_u32 s63, s63, 1024
    v_lshlrev_b32 v1, 8, v{VL}
    """)
    srd_hi(a,64,T_BYTES)
    a(f"s_cmp_eq_u32 s69, 1\ns_waitcnt lgkmcnt(0)\ns_cselect_b64 s[64:65], s[{P_HIM}:{P_HIM+1}], s[{P_HRE}:{P_HRE+1}]")
    epoch_load(a,128)
    a(f"buffer_load_dword v252, v1, s[64:67], s63 offen\nbuffer_load_dword v252, v1, s[64:67], s63 offen offset:128")

def rows_loads(a):
    a(f"""
    s_sub_u32 s60, s{S_WAVE}, 1
    s_lshl1_add_u32 s63, s70, s60
    s_lshl_b32 s62, s71, 8
    s_add_u32 s63, s63, s62
    s_lshl_b32 s63, s63, 10
    v_lshrrev_b32 v1, 4, v{VL}
    v_and_b32 v2, 15, v{VL}
    v_lshlrev_b32 v3, 4, v2
    v_lshl_add_u32 v3, v1, 16, v3
    s_waitcnt lgkmcnt(0)
    """)
    srd_lo(a,SX,P_X)
    epoch_load(a,128)
    for p in range(4):
        a(f"buffer_load_dwordx4 {vr(168+4*p,4)}, v3, {sr(SX)}, s63 offen offset:{256*p}")
def rows_finish(a):
    a(f"""
    v_and_b32 v141, 15, v{VL}
    v_cmp_eq_u32 vcc, 0, v141
    v_lshl_add_u32 v140, v{VL}, 1, s68
    v_mov_b32 v131, 0x3f803f80
    v_cndmask_b32 v{SA}, v{SA}, v140, vcc
    v_mov_b32 v132, 0
    v_mov_b32 v133, 0
    v_mov_b32 v134, 0x00003f80
    v_mov_b32 v135, 0x3f800000
    v_mov_b32 v136, 0
    v_mov_b32 v137, 0
    """)
    a("s_waitcnt vmcnt(4)"); epoch_tag(a,128)
    for p in range(4):
        a(f"s_waitcnt vmcnt({3-p})")
        for r in range(4):
            a(f"v_dot2c_f32_bf16 v{132+(r&1)}, v{168+4*p+r}, v131")
    a("s_nop 2\nv_add_f32 v132, v132, v133")
    def red(v):
        for s in (8,4,2,1):
            a(f"s_nop 1\nv_add_f32_dpp v{v}, v{v}, v{v} row_ror:{s} row_mask:0xf bank_mask:0xf")
    red(132)
    a(f"v_mul_f32 v132, {hx(-1.0/512)}, v132")
    for p in range(4):
        for r in range(4):
            a(f"v_dot2_f32_bf16 v{144+2*r}, v{168+4*p+r}, v134, v132\nv_dot2_f32_bf16 v{145+2*r}, v{168+4*p+r}, v135, v132")
        for r in range(8):
            a(f"v_fmac_f32 v{136+(r&1)}, v{144+r}, v{144+r}")
    a("v_add_f32 v136, v136, v137")
    red(136)
    a(f"""
    v_mul_f32 v136, {hx(1.0/512)}, v136
    v_cvt_pk_bf16_f32 v136, v136, v132
    v_and_b32 v{SD}, 0xffff0000, v136
    v_lshlrev_b32 v136, 16, v136
    v_add_f32 v136, {hx(1e-5)}, v136
    v_cvt_pk_bf16_f32 v136, v136, v136
    v_lshlrev_b32 v136, 16, v136
    v_sqrt_f32 v136, v136
    s_nop 0
    v_cvt_pk_bf16_f32 v136, v136, v136
    v_lshlrev_b32 v136, 16, v136
    v_rcp_f32 v{SD+3}, v136
    v_mul_f32 v{SD+2}, v136, v136
    v_mov_b32 v{SD+1}, s{S_TAG}
    """)

XA,XB,WA,WB=128,160,192,208
AX0,AX1,AW0,AW1=224,225,226,227
FC,FS,FN=228,236,244

def compute1_setup(a,spec):
    a(f"""
    v_and_b32 v129, 15, v{VL}
    v_lshrrev_b32 v130, 4, v{VL}
    v_lshrrev_b32 v131, 1, v129
    v_xor_b32 v131, v131, v130
    v_lshlrev_b32 v131, 4, v131
    v_lshl_add_u32 v{AX0}, v129, 7, v131
    v_xor_b32 v{AX1}, 64, v{AX0}
    s_mov_b32 s73, {SLOT}
    """)
    if spec:
        a(f"s_lshl_b32 s62, s{S_WAVE}, 12\nv_add_u32 v{AW0}, s62, v{AX0}\nv_add_u32 v{AW1}, s62, v{AX1}")
    else:
        a(f"""
        v_lshrrev_b32 v131, 2, v129
        v_and_b32 v132, 3, v129
        v_and_b32 v133, 1, v130
        v_lshl_or_b32 v133, v133, 2, v131
        s_lshl_b32 s62, s{S_WAVE}, 1
        v_xor_b32 v133, s62, v133
        v_lshlrev_b32 v133, 5, v133
        v_lshl_add_u32 v133, v132, 3, v133
        v_lshl_add_u32 v131, v130, 3, v131
        v_lshl_add_u32 v{AW0}, v131, 8, v133
        v_xor_b32 v{AW1}, 32, v{AW0}
        """)

def dft32_consts(a):
    a(f"v_lshlrev_b32 v130, 2, v130\nv_cvt_f32_u32 v130, v130\nv_cvt_f32_u32 v129, v129")
    for tb in range(2):
        a(f"v_add_f32 v131, {hx(16.0*tb)}, v129\nv_mul_f32 v131, {hx(1/32.)}, v131")
        for j in range(8):
            a(f"v_add_f32 v132, {hx(16.0*(j>>2)+(j&3))}, v130\nv_mul_f32 v132, v132, v131\nv_cos_f32 v{136+j}, v132\nv_sin_f32 v{144+j}, v132")
        for p in range(4):
            a(f"v_cvt_pk_bf16_f32 v{FC+4*tb+p}, v{136+2*p}, v{137+2*p}\nv_cvt_pk_bf16_f32 v{FS+4*tb+p}, v{144+2*p}, v{145+2*p}")
            a(f"v_xor_b32 v{FN+4*tb+p}, 0x80008000, v{FS+4*tb+p}")

def zero_acc(a):
    for r in range(0,128,2): a(f"v_mov_b64 v[{r}:{r+1}], 0")

def scalars2(a):
    tile_map2(a)
    srd(a,SX,P_X,XB_BYTES); srd(a,SWS,P_WS,ws_end()); srd(a,SOUT,P_OUT,XB_BYTES)
    a(f"""
    s_lshr_b32 s74, s{S_WAVE}, 1
    s_and_b32 s75, s{S_WAVE}, 1
    s_lshl_b32 s62, s75, 10
    s_add_u32 s62, s62, s{S_T1}
    s_lshl3_add_u32 s62, s62, s{S_NB}
    s_lshl1_add_u32 s62, s62, s74
    s_lshl_b32 s77, s62, 6
    s_add_u32 s78, s77, {16*32*1024}
    s_lshl1_add_u32 s62, s{S_T1}, s75
    s_mul_i32 s79, s62, {112*1024}
    s_and_b32 s63, s{S_T1}, 1
    s_lshl1_add_u32 s62, s63, s74
    s_lshl_b32 s62, s62, 11
    s_add_u32 s79, s79, s62
    """)
    stage_rot(a,76,12)

class S1:
    def __init__(self,a,spec): self.a=a; self.spec=spec
    def reads(self,k,buf,ts=range(8)):
        xb,wb=((XA,WA),(XB,WB))[buf]
        xs=[f"ds_read_b128 {vr(xb+4*i,4)}, v{AX0+k} offset:{t*2048}" for i,t in enumerate(ts)]
        ws=[]
        for g in range(4):
            if self.spec:
                ws.append(f"ds_read_b128 {vr(wb+4*g,4)}, v{AW0+k} offset:{16384+(g>>1)*16384+(g&1)*2048}")
            else:
                for rho in range(2):
                    ws.append(f"ds_read_b64_tr_b16 {vr(wb+4*g+2*rho,2)}, v{AW0+(g&1)} offset:{16384+(g>>1)*16384+k*8192+rho*1024}")
        return ws+xs
    def mfmas(self,buf,ts=range(8)):
        xb,wb=((XA,WA),(XB,WB))[buf]
        out=[]
        for i,t in enumerate(ts):
            for gg in range(4):
                g=gg if t%2==0 else 3-gg
                d=(t*4+g)*4
                x=vr(xb+4*i,4); w=vr(wb+4*g,4)
                p,q=(x,w) if self.spec else (w,x)
                out.append(f"{MF} {vr(d,4)}, {p}, {q}, {vr(d,4)}")
        return out
    def move(self,delta): return [f"v_add_u32 v{r}, {delta}, v{r}" for r in (AX0,AX1,AW0,AW1)]
    def weave(self,m,others):
        others=list(others)
        per=2 if len(m)<=24 else 1
        assert len(others)<=per*len(m)
        for x in m:
            self.a(x)
            for _ in range(per):
                if others: self.a(others.pop(0))
    def loop(self):
        a=self.a
        a(f"s_mov_b32 s70, 0\ns_mov_b32 s72, 6")
        if CFG.get('mt'): a("s_mov_b32 m0, 20")
        ls(a,1)
        a("s_barrier")
        ls(a,2)
        for l in self.reads(0,0): a(l)
        a(f"buffer_store_dwordx4 {vr(SD,4)}, v{SA}, {sr(SWS)}, 0 offen sc1")
        loop=a.lab('loop')
        if CFG.get('al',1): a(".p2align 6")
        a(f"{loop}:")
        a("s_waitcnt lgkmcnt(0)")
        if CFG.get('mt'): a("v_writelane_b32 v254, s96, m0\ns_add_u32 m0, m0, 1")
        self.weave(self.mfmas(0),self.reads(1,1)+["s_add_u32 s70, s70, 1\ns_cmp_eq_u32 s70, 3",f"s_cselect_b32 s71, {-2*SLOT}, s73\ns_cselect_b32 s70, 0, s70"]+self.move("s71"))
        a("s_waitcnt lgkmcnt(0)")
        bd=CFG.get('bd',0); m=self.mfmas(1)
        for x in m[:bd]: a(x)
        a("s_barrier")
        if CFG.get('mt'): a("s_memrealtime s[96:97]")
        self.weave(m[bd:],self.reads(0,0)+["s_sub_u32 s72, s72, 1\ns_cmp_lg_u32 s72, 0"])
        a(f"s_cbranch_scc1 {loop}")
    def half(self,h,last,spread=()):
        a=self.a; ts=range(4*h,4*h+4); sp=list(spread)
        def ex(l,k):
            l=list(l)
            if not sp: return l
            l+=[""]*(20-len(l))
            return l+[sp[2*k],"","","","","",sp[2*k+1]]
        a("s_waitcnt lgkmcnt(0)")
        self.weave(self.mfmas(0,ts),ex(self.reads(1,1,ts)+self.move(SLOT),0))
        a("s_waitcnt lgkmcnt(0)\ns_barrier")
        self.weave(self.mfmas(1,ts),ex(self.reads(0,0,ts),1))
        a("s_waitcnt lgkmcnt(0)")
        self.weave(self.mfmas(0,ts),ex(self.reads(1,1,ts)+(self.move(-SLOT) if h==0 else []),2))
        if h==1: a(f"s_waitcnt {'' if self.spec else 'vmcnt(0) '}lgkmcnt(0)\ns_barrier")
        else: a("s_waitcnt lgkmcnt(0)")
        self.weave(self.mfmas(1,ts),ex(last,3))

def epilogue_ffn_setup(a):
    a(f"""
    v_lshlrev_b32 v229, 4, v129
    v_add_u32 v229, {L_STAT}, v229
    v_and_b32 v131, 1, v130
    v_lshl_add_u32 v228, v131, 4, v129
    v_lshrrev_b32 v131, 1, v130
    v_lshl_add_u32 v228, v131, 7, v228
    s_lshl_b32 s62, s{S_WAVE}, 5
    v_add_u32 v228, s62, v228
    v_lshlrev_b32 v228, 2, v228
    v_add_u32 v228, {L_CS}, v228
    v_lshlrev_b32 v230, 4, v{VL}
    s_mul_i32 s62, s{S_I}, {8*56}
    s_lshl2_add_u32 s62, s{S_J}, s62
    s_add_u32 s62, s62, s{S_WAVE}
    s_lshl_b32 s62, s62, 10
    s_add_u32 s63, s62, {4*56*1024}
    s_bitcmp1_b32 s{S_J}, 0
    s_cselect_b32 s90, s63, s62
    s_cselect_b32 s92, s62, s63
    """)
ST=144
def ffn_stat_reads(h):
    out=[f"ds_read_b32 v{231+q}, v228 offset:{1024*q}" for q in range(4)] if h==0 else []
    return out+[f"ds_read_b128 {vr(ST+4*i,4)}, v229 offset:{256*(4*h+i)}" for i in range(4)]
def epilogue_ffn(a,h,nafter):
    a(f"s_waitcnt lgkmcnt({nafter})")
    if h==0:
        for q in range(4): a(f"v_and_b32 v{231+q}, 0xffffff00, v{231+q}")
        a("v_add_f32 v231, v231, v232\nv_add_f32 v233, v233, v234\nv_add_f32 v231, v231, v233\ns_nop 1")
    else: a("s_mov_b32 s90, s92")
    def corr(i): return f"v_mfma_f32_16x16x1_4b_f32 {vr(16*(4*h+i),16)}, v231, v{ST+4*i}, {vr(16*(4*h+i),16)}"
    def parts(i):
        t=4*h+i; b=16*t; s=ST+4*i; o=184+4*(i&1); T=(176,168)[i&1]
        A=[f"v_pk_mul_f32 {vr(T+2*p,2)}, {vr(b+2*p,2)}, {vr(s,2)} op_sel:[0,1] op_sel_hi:[1,1]" for p in range(4)]
        B=[f"v_exp_f32 v{T+p}, v{T+p}" for p in range(8)]
        C=[f"v_pk_mul_f32 {vr(b+2*p,2)}, {vr(b+2*p,2)}, {vr(b+8+2*p,2)}" for p in range(4)]
        D=[f"v_pk_fma_f32 {vr(T+2*p,2)}, {vr(T+2*p,2)}, {vr(s+2,2)}, {vr(s+2,2)} op_sel:[0,0,0] op_sel_hi:[1,0,0]" for p in range(4)]
        E=[f"v_rcp_f32 v{T+p}, v{T+p}" for p in range(8)]
        F=[f"v_pk_mul_f32 {vr(b+2*p,2)}, {vr(b+2*p,2)}, {vr(T+2*p,2)}" for p in range(4)]
        G=[f"v_cvt_pk_bf16_f32 v{o+p}, v{b+2*p}, v{b+2*p+1}" for p in range(4)]
        S=[f"buffer_store_dwordx4 {vr(o,4)}, v230, {sr(SWS)}, s90 offen sc1"+(f"\ns_add_u32 s90, s90, {56*1024}" if i<3 else "")]
        return A,B,C,D,E,F,G,S
    a(corr(0))
    for i in range(4): a(f"v_mul_f32 v{ST+4*i+1}, {hx(-LOG2E)}, v{ST+4*i+3}")
    a("s_nop 5")
    for i in range(4):
        A,B,C,D,E,F,G,S=parts(i)
        for x in A: a(x)
        if i<3: a(corr(i+1))
        for x in B+C+D+E+F+G+S: a(x)
def stage1_ffn(a):
    S=S1(a,False)
    S.loop()
    nxt=S.reads(0,0,range(4,8))
    S.half(0,ffn_stat_reads(0)+nxt)
    ls(a,3)
    epilogue_ffn(a,0,len(nxt))
    ls(a,14)
    S.half(1,ffn_stat_reads(1))
    ls(a,15)
    epilogue_ffn(a,1,0)
    head2(a,[])

def spec_acc(tb,eb,b,ri): return 64*(b>>1)+(((tb*2+eb)*2+(b&1))*2+ri)*4
def epilogue_spec(a,h,nafter):
    R=144; Z=160
    a(f"s_waitcnt lgkmcnt({nafter})")
    for i in range(4):
        t=4*h+i
        for g in range(4):
            d=(t*4+g)*4
            for p in range(2):
                a(f"v_pk_mul_f32 {vr(d+2*p,2)}, {vr(d+2*p,2)}, {vr(R+4*i+2*p,2)}")
        for g in range(4):
            d=(t*4+g)*4
            z=Z+((i>>1)*4+g)*4+(i&1)*2
            for p in range(2):
                a(f"v_cvt_pk_bf16_f32 v{z+p}, v{d+2*p}, v{d+2*p+1}")
    a("s_nop 1")
    acc=spec_acc
    def group(tb,eb):
        out=[]
        for bl in range(2):
            b=2*h+bl
            zr=vr(Z+(bl*4+eb)*4,4); zi=vr(Z+(bl*4+2+eb)*4,4)
            out+=[f"{MF} {vr(acc(tb,eb,b,0),4)}, {vr(FC+4*tb,4)}, {zr}, 0",
                  f"{MF} {vr(acc(tb,eb,b,1),4)}, {vr(FC+4*tb,4)}, {zi}, 0",
                  f"{MF} {vr(acc(tb,eb,b,0),4)}, {vr(FS+4*tb,4)}, {zi}, {vr(acc(tb,eb,b,0),4)}",
                  f"{MF} {vr(acc(tb,eb,b,1),4)}, {vr(FN+4*tb,4)}, {zr}, {vr(acc(tb,eb,b,1),4)}"]
        return out
    def pack(tb):
        out=[]
        for j in range(4):
            o=PK[h][tb]+4*j
            for eb in range(2):
                for bl in range(2):
                    b=2*h+bl
                    out.append(f"v_cvt_pk_bf16_f32 v{o+2*eb+bl}, v{acc(tb,eb,b,0)+j}, v{acc(tb,eb,b,1)+j}")
        return out
    for x in group(0,0)+group(0,1)+group(1,0): a(x)
    pk=pack(0)
    for x in group(1,1):
        a(x)
        for _ in range(2): a(pk.pop(0))
    a("s_nop 5")
    for x in pack(1): a(x)
PK=((144,0),(0,16))
def spec_stores(h):
    return [f"s_add_u32 s63, s90, {(16*tb+j)*65536}\nbuffer_store_dwordx4 {vr(PK[h][tb]+4*j,4)}, v253, {sr(SWS)}, s63 offen offset:{h*2048} sc1" for tb in range(2) for j in range(4)]
def stage1_spec(a):
    S=S1(a,True)
    S.loop()
    a(f"""
    s_waitcnt vmcnt(0)
    v_lshrrev_b32 v252, 4, v{VL}
    v_and_b32 v253, 15, v{VL}
    v_lshlrev_b32 v253, 4, v253
    v_lshl_add_u32 v253, v252, 18, v253
    v_lshlrev_b32 v252, 4, v252
    v_add_u32 v252, {L_RSTD}, v252
    """)
    rr=lambda h: [f"ds_read_b128 {vr(144+4*i,4)}, v252 offset:{64*(4*h+i)}" for i in range(4)]
    nxt=S.reads(0,0,range(4,8))
    S.half(0,rr(0)+nxt)
    ls(a,3)
    epilogue_spec(a,0,len(nxt))
    ls(a,14)
    S.half(1,rr(1),spread=spec_stores(0))
    ls(a,15)
    epilogue_spec(a,1,0)
    head2(a,spec_stores(1))

PF=6
ACC=0; HF=32; WF=80; XP=224; AW=232; AH=244; AO=246
def wreads(n):
    b=WF+16*(n%NPRE); u=pos(n); k=u>>16
    return [f"ds_read_b64_tr_b16 {vr(b+4*eb+2*rho,2)}, v{AW+4*k+eb} offset:{(u&0xffff)+rho*2048}" for eb in range(4) for rho in range(2)]
def head2(a,stores):
    ls(a,4)
    stores=list(stores)
    if stores: a(stores.pop(0))
    a(f"""
    v_and_b32 v38, 15, v{VL}
    v_lshrrev_b32 v34, 4, v{VL}
    v_lshrrev_b32 v35, 2, v38
    v_and_b32 v36, 3, v38
    v_lshl_add_u32 v35, v34, 2, v35
    v_bfe_u32 v37, v35, 1, 2
    s_lshl_b32 s62, s74, 1
    v_xor_b32 v37, s62, v37
    v_lshlrev_b32 v37, 5, v37
    v_lshl_add_u32 v37, v36, 3, v37
    v_lshl_add_u32 v37, v35, 7, v37
    s_lshl_b32 s62, s74, 12
    v_add_u32 v{AW}, s62, v37
    """)
    for eb in range(1,4): a(f"v_xor_b32 v{AW+eb}, {eb<<5}, v{AW}")
    for eb in range(4): a(f"v_add_u32 v{AW+4+eb}, 0x10000, v{AW+eb}")
    other=[f"v_add_u32 v{AW+8+eb}, 0x20000, v{AW+eb}" for eb in range(4)]+f"""
    v_lshlrev_b32 v35, 15, v38
    v_and_b32 v36, 1, v34
    v_lshlrev_b32 v36, 5, v36
    v_lshrrev_b32 v37, 1, v34
    v_lshl_add_u32 v36, v37, 4, v36
    v_add_u32 v{AO}, v35, v36
    v_lshl_add_u32 v{AH}, v{VL}, 4, s79
    v_add_u32 v{AH+1}, {56*1024}, v{AH}
    """.split('\n')
    other=[x for x in other if x.strip()]
    for n in range(7):
        if stores: a(stores.pop(0))
        for l in wreads(n):
            a(l)
            if other and n>=1: a(other.pop(0))
    assert not other and not stores

def compute2(a):
    LC=CFG.get('lc',8); BY=CFG.get('by',25)
    vm=VM(); vm.op('st')
    def hload(n,t):
        sg,k=divmod(n,2); b=HF+8*(n%PF)
        a(f"buffer_load_dwordx4 {vr(b+4*t,4)}, v{AH+t}, {sr(SWS)}, s{80+sg%7} offen offset:{k*1024} sc1"); vm.op(f"h{n}")
    ls(a,5)
    a("s_barrier")
    ls(a,18)
    nh=CFG.get('nh',3)
    for n in range(nh):
        for t in range(2): hload(n,t)
    for l in wreads(7)+wreads(8): a(l)
    ls(a,7)
    a(f"s_waitcnt vmcnt({vm.need('st')}) lgkmcnt(0)\ns_barrier")
    for n in range(nh,PF):
        for t in range(2): hload(n,t)
    ls(a,12)
    XR=WF+16*2
    tailwork=[]
    for t in range(2):
        tailwork+=[f"v_permlane16_swap_b32 v{XP+4*t}, v{XP+4*t+2}",f"v_permlane16_swap_b32 v{XP+4*t+1}, v{XP+4*t+3}"]
    for i in range(8):
        tailwork+=[f"v_lshlrev_b32 v{XR+2*i}, 16, v{XP+i}",f"v_and_b32 v{XR+2*i+1}, 0xffff0000, v{XP+i}"]
    tailwork+=[f"v_lshlrev_b32 v249, 4, v{VL}",f"s_lshl_b32 s62, s{S_WAVE}, 12",f"s_add_u32 s62, s62, {L_RED}","v_add_u32 v250, s62, v249","v_xor_b32 v251, 8192, v250",
               "s_lshl2_add_u32 s62, s74, s75","s_lshl_b32 s62, s62, 11",f"s_add_u32 s62, s62, {L_Y}","v_add_u32 v252, s62, v249",f"s_mov_b32 s64, {hx(-LOG2E)}","s_mov_b32 s65, s64"]
    for n in range(28):
        need=[f"h{n}"]
        if n==23: need.append('x')
        w=f"s_waitcnt vmcnt({vm.need(*need)})"
        if n>=NPRE: w+=f" lgkmcnt({8 if n<27 else 0})"
        a(w)
        if n==0: ls(a,11)
        if n==LC:
            if CFG.get('ct'): ls(a,13)
            a("s_barrier")
            if CFG.get('ct'): ls(a,19)
            a(f"v_xor_b32 v{AH}, 4096, v{AH}\nv_xor_b32 v{AH+1}, 4096, v{AH+1}")
            for m in range(14,LC+PF):
                for t in range(2): hload(m,t)
        if n==BY:
            if CFG.get('ct'): ls(a,16)
            a("s_barrier")
            if CFG.get('ct'): ls(a,17)
        r=wreads(n+2) if NPRE<=n+2<28 else []
        hb=HF+8*(n%PF); wb=WF+16*(n%NPRE)
        order=[(t,(ee if t==0 else 3-ee)) for t in range(2) for ee in range(4)]
        if n==27: order=[(0,2),(0,3),(1,3),(1,2),(1,1),(1,0),(0,0),(0,1)]
        for i,(t,eb) in enumerate(order):
            d=ACC+(t*4+eb)*4
            a(f"{MF} {vr(d,4)}, {vr(wb+4*eb,4)}, {vr(hb+4*t,4)}, {'0' if n==0 else vr(d,4)}")
            if i<len(r): a(r[i])
            if n+PF<28 and i in (3,7) and (n+PF<14 or n>=LC): hload(n+PF,i//4)
            if n==CFG.get('xs',LC-1) and i in (1,5):
                t2=i//4
                a(f"buffer_load_dwordx4 {vr(XP+4*t2,4)}, v{AO}, {sr(SX)}, s{77+t2} offen"); vm.op('x')
            if n>=23 and tailwork: a(tailwork.pop(0))
    assert not tailwork and LC>=14-PF
    ls(a,8)
    a("s_nop 3")
    for t,eb in ((0,0),(0,1),(1,1),(1,0)):
        a(f"ds_write_b128 v250, {vr(ACC+(t*4+2+eb)*4,4)} offset:{(t*2+eb)*1024}")
    a("s_waitcnt lgkmcnt(0)\ns_barrier")
    RD=32; Y=48; T=64
    for t in range(2):
        for eb in range(2):
            a(f"ds_read_b128 {vr(RD+(t*2+eb)*4,4)}, v251 offset:{(t*2+eb)*1024}")
        for eb in range(2):
            a(f"ds_read_b128 {vr(Y+(t*2+eb)*4,4)}, v252 offset:{eb*4096+t*1024}")
    ofl=CFG.get('ofl','sc1').replace('none','').replace('+',' ')
    for t in range(2):
        b=ACC+t*16
        a(f"s_waitcnt lgkmcnt({6-4*t})")
        for p in range(4): a(f"v_pk_add_f32 {vr(b+2*p,2)}, {vr(b+2*p,2)}, {vr(RD+t*8+2*p,2)}")
        for p in range(4): a(f"v_pk_mul_f32 {vr(T+2*p,2)}, {vr(b+2*p,2)}, s[64:65]")
        for p in range(8): a(f"v_exp_f32 v{T+p}, v{T+p}")
        a(f"s_waitcnt lgkmcnt({4-4*t})")
        for p in range(4): a(f"v_pk_mul_f32 {vr(b+2*p,2)}, {vr(b+2*p,2)}, {vr(Y+t*8+2*p,2)}")
        for p in range(4): a(f"v_pk_add_f32 {vr(T+2*p,2)}, {vr(T+2*p,2)}, 1.0 op_sel_hi:[1,0]")
        for p in range(8): a(f"v_rcp_f32 v{T+p}, v{T+p}")
        for p in range(4): a(f"v_pk_fma_f32 {vr(b+2*p,2)}, {vr(b+2*p,2)}, {vr(T+2*p,2)}, {vr(XR+t*8+2*p,2)}")
        o=72+4*t
        for p in range(4): a(f"v_cvt_pk_bf16_f32 v{o+p}, v{b+2*p}, v{b+2*p+1}")
        a(f"s_nop 1\nv_permlane16_swap_b32 v{o}, v{o+2}\nv_permlane16_swap_b32 v{o+1}, v{o+3}")
        a(f"buffer_store_dwordx4 {vr(o,4)}, v{AO}, {sr(SOUT)}, s{77+t} offen {ofl}")
    ls(a,9)
    if diag() and not CFG.get('gap'):
        a("s_waitcnt vmcnt(0)"); ls(a,10)
        ls_dump(a)

class Loader:
    def __init__(self,a): self.a=a; self.vm=VM(); self.m0=None; self.fill=[]; self.extra=[]; self.thr=0; self.regs={}
    def setm0(self,val):
        a=self.a
        if self.m0 is not None and -32768<=val-self.m0<=32767: a(f"s_addk_i32 m0, {val-self.m0}")
        else: a(f"s_add_u32 m0, s92, {val}")
        self.m0=val
    def dma(self,lds,vaddr,srdn,soff,tag,pre=None):
        self.setm0(lds)
        self.a(pre if pre else (self.fill.pop(0) if self.fill else "s_nop 0"))
        self.a(f"buffer_load_dwordx4 v{vaddr}, {sr(srdn)}, {soff} offen lds"); self.vm.op(tag)
        if self.extra: self.a(self.extra.pop(0))
        if self.thr: self.a(f"s_waitcnt vmcnt({self.thr})")
    def issue(self,c,lo=0,hi=4):
        slot=c%3
        for p in range(lo,hi):
            self.dma(slot*SLOT+p*4096,10,SX,f"s{64+p}",f"c{c}")
            self.fill.append(f"s_addk_i32 s{64+p}, 128")
            self.dma(slot*SLOT+16384+p*4096,11,SB0,f"s{68+p}",f"c{c}")
            self.dma(slot*SLOT+32768+p*4096,11,SB1,f"s{68+p}",f"c{c}")
            self.fill.append(f"s_add_u32 s{68+p}, s{68+p}, s72")
    def wd_off(self,n,kh):
        sg,k=divmod(n,2)
        return f"s_add_u32 s62, s{80+sg%7}, {(kh*64+32*k)*1024}"
    def wd(self,n,tag='wd'):
        for kh in range(2):
            self.dma(pos(n)+kh*4096,18 if n<14 else 17,SWD,"s62",tag,pre=self.wd_off(n,kh))
    def wreg(self,n):
        self.regs[n]=128+8*len(self.regs)
        for kh in range(2):
            self.a(self.wd_off(n,kh))
            self.a(f"buffer_load_dwordx4 {vr(self.regs[n]+4*kh,4)}, v{18 if n<14 else 17}, {sr(SWD)}, s62 offen"); self.vm.op('wr')
            if self.thr: self.a(f"s_waitcnt vmcnt({self.thr})")
    def put(self,n):
        u=pos(n)
        for kh in range(2):
            self.a(f"ds_write_b128 v{(21,23,26)[u>>16]}, {vr(self.regs[n]+4*kh,4)} offset:{(u&0xffff)+kh*4096}")
    def bar(self,c,*tags):
        a=self.a
        a(f"s_waitcnt vmcnt({self.vm.need(*tags)})")
        if CFG.get('lt',1): ls(a,2+2*c)
        a("s_barrier")
        if CFG.get('lt',1): ls(a,3+2*c)

def loader_start(a,L):
    sp=a.lab('lsp'); jn=a.lab('ljn')
    a(f"""
    s_sub_u32 s74, s{S_WAVE}, 4
    s_lshl_b32 s92, s74, 10
    v_lshrrev_b32 v1, 3, v{VL}
    v_lshl_add_u32 v1, s74, 3, v1
    v_bfe_u32 v2, v1, 1, 3
    v_and_b32 v3, 7, v{VL}
    v_xor_b32 v2, v2, v3
    v_lshlrev_b32 v2, 4, v2
    s_cmp_ge_u32 s{S_J}, 14
    s_cbranch_scc1 {sp}
    v_lshl_add_u32 v10, v1, 15, v2
    v_lshrrev_b32 v3, 4, v{VL}
    v_lshl_add_u32 v4, s74, 2, v3
    v_mul_u32_u24 v4, 3584, v4
    s_lshr_b32 s62, s74, 1
    v_lshl_or_b32 v3, s62, 2, v3
    v_lshlrev_b32 v3, 1, v3
    v_and_b32 v5, 15, v{VL}
    v_xor_b32 v3, v3, v5
    v_lshl_add_u32 v11, v3, 4, v4
    s_and_b32 s64, s{S_J}, 1
    s_lshl1_add_u32 s64, s{S_I}, s64
    s_lshl_b32 s64, s64, 10
    s_add_u32 s65, s64, 0x100000
    s_xor_b32 s66, s64, 0x400
    s_xor_b32 s67, s65, 0x400
    s_lshl_b32 s68, s{S_J}, 8
    s_mov_b32 s62, {16*3584}
    s_mov_b32 s72, {64*3584}
    s_mov_b32 s{SB0+2}, {W_BYTES}
    s_branch {jn}
    {sp}:
    v_lshl_add_u32 v10, v1, 16, v2
    v_and_b32 v3, 15, v1
    v_lshrrev_b32 v4, 4, v1
    v_lshl_add_u32 v3, v3, 1, v4
    v_lshl_add_u32 v11, v3, 10, v2
    s_lshl_b32 s64, s{S_I}, 12
    s_add_u32 s65, s64, 0x400
    s_add_u32 s66, s64, 0x800
    s_add_u32 s67, s64, 0xc00
    s_sub_u32 s68, s{S_J}, 14
    s_lshl_b32 s68, s68, 17
    s_add_u32 s68, s68, 0x400
    s_mov_b32 s62, 0x8000
    s_movk_i32 s72, 128
    s_mov_b32 s{SB0+2}, {T_BYTES}
    {jn}:
    s_mov_b32 s{SB0+3}, 0x00020000
    s_mov_b32 s{SB1+3}, 0x00020000
    s_mov_b32 s{SB1+2}, s{SB0+2}
    s_add_u32 s69, s68, s62
    s_add_u32 s70, s69, s62
    s_add_u32 s71, s70, s62
    s_cmp_ge_u32 s{S_J}, 14
    s_waitcnt lgkmcnt(0)
    s_cselect_b64 s[{SB0}:{SB0+1}], s[{P_HRE}:{P_HRE+1}], s[{P_WG}:{P_WG+1}]
    s_cselect_b64 s[{SB1}:{SB1+1}], s[{P_HIM}:{P_HIM+1}], s[{P_WU}:{P_WU+1}]
    """)
    srd_lo(a,SX,P_X)
    ls_first(a)
    if CFG.get('ldelay',0): a(f"s_sleep {CFG['ldelay']}")
    ls(a,1)

def loader(a,L):
    vm=L.vm
    CB=64; GA=208; YA=224
    epoch_load(a,9)
    n0=CFG.get('n0',2)
    L.issue(0,0,n0)
    tile_map2(a)
    a(f"""
    v_and_b32 v12, 15, v{VL}
    v_lshrrev_b32 v13, 4, v{VL}
    s_mov_b32 s63, {hx(1/2048.)}
    s_mov_b32 s60, 0x8000
    s_mov_b32 s61, 0x80000000
    s_cmp_ge_u32 s{S_NB}, 4
    s_cselect_b32 s90, {hx(-1/2048.)}, s63
    s_cselect_b32 s75, s61, s60
    s_cselect_b32 s73, s60, s61
    v_lshlrev_b32 v2, 2, v13
    v_cvt_f32_u32 v2, v2
    v_lshl_add_u32 v3, v12, 5, s{S_T1}
    v_cvt_f32_u32 v3, v3
    v_mul_f32 v3, s90, v3
    """)
    for k in range(4):
        c=lambda tb,b: CB+(tb*4+k)*4+b
        a(f"v_add_f32 v40, {hx(16.0*k)}, v2\nv_mul_f32 v40, v40, v3\nv_add_f32 v41, v40, v3\nv_add_f32 v42, v41, v3\nv_add_f32 v43, v42, v3")
        for b in range(4): a(f"v_cos_f32 v{44+b}, v{40+b}\nv_sin_f32 v{48+b}, v{40+b}")
        for b in range(4): a(f"v_cvt_pk_bf16_f32 v{c(0,b)}, v{44+b}, v{48+b}")
        a(f"v_cvt_pk_bf16_f32 v40, v49, v45\nv_cvt_pk_bf16_f32 v41, v51, v47")
        for tb in range(1,4): a(f"v_mov_b32 v{c(tb,0)}, v{c(0,0)}")
        a(f"v_xor_b32 v{c(1,1)}, s75, v40\nv_xor_b32 v{c(3,1)}, s73, v40\nv_xor_b32 v{c(1,3)}, s73, v41\nv_xor_b32 v{c(3,3)}, s75, v41")
        a(f"v_xor_b32 v{c(2,1)}, 0x80008000, v{c(0,1)}\nv_xor_b32 v{c(2,3)}, 0x80008000, v{c(0,3)}")
        a(f"v_xor_b32 v{c(1,2)}, 0x80008000, v{c(0,2)}\nv_mov_b32 v{c(2,2)}, v{c(0,2)}\nv_mov_b32 v{c(3,2)}, v{c(1,2)}")
    L.issue(0,n0,4); L.issue(1,0,CFG.get('i1',2))
    srd(a,SWS,P_WS,ws_end()); srd(a,SWD,P_WD,W_BYTES)
    a(f"""
    v_and_b32 v6, 7, v{VL}
    v_lshlrev_b32 v5, 1, v13
    v_xor_b32 v6, v6, v5
    v_lshlrev_b32 v6, 4, v6
    v_lshl_add_u32 v6, v1, 10, v6
    s_and_b32 s60, s{S_T1}, 1
    s_lshl_b32 s60, s60, 10
    s_add_u32 s60, s60, s{S_NB}
    v_lshl_add_u32 v18, s60, 7, v6
    v_xor_b32 v17, 0x20000, v18
    """)
    stage_rot(a,60,17)
    a(f"""
    s_lshl2_add_u32 s60, s2, s74
    s_mul_i32 s60, s60, 1792
    s_add_u32 s76, s{P_WD}, s60
    s_addc_u32 s77, s{P_WD+1}, 0
    s_lshl2_add_u32 s60, s{S_LOC}, s74
    s_mul_i32 s60, s60, {14*1024}
    s_add_u32 s60, s60, 384
    s_add_u32 s78, s{P_WD}, s60
    s_addc_u32 s79, s{P_WD+1}, 0
    """)
    sp2=a.lab('gspec'); j2=a.lab('gjoin')
    a(f"v_and_b32 v5, 31, v{VL}\ns_and_b32 s60, s74, 1\ns_lshr_b32 s63, s74, 1\ns_cmp_ge_u32 s{S_J}, 14\ns_cbranch_scc1 {sp2}")
    a(f"v_and_b32 v3, 1, v5\nv_lshlrev_b32 v3, 10, v3\nv_and_b32 v4, 30, v5\ns_and_b32 s61, s{S_J}, 1\ns_xor_b32 s63, s63, s61\ns_lshl1_add_u32 s61, s{S_I}, s60\ns_lshl_b32 s61, s61, 5\ns_add_u32 s61, s61, s63\nv_add3_u32 v20, v3, v4, s61\ns_branch {j2}\n{sp2}:")
    a(f"s_lshl1_add_u32 s61, s{S_I}, s63\ns_lshl_b32 s61, s61, 6\ns_add_u32 s61, s61, s60\nv_lshl_add_u32 v20, v5, 1, s61\n{j2}:")
    a(f"""
    v_lshlrev_b32 v20, 4, v20
    v_lshlrev_b32 v5, 4, v5
    v_lshrrev_b32 v6, 5, v{VL}
    v_mul_u32_u24 v6, {1792*4}, v6
    s_min_u32 s61, s{S_J}, 13
    s_lshl_b32 s61, s61, 9
    v_add3_u32 v22, v5, v6, s61
    s_mul_i32 s88, s74, {3584*4}
    s_add_u32 s88, s88, {WS_CS}
    s_mov_b32 s87, {WS_ST}
    v_mov_b32 v15, 0x0c0c0400
    v_mov_b32 v16, 0x04000c0c
    v_lshl_add_u32 v21, v{VL}, 4, s92
    v_add_u32 v23, 0x10000, v21
    """)
    a(f"""
    s_lshl2_add_u32 s60, s{S_NB}, s74
    s_lshl_b32 s60, s60, 4
    v_add_u32 v3, s60, v12
    v_sub_u32 v4, 512, v3
    s_sub_u32 s61, 32, s{S_T1}
    s_and_b32 s61, s61, 31
    s_sub_u32 s63, 496, s60
    s_max_u32 s73, s60, 1
    s_sub_u32 s73, s73, 1
    s_add_u32 s75, s60, 14
    s_cmp_ge_u32 s{S_NB}, 4
    s_cselect_b32 s61, s61, s{S_T1}
    s_cselect_b64 vcc, -1, 0
    s_cselect_b32 s73, s63, s73
    s_cselect_b32 s75, s63, s75
    v_cndmask_b32 v4, v3, v4, vcc
    v_subrev_u32 v4, 1, v4
    v_lshlrev_b32 v4, 3, v4
    v_lshl_add_u32 v4, v13, 12, v4
    v_cmp_eq_u32 vcc, 0, v3
    v_mov_b32 v5, {OOB}
    s_lshl_b32 s61, s61, 16
    v_cndmask_b32 v19, v4, v5, vcc
    s_add_u32 s91, s61, {WS_G}
    s_lshr_b32 s73, s73, 7
    s_lshr_b32 s75, s75, 7
    s_sub_u32 s75, s75, s73
    v_and_b32 v5, 1, v13
    v_mul_u32_u24 v5, s75, v5
    v_lshl_add_u32 v5, v12, 4, v5
    v_add_lshl_u32 v14, v5, s73, 9
    s_lshr_b32 s61, s{S_T1}, 1
    s_and_b32 s63, s{S_T1}, 1
    s_lshl4_add_u32 s61, s61, s63
    s_lshl_b32 s61, s61, 9
    s_add_u32 s61, s61, {WS_FL}
    s_xor_b32 s63, s61, 0x300
    s_add_u32 s34, s{P_WS}, s61
    s_addc_u32 s35, s{P_WS+1}, 0
    s_add_u32 s36, s{P_WS}, s63
    s_addc_u32 s37, s{P_WS+1}, 0
    """)
    flag_addr(a,61)
    a(f"s_add_u32 s42, s{P_WS}, s61\ns_addc_u32 s43, s{P_WS+1}, 0\nv_and_b32 v5, 1, v{VL}\nv_lshlrev_b32 v5, 8, v5\nbuffer_load_dwordx2 v[32:33], v5, {sr(SWS)}, s61 offen sc1"); vm.op('old')
    sl=[f"s_load_dword s95, s[76:77], {q*64}" for q in range(28)]+[f"s_load_dword s95, s[78:79], {(q//2)*1024+(q&1)*64}" for q in range(28)]
    ss=[int(c,16) for c in str(CFG.get('sps','e777777')).zfill(7)]
    def spf(rnd):
        if not CFG.get('spf',1): return
        for _ in range(ss[rnd]):
            if sl: a(sl.pop(0))
    def gather():
        a(f"buffer_load_dwordx4 v[24:27], v20, {sr(SWS)}, s87 offen sc1\nbuffer_load_dwordx4 v[28:31], v22, {sr(SWS)}, s88 offen sc1")
    R=(64,66,68,70,72,76,78)
    def watch_issue(base):
        sk=a.lab('nw')
        a(f"s_cmp_lg_u32 s74, 3\ns_cbranch_scc1 {sk}")
        for q in range(7): a(f"s_load_dwordx2 s[{R[q]}:{R[q]+1}], s[{base}:{base+1}], {q*1024} glc")
        a(f"{sk}:")
    def watch(base):
        np_=a.lab('nopoll'); lp=a.lab('poll'); ck=a.lab('chk')
        a(f"s_cmp_lg_u32 s74, 3\ns_cbranch_scc1 {np_}\ns_mov_b32 s89, {SPIN}\ns_branch {ck}\n{lp}:")
        for q in range(7): a(f"s_load_dwordx2 s[{R[q]}:{R[q]+1}], s[{base}:{base+1}], {q*1024} glc")
        a(f"s_sub_u32 s89, s89, 1\ns_cbranch_scc1 {np_}\n{ck}:\ns_waitcnt lgkmcnt(0)")
        for q in range(7): a(f"s_cmp_lg_u64 s[{R[q]}:{R[q]+1}], s[{S_TAG}:{S_TAG+1}]\ns_cbranch_scc1 {lp}")
        a(f"{np_}:")
    def raise_flag(h):
        sk=a.lab('nf')
        a(f"s_cmp_lg_u32 s74, 0\ns_cbranch_scc1 {sk}\ns_atomic_add_x2 s[{44+2*h}:{45+2*h}], s[42:43], {256*h}\n{sk}:")
    regq=list(range(19,28))+(list(range(13,19)) if CFG.get('r12',0) else [])
    sched=[int(c,16) for c in str(CFG.get('wrs','0')).zfill(6)]
    def wregs(k):
        for _ in range(k):
            if regq: L.wreg(regq.pop(0))
    spf(0)
    L.bar(0,'c0')
    L.issue(1,CFG.get('i1',2),4); L.issue(2,0,CFG.get('i2',2)); spf(1); wregs(sched[0])
    epoch_tag(a,9)
    L.bar(1,'c1','old')
    L.extra=[f"v_readlane_b32 s44, v32, 0",f"v_readlane_b32 s45, v33, 0",f"v_readlane_b32 s46, v32, 1",f"v_readlane_b32 s47, v33, 1","s_nop 0",
             f"s_sub_u32 s44, s{S_TAG}, s44\ns_subb_u32 s45, s{S_TAG+1}, s45\ns_sub_u32 s46, s{S_TAG}, s46\ns_subb_u32 s47, s{S_TAG+1}, s47"]
    L.issue(2,CFG.get('i2',2),4); L.issue(3); spf(2); wregs(sched[1])
    L.bar(2,'c2')
    L.issue(4); spf(3); wregs(sched[2])
    L.bar(3,'c3')
    gather(); vm.op('g'); vm.op('g')
    L.issue(5); spf(4); wregs(sched[3])
    L.bar(4,'c4','g')
    check=["v_perm_b32 v3, v29, v28, v15","v_perm_b32 v4, v31, v30, v16",f"v_xor_b32 v5, s{S_TAG}, v25","v_or_b32 v3, v3, v4",f"v_xor_b32 v3, s{S_TAG}, v3","v_or_b32 v3, v3, v5"]
    L.extra=list(check)
    L.issue(6,0,2)
    rt=a.lab('rt'); ok=a.lab('ok')
    a(f"v_cmp_ne_u32 vcc, 0, v3\ns_cbranch_vccz {ok}\ns_mov_b32 s89, {SPIN}\n{rt}:")
    gather(); a("s_waitcnt vmcnt(0)")
    for x in check: a(x)
    a(f"v_cmp_ne_u32 vcc, 0, v3\ns_cbranch_vccz {ok}\ns_sleep 2\ns_sub_u32 s89, s89, 1\ns_cmp_lg_u32 s89, 0\ns_cbranch_scc1 {rt}\n{ok}:")
    L.issue(6,2,4); spf(5); wregs(sched[4])
    L.bar(5,'c5')
    L.issue(7); spf(6); wregs(sched[5])
    L.bar(6,'c6')
    a(f"s_add_u32 m0, s92, {L_CS}\ns_lshr_b32 s61, s92, 1\nbuffer_load_dwordx4 v22, {sr(SWS)}, s88 offen sc1 lds"); vm.op('gd')
    a(f"s_add_u32 m0, s61, {L_STAT}\ns_mov_b32 exec_hi, 0\nbuffer_load_dwordx4 v20, {sr(SWS)}, s87 offen sc1 lds"); vm.op('gd')
    a(f"s_lshr_b32 s61, s92, 3\ns_add_u32 m0, s61, {L_RSTD-12}\ns_nop 0\nbuffer_load_dword v20, {sr(SWS)}, s87 offen offset:12 sc1 lds\ns_mov_b32 exec_hi, -1"); vm.op('gd')
    L.m0=None
    u6=CFG.get('u6',3)
    for n in range(0,u6): L.wd(n)
    L.bar(7,'c7','gd')
    L.thr=CFG.get('thr',0)
    for n in range(u6,7): L.wd(n,'w6')
    wregs(99)
    a(f"v_add_u32 v26, 0x20000, v21")
    ls(a,18); a("s_barrier"); ls(a,19)
    u7=CFG.get('u7',10)
    for n in range(7,u7): L.wd(n,'w8' if n<9 else 'wd')
    a(f"s_waitcnt vmcnt({vm.need('w6')})")
    ls(a,20); a("s_barrier"); ls(a,21)
    raise_flag(0)
    if CFG.get('r12',0):
        for n in range(u7,13): L.wd(n)
        a("s_waitcnt vmcnt(0)")
        watch_issue(34)
        for n in range(13,19): L.put(n)
    else:
        for n in range(u7,19):
            if n==CFG.get('we',15): watch_issue(34)
            L.wd(n)
        a(f"s_waitcnt vmcnt({vm.need('w8')})")
    ls(a,22)
    watch(34)
    ls(a,28)
    a("s_barrier")
    a(f"s_waitcnt vmcnt(0) lgkmcnt(0)\ns_barrier")
    raise_flag(1)
    if CFG.get('lprio',2): a(f"s_setprio {CFG.get('lprio',2)}")
    for n in range(19,28):
        if n==CFG.get('wl',23): watch_issue(36)
        L.put(n)
    ls(a,27)
    watch(36)
    a("s_waitcnt lgkmcnt(0)")
    ls(a,23)
    a("s_barrier")
    if CFG.get('gap'): ls_dump(a)
    lp=a.lab('poll'); ok=a.lab('ok')
    if CFG.get('g0',0): a(f"s_sleep {CFG['g0']}")
    a(f"s_mov_b32 s87, {WS_FL+14*512+256}\ns_mov_b32 s89, {SPIN}\n{lp}:")
    a(f"buffer_load_dwordx2 v[24:25], v14, {sr(SWS)}, s87 offen sc1\ns_waitcnt vmcnt(0)\nv_cmp_ne_u64 vcc, s[{S_TAG}:{S_TAG+1}], v[24:25]\ns_cbranch_vccz {ok}")
    a(f"s_sleep {CFG.get('gs',6)}\ns_sub_u32 s89, s89, 1\ns_cmp_lg_u32 s89, 0\ns_cbranch_scc1 {lp}\n{ok}:")
    for k in range(4):
        a(f"buffer_load_dwordx2 {vr(GA+4*k,2)}, v19, {sr(SWS)}, s91 offen sc1\nbuffer_load_dwordx2 {vr(GA+4*k+2,2)}, v19, {sr(SWS)}, s91 offen offset:2048 sc1\ns_add_u32 s91, s91, {4*4096}")
    ls(a,24)
    for k in range(4):
        a(f"s_waitcnt vmcnt({6-2*k})")
        for tb in range(4):
            a(f"{MF} {vr(YA+4*tb,4)}, {vr(GA+4*k,4)}, {vr(CB+(tb*4+k)*4,4)}, {'0' if k==0 else vr(YA+4*tb,4)}")
    nb=a.lab('nobump')
    a(f"s_or_b32 s60, s2, s74\ns_cbranch_scc1 {nb}\ns_mov_b32 s60, {WS_EP}\nv_mov_b32 v24, s{S_TAG}\ns_mov_b64 exec, 1\nbuffer_store_dword v24, off, {sr(SWS)}, s60 sc1\ns_mov_b64 exec, -1\n{nb}:")
    a(f"s_lshl_b32 s60, s74, 12\ns_add_u32 s60, s60, {L_Y}\nv_lshl_add_u32 v1, v{VL}, 4, s60\ns_nop 3")
    ls(a,29)
    a("s_barrier")
    for tb in range(4):
        a(f"ds_write_b128 v1, {vr(YA+4*tb,4)} offset:{1024*tb}")
    a("s_waitcnt lgkmcnt(0)")
    ls(a,25)
    a("s_barrier")
    ls(a,26)
    if not CFG.get('gap'): ls_dump(a)

def kernel_main(a,name):
    kbegin(a,name)
    end=a.lab('end'); ld=a.lab('ld'); sp=a.lab('sp'); s2=a.lab('stage2')
    r1=a.lab('r1'); r3=a.lab('r3'); rj=a.lab('rj'); rt=a.lab('rt'); rz=a.lab('rz'); c0=a.lab('c0'); c1=a.lab('c1')
    a(f"s_cmp_ge_u32 s2, 256\ns_cbranch_scc1 {end}")
    if diag(): a("s_memrealtime s[94:95]")
    a("s_load_dwordx16 s[32:47], s[0:1], 0\ns_load_dwordx8 s[48:55], s[0:1], 64")
    if CFG.get('cpf',1):
        a(f"""
        s_getpc_b64 s[60:61]
        L_pc_here:
        s_bfe_u32 s62, s2, 0x20003
        v_lshl_add_u32 v1, v0, 2, s62
        v_lshlrev_b32 v1, 7, v1
        v_min_u32 v1, L_code_end-L_pc_here-4, v1
        global_load_dword v252, v1, s[60:61]
        """)
    a(f"v_lshrrev_b32 v1, 6, v0\nv_and_b32 v{VL}, 63, v0\nv_readfirstlane_b32 s{S_WAVE}, v1")
    tile_map(a)
    srd_hi(a,SX,XB_BYTES)
    a(f"s_cmp_ge_u32 s{S_WAVE}, 4\ns_cbranch_scc1 {ld}")
    a(f"s_cmp_eq_u32 s{S_WAVE}, 3\ns_cbranch_scc1 {r3}")
    a(f"s_cmp_lg_u32 s{S_WAVE}, 0\ns_cbranch_scc1 {r1}")
    cs_ids(a)
    colsum_loads(a)
    a(f"s_branch {rt}\n{r1}:")
    row_ids(a); rows_loads(a)
    r1b=a.lab('r1b')
    a(f"s_branch {r1b}\n{ld}:")
    L=Loader(a)
    loader_start(a,L)
    loader(a,L)
    a(f"s_endpgm\n{rt}:")
    cs_addr(a,68)
    a(f"s_branch {rz}\n{r1b}:")
    st_addr(a,68)
    a(f"s_lshl4_add_u32 s68, s60, s68\ns_mov_b32 s87, 1\ns_branch {rz}\n{r3}:")
    if CFG.get('warm',1):
        row_ids(a); st_addr(a,72)
        a(f"v_mov_b32 v1, s72")
    a(f"s_waitcnt lgkmcnt(0)")
    epoch_load(a,128)
    if CFG.get('warm',1):
        a(f"global_load_dword v252, v1, s[{P_WS}:{P_WS+1}] sc1")
    if CFG.get('c3',0):
        n3=a.lab('n3')
        a(f"""
        v_and_b32 v1, 15, v{VL}
        v_bfe_u32 v2, v{VL}, 4, 1
        v_lshl_add_u32 v1, v2, 5, v1
        s_lshl2_add_u32 s62, s{S_LOC}, s{S_A}
        v_lshl_add_u32 v1, s62, 4, v1
        v_lshlrev_b32 v1, 10, v1
        s_mov_b32 exec_hi, 0
        global_load_dword v252, v1, s[{P_X}:{P_X+1}] offset:384
        s_mov_b32 exec_hi, -1
        s_cmp_lt_u32 s{S_J}, 14
        s_cbranch_scc1 {n3}
        s_sub_u32 s62, s{S_J}, 14
        s_and_b32 s63, s{S_LOC}, 1
        s_lshl1_add_u32 s62, s62, s63
        v_lshl_add_u32 v1, s62, 6, v{VL}
        v_lshlrev_b32 v1, 10, v1
        s_bitcmp1_b32 s{S_LOC}, 1
        s_cselect_b64 s[64:65], s[{P_HIM}:{P_HIM+1}], s[{P_HRE}:{P_HRE+1}]
        global_load_dword v252, v1, s[64:65] offset:{1024+384}
        {n3}:
        """)
    a(f"s_mov_b32 s87, 2\n{rz}:\nv_mov_b32 v{SA}, {OOB}")
    ls_first(a)
    if CFG.get('prio',1): a("s_setprio 1")
    scalars2(a)
    sp0=a.lab('sp0'); j0=a.lab('j0')
    a(f"s_cmp_ge_u32 s{S_J}, 14\ns_cbranch_scc1 {sp0}")
    compute1_setup(a,False); epilogue_ffn_setup(a)
    a(f"s_branch {j0}\n{sp0}:")
    compute1_setup(a,True); dft32_consts(a)
    a(f"s_sub_u32 s62, s{S_J}, 14\ns_lshl2_add_u32 s62, s62, s{S_WAVE}\ns_lshl4_add_u32 s62, s{S_I}, s62\ns_lshl_b32 s62, s62, 8\ns_add_u32 s90, s62, {WS_G}")
    a(f"{j0}:")
    zero_acc(a)
    a(f"s_cmp_eq_u32 s87, 1\ns_cbranch_scc1 {c1}\ns_cmp_eq_u32 s87, 0\ns_cbranch_scc1 {c0}")
    a("s_waitcnt vmcnt(0)"); epoch_tag(a,128)
    a(f"s_branch {rj}\n{c0}:")
    colsum_finish(a)
    a(f"s_branch {rj}\n{c1}:")
    rows_finish(a)
    a(f"{rj}:")
    a(f"s_cmp_ge_u32 s{S_J}, 14\ns_cbranch_scc1 {sp}")
    stage1_ffn(a)
    a(f"{s2}:")
    compute2(a)
    a(f"s_endpgm\n{sp}:")
    stage1_spec(a)
    a(f"s_branch {s2}")
    a(f"{end}:\ns_endpgm\nL_code_end:")

def build(cfg):
    CFG.clear(); CFG.update(cfg)
    a=Asm()
    name=NAME+'_kernel'
    if cfg.get('probe'):
        a(f"; @launch kernel={name} grid=(256,1,1) block=(512,1,1) lds={LDS}")
        a(f"; @launch kernel=probe_kernel grid=(1,1,1) block=(64,1,1) lds=0")
    else:
        a(f"; @launch grid=(256,1,1) block=(512,1,1) lds={LDS}")
    a('.amdgcn_target "amdgcn-amd-amdhsa--gfx950"\n.text')
    kernel_main(a,name); names=[name]
    if cfg.get('probe'): names.append(kernel_probe(a))
    a('.section .rodata,"a"')
    for n in names:
        a('.p2align 6')
        a.l.append(kd(n,256,102,256))
    return a.text()

if __name__=='__main__':
    cfg={}
    for kv in sys.argv[2:]:
        k,v=kv.split('='); cfg[k]=int(v) if v.lstrip('-').isdigit() else v
    t=build(cfg)
    if cfg.get('cyc'): t=t.replace('s_memrealtime','s_memtime')
    open(sys.argv[1],'w').write(t)
```

```python
import sys, struct
NAME='recurrent_scan__spectral_fnet__swiglu_ffn__prompt'
LOG2E=1.4426950408889634
def f2u(x): return struct.unpack('<I',struct.pack('<f',x))[0]
def hx(x): return hex(f2u(x))

WS_H=0; WS_G=0x700000; WS_ST=0x900000; WS_CS=0x908000; WS_EP=0x918000; WS_FL=0x9C0000; WS_FG=0x9F0000
WS_TRACE=0x940000
CFG={}
def diag(): return CFG.get('probe') or CFG.get('trace')
def ws_end(): return 0xA00000
S_TAG=6
OOB=0x40000000

class Asm:
    def __init__(self): self.l=[]; self.n=0
    def __call__(self,s):
        for line in s.split('\n'):
            line=line.strip()
            if line: self.l.append(('' if line.endswith(':') or line.startswith('.') or line.startswith(';') else '    ')+line)
    def lab(self,b): self.n+=1; return f"L_{b}_{self.n}"
    def text(self): return '\n'.join(self.l)+'\n'

class VM:
    def __init__(self): self.ops=[]
    def op(self,tag): self.ops.append(tag)
    def need(self,*tags):
        last=max(i for i,t in enumerate(self.ops) if t in tags)
        n=len(self.ops)-1-last
        assert n<=63, n
        return n

def kd(name,vgpr,sgpr,accum):
    return f""".amdhsa_kernel {name}
  .amdhsa_next_free_vgpr {vgpr}
  .amdhsa_next_free_sgpr {sgpr}
  .amdhsa_accum_offset {accum}
  .amdhsa_group_segment_fixed_size 0
  .amdhsa_kernarg_size 96
  .amdhsa_user_sgpr_count 2
  .amdhsa_user_sgpr_kernarg_segment_ptr 1
  .amdhsa_system_sgpr_workgroup_id_x 1
  .amdhsa_float_denorm_mode_32 3
.end_amdhsa_kernel
"""
def kbegin(a,name): a(f".globl {name}\n.p2align 8\n.type {name},@function\n{name}:")
def srd(a,d,base,nbytes):
    a(f"s_mov_b64 s[{d}:{d+1}], s[{base}:{base+1}]\ns_mov_b32 s{d+2}, {nbytes}\ns_mov_b32 s{d+3}, 0x00020000")
def srd_hi(a,d,nbytes): a(f"s_mov_b32 s{d+2}, {nbytes}\ns_mov_b32 s{d+3}, 0x00020000")
def srd_lo(a,d,base): a(f"s_mov_b64 s[{d}:{d+1}], s[{base}:{base+1}]")
def vr(b,n): return f"v[{b}:{b+n-1}]" if n>1 else f"v{b}"
def sr(b): return f"s[{b}:{b+3}]"
MF="v_mfma_f32_16x16x32_bf16"

P_X,P_HRE,P_HIM,P_WG,P_WU,P_WD,P_OUT,P_DBG,P_WS=32,38,40,44,46,48,50,52,54
SX,SB0,SB1,SWS,SWD,SOUT=8,12,16,20,24,28
S_WAVE=56; S_I=57; S_J=58; S_T1=59; S_NB=3; S_A=100; S_G=101; S_LOC=93; S_X=4
VL=255
SPIN=100000
XB_BYTES=2048*512*2; W_BYTES=512*1792*2; T_BYTES=512*512*2

def ls(a,idx):
    if CFG.get('lite') and idx!=10: return
    if diag() and not CFG.get('gap'): a(f"s_memrealtime s[96:97]\ns_waitcnt lgkmcnt(0)\nv_writelane_b32 v254, s96, {idx}")
def ls_first(a):
    if diag(): a(f"v_writelane_b32 v254, s94, 0")
def ls_dump(a):
    if diag(): a(f"s_lshl_b32 s98, s2, 11\ns_lshl_b32 s99, s{S_WAVE}, 8\ns_add_u32 s98, s98, s99\ns_add_u32 s98, s98, {WS_TRACE}\nv_lshlrev_b32 v253, 2, v{VL}\nbuffer_store_dword v254, v253, {sr(SWS)}, s98 offen sc1")
def kernel_probe(a):
    pa,pb=CFG['probe'].split(':'); K=CFG.get('K',10)
    name='probe_kernel'; kbegin(a,name); end=a.lab('end')
    a(f"s_memrealtime s[70:71]\ns_cmp_ge_u32 s2, 1\ns_cbranch_scc1 {end}")
    a("s_load_dwordx2 s[54:55], s[0:1], 88\ns_waitcnt lgkmcnt(0)")
    srd(a,SWS,P_WS,ws_end())
    a("v_lshlrev_b32 v1, 11, v0")
    for r,p in ((4,pa),(8,pb)):
        w,i=p[3:].split('.')
        for q in range(4):
            a(f"s_mov_b32 s60, {WS_TRACE+int(w)*256+int(i)*4+q*64*2048}\nbuffer_load_dword v{r+q}, v1, {sr(SWS)}, s60 offen")
    a("s_waitcnt vmcnt(0)\ns_nop 0\nv_readfirstlane_b32 s61, v4\ns_nop 3")
    for r in range(4,12): a(f"v_subrev_u32 v{r}, s61, v{r}")
    for r,p,sd in ((4,pa,62),(8,pb,63)):
        op=p[:3]
        vop={'min':'v_min_i32','max':'v_max_i32','avg':'v_add_u32'}[op]; sop={'min':'s_min_i32','max':'s_max_i32','avg':'s_add_u32'}[op]
        a(f"{vop} v{r}, v{r}, v{r+1}\n{vop} v{r+2}, v{r+2}, v{r+3}\n{vop} v{r}, v{r}, v{r+2}\ns_nop 0")
        a(f"v_readlane_b32 s{sd}, v{r}, 0")
        for l in range(1,64): a(f"v_readlane_b32 s64, v{r}, {l}\ns_nop 0\n{sop} s{sd}, s{sd}, s64")
        a(f"s_mul_i32 s{sd}, s{sd}, {K}")
        if op=='avg': a(f"s_ashr_i32 s{sd}, s{sd}, 8")
    if CFG.get('gap'): a(f"s_sub_u32 s63, s70, s61\ns_mul_i32 s63, s63, {K}")
    a("s_sub_u32 s62, s63, s62\ns_max_i32 s62, s62, 0\ns_min_i32 s62, s62, 100000")
    a("s_memrealtime s[66:67]\ns_waitcnt lgkmcnt(0)")
    lp=a.lab('spin')
    a(f"{lp}:\ns_memrealtime s[68:69]\ns_waitcnt lgkmcnt(0)\ns_sub_u32 s68, s68, s66\ns_cmp_lt_u32 s68, s62\ns_cbranch_scc1 {lp}")
    a(f"{end}:\ns_endpgm")
    return name

SLOT=49152
L_STAT=3*SLOT+8192; L_RSTD=L_STAT+2048; L_CS=L_RSTD+512
L_Y=16384; L_RED=32768; LDS=163840; L_SIG=LDS-16
NPRE=9
def pos(n):
    if n>=19: n-=19
    if n<6: return 2*SLOT+n*8192
    if n==6: return 3*SLOT
    return (n-7)*8192

def tile_map(a):
    a(f"""
    s_lshr_b32 s{S_LOC}, s2, 3
    s_and_b32 s{S_A}, s2, 1
    s_bfe_u32 s{S_G}, s2, 0x20001
    s_bfe_u32 s60, s2, 0x10002
    s_bfe_u32 s61, s2, 0x10001
    s_mul_i32 s62, s60, 7
    s_lshr_b32 s63, s2, 6
    s_lshl2_add_u32 s63, s61, s63
    s_and_b32 s64, s{S_LOC}, 3
    s_lshl2_add_u32 s65, s61, s64
    s_and_b32 s66, s{S_LOC}, 7
    s_cmp_ge_u32 s{S_LOC}, 24
    s_cselect_b32 s63, 3, s63
    s_cselect_b32 s66, s65, s66
    s_add_u32 s{S_J}, s62, s63
    s_lshl3_add_u32 s{S_X}, s{S_A}, s66
    s_lshl2_add_u32 s64, s{S_A}, s64
    s_lshl3_add_u32 s64, s61, s64
    s_add_u32 s60, s60, 14
    s_cmp_ge_u32 s{S_LOC}, 28
    s_cselect_b32 s{S_J}, s60, s{S_J}
    s_cselect_b32 s{S_I}, s64, s{S_X}
    """)
def tile_map2(a):
    a(f"""
    s_and_b32 s60, s2, 7
    s_bfe_u32 s62, s{S_LOC}, 0x10001
    s_lshl1_add_u32 s{S_T1}, s60, s62
    s_sub_u32 s62, 32, s{S_T1}
    s_cmp_eq_u32 s{S_T1}, 0
    s_cselect_b32 s62, 16, s62
    s_bitcmp1_b32 s{S_LOC}, 0
    s_cselect_b32 s{S_T1}, s62, s{S_T1}
    s_lshr_b32 s{S_NB}, s{S_LOC}, 2
    """)

def stage_rot(a,s,sh):
    r=CFG.get('rot',0)
    if r==0:
        for sg in range(7): a(f"s_mov_b32 s{80+sg}, {sg<<(sh+1)}")
        return
    a(f"s_and_b32 s{s}, s{S_LOC}, 1\ns_mul_i32 s{s}, s{s}, {3 if r==2 else 0}\ns_add_u32 s{s}, s{s}, s{S_NB}\ns_sub_u32 s62, s{s}, 7\ns_cmp_ge_u32 s{s}, 7\ns_cselect_b32 s{s}, s62, s{s}")
    for sg in range(7):
        a(f"s_lshl_b32 s{80+sg}, s{s}, {sh+1}\ns_add_u32 s{s}, s{s}, 1\ns_cmp_eq_u32 s{s}, 7\ns_cselect_b32 s{s}, 0, s{s}")

def epoch_load(a,v):
    a(f"v_mov_b32 v{v}, {WS_EP}\nglobal_load_dword v{v}, v{v}, s[{P_WS}:{P_WS+1}] sc1")
def epoch_tag(a,v):
    a(f"v_readfirstlane_b32 s{S_TAG}, v{v}\ns_nop 0\ns_mul_i32 s{S_TAG}, s{S_TAG}, 0x9e3779b1\ns_add_u32 s{S_TAG}, s{S_TAG}, 0x7f4a7c15\ns_not_b32 s{S_TAG+1}, s{S_TAG}")

SD=160; SA=253
def cs_ids(a):
    a(f"""
    s_and_b32 s61, s{S_X}, 3
    s_bfe_u32 s63, s{S_X}, 0x10002
    s_lshl1_add_u32 s63, s{S_J}, s63
    s_lshr_b32 s69, s{S_X}, 3
    """)
def cs_addr(a,sd):
    a(f"""
    s_mul_i32 s{sd}, s61, {3584*4}
    s_mul_i32 s62, s69, {1792*4}
    s_add_u32 s{sd}, s{sd}, s62
    s_lshl_b32 s62, s63, 8
    s_add_u32 s{sd}, s{sd}, s62
    s_add_u32 s{sd}, s{sd}, {WS_CS}
    """)
def row_ids(a):
    a(f"""
    s_and_b32 s71, s{S_LOC}, 7
    s_lshr_b32 s70, s{S_LOC}, 3
    s_and_b32 s62, s{S_G}, 1
    s_lshl2_add_u32 s70, s62, s70
    s_lshl3_add_u32 s70, s{S_A}, s70
    s_lshr_b32 s62, s{S_G}, 1
    s_lshl4_add_u32 s70, s62, s70
    """)
def st_addr(a,sd):
    a(f"s_lshl3_add_u32 s{sd}, s70, s71\ns_lshl_b32 s{sd}, s{sd}, 7\ns_add_u32 s{sd}, s{sd}, {WS_ST}")
def flag_addr(a,sd):
    a(f"s_lshl4_add_u32 s{sd}, s{S_I}, s{S_J}\ns_lshl_b32 s{sd}, s{sd}, 9\ns_add_u32 s{sd}, s{sd}, {WS_FL}")

def colsum_loads(a):
    a(f"""
    s_mul_i32 s72, s61, 3584
    s_lshl_b32 s62, s63, 7
    s_add_u32 s72, s72, s62
    s_lshl2_add_u32 s62, s63, s61
    s_lshl_b32 s62, s62, 14
    s_sub_u32 s62, s62, {28*4*16384-1024}
    s_movk_i32 s70, {4*3584}
    s_mov_b32 s73, {32*3584}
    s_mov_b32 s66, {W_BYTES}
    s_mov_b32 s67, s{SX+3}
    s_cmp_ge_u32 s{S_J}, 14
    s_cselect_b32 s72, s62, s72
    s_cselect_b32 s70, 0x800, s70
    s_cselect_b32 s73, 0x80, s73
    s_cselect_b32 s66, {T_BYTES}, s66
    s_cselect_b32 s87, 2, 0
    v_lshrrev_b32 v1, 3, v{VL}
    v_mul_u32_u24 v1, s70, v1
    v_and_b32 v2, 7, v{VL}
    v_lshl_add_u32 v1, v2, 4, v1
    s_waitcnt lgkmcnt(0)
    s_cselect_b64 s[64:65], s[{P_HRE}:{P_HRE+1}], s[{P_WG}:{P_WG+1}]
    s_cselect_b64 s[70:71], s[{P_HIM}:{P_HIM+1}], s[{P_WU}:{P_WU+1}]
    s_cmp_eq_u32 s69, 1
    s_cselect_b64 s[64:65], s[70:71], s[64:65]
    """)
    epoch_load(a,128)
    for n in range(16):
        a(f"buffer_load_dwordx4 {vr(160+4*n,4)}, v1, s[64:67], s72 offen")
        if n<15: a(f"s_add_u32 s72, s72, s73")
def colsum_finish(a):
    a(f"""
    v_and_b32 v140, 15, v{VL}
    v_and_b32 v141, 1, v140
    v_lshlrev_b32 v141, 4, v141
    v_mov_b32 v142, 0x3f80
    v_lshlrev_b32 v141, v141, v142
    v_lshrrev_b32 v140, 1, v140
    """)
    for p in range(4):
        a(f"v_cmp_eq_u32 vcc, {p}, v140\ns_nop 1\nv_cndmask_b32 v{132+p}, 0, v141, vcc")
    a(f"""
    v_and_b32 v140, 7, v{VL}
    v_lshlrev_b32 v140, 5, v140
    v_and_b32 v141, 16, v{VL}
    v_add3_u32 v140, v140, v141, s68
    v_and_b32 v141, 0x28, v{VL}
    v_cmp_eq_u32 vcc, 0, v141
    s_nop 1
    v_cndmask_b32 v{SA}, v{SA}, v140, vcc
    v_mov_b32 v140, 0x07060500
    v_mov_b32 v141, 0x07060501
    v_mov_b32 v142, 0x07060502
    v_mov_b32 v143, 0x07060503
    """)
    a("s_waitcnt vmcnt(16)"); epoch_tag(a,128)
    for n in range(16):
        a(f"s_waitcnt vmcnt({15-n})")
        a(f"{MF} v[136:139], v[132:135], {vr(160+4*n,4)}, {'0' if n==0 else 'v[136:139]'}")
    a("s_nop 7\ns_nop 1")
    for j in range(4):
        a(f"v_add_f32_dpp v{SD+j}, v{136+j}, v{136+j} row_ror:8 row_mask:0xf bank_mask:0xf")
    for j in range(4):
        a(f"v_perm_b32 v{SD+j}, v{SD+j}, s{S_TAG}, v{140+j}")
def rows_loads(a):
    a(f"""
    s_sub_u32 s60, s{S_WAVE}, 1
    s_lshl1_add_u32 s63, s70, s60
    s_lshl_b32 s62, s71, 8
    s_add_u32 s63, s63, s62
    s_lshl_b32 s63, s63, 10
    v_lshrrev_b32 v1, 4, v{VL}
    v_and_b32 v2, 15, v{VL}
    v_lshlrev_b32 v3, 4, v2
    v_lshl_add_u32 v3, v1, 16, v3
    s_waitcnt lgkmcnt(0)
    """)
    srd_lo(a,SX,P_X)
    epoch_load(a,128)
    for p in range(4):
        a(f"buffer_load_dwordx4 {vr(168+4*p,4)}, v3, {sr(SX)}, s63 offen offset:{256*p}")
def rows_finish(a):
    a(f"""
    v_and_b32 v141, 15, v{VL}
    v_cmp_eq_u32 vcc, 0, v141
    v_lshl_add_u32 v140, v{VL}, 1, s68
    v_mov_b32 v131, 0x3f803f80
    v_cndmask_b32 v{SA}, v{SA}, v140, vcc
    v_mov_b32 v132, 0
    v_mov_b32 v133, 0
    v_mov_b32 v134, 0x00003f80
    v_mov_b32 v135, 0x3f800000
    v_mov_b32 v136, 0
    v_mov_b32 v137, 0
    """)
    a("s_waitcnt vmcnt(4)"); epoch_tag(a,128)
    for p in range(4):
        a(f"s_waitcnt vmcnt({3-p})")
        for r in range(4):
            a(f"v_dot2c_f32_bf16 v{132+(r&1)}, v{168+4*p+r}, v131")
    a("s_nop 2\nv_add_f32 v132, v132, v133")
    def red(v):
        for s in (8,4,2,1):
            a(f"s_nop 1\nv_add_f32_dpp v{v}, v{v}, v{v} row_ror:{s} row_mask:0xf bank_mask:0xf")
    red(132)
    a(f"v_mul_f32 v132, {hx(-1.0/512)}, v132")
    for p in range(4):
        for r in range(4):
            a(f"v_dot2_f32_bf16 v{144+2*r}, v{168+4*p+r}, v134, v132\nv_dot2_f32_bf16 v{145+2*r}, v{168+4*p+r}, v135, v132")
        for r in range(8):
            a(f"v_fmac_f32 v{136+(r&1)}, v{144+r}, v{144+r}")
    a("v_add_f32 v136, v136, v137")
    red(136)
    a(f"""
    v_mul_f32 v136, {hx(1.0/512)}, v136
    v_cvt_pk_bf16_f32 v136, v136, v132
    v_and_b32 v{SD}, 0xffff0000, v136
    v_lshlrev_b32 v136, 16, v136
    v_add_f32 v136, {hx(1e-5)}, v136
    v_cvt_pk_bf16_f32 v136, v136, v136
    v_lshlrev_b32 v136, 16, v136
    v_sqrt_f32 v136, v136
    s_nop 0
    v_cvt_pk_bf16_f32 v136, v136, v136
    v_lshlrev_b32 v136, 16, v136
    v_rcp_f32 v{SD+3}, v136
    v_mul_f32 v{SD+2}, v136, v136
    v_mov_b32 v{SD+1}, s{S_TAG}
    """)

XA,XB,WA,WB=128,160,192,208
AX0,AX1,AW0,AW1=224,225,226,227
FC,FS,FN=228,236,244

def compute1_setup(a,spec):
    a(f"""
    v_and_b32 v129, 15, v{VL}
    v_lshrrev_b32 v130, 4, v{VL}
    v_lshrrev_b32 v131, 1, v129
    v_xor_b32 v131, v131, v130
    v_lshlrev_b32 v131, 4, v131
    v_lshl_add_u32 v{AX0}, v129, 7, v131
    v_xor_b32 v{AX1}, 64, v{AX0}
    s_mov_b32 s73, {SLOT}
    """)
    if spec:
        a(f"s_lshl_b32 s62, s{S_WAVE}, 12\nv_add_u32 v{AW0}, s62, v{AX0}\nv_add_u32 v{AW1}, s62, v{AX1}")
    else:
        a(f"""
        v_lshrrev_b32 v131, 2, v129
        v_and_b32 v132, 3, v129
        v_and_b32 v133, 1, v130
        v_lshl_or_b32 v133, v133, 2, v131
        s_lshl_b32 s62, s{S_WAVE}, 1
        v_xor_b32 v133, s62, v133
        v_lshlrev_b32 v133, 5, v133
        v_lshl_add_u32 v133, v132, 3, v133
        v_lshl_add_u32 v131, v130, 3, v131
        v_lshl_add_u32 v{AW0}, v131, 8, v133
        v_xor_b32 v{AW1}, 32, v{AW0}
        """)

def dft32_consts(a):
    a(f"v_lshlrev_b32 v130, 2, v130\nv_cvt_f32_u32 v130, v130\nv_cvt_f32_u32 v129, v129")
    for tb in range(2):
        a(f"v_add_f32 v131, {hx(16.0*tb)}, v129\nv_mul_f32 v131, {hx(1/32.)}, v131")
        for j in range(8):
            a(f"v_add_f32 v132, {hx(16.0*(j>>2)+(j&3))}, v130\nv_mul_f32 v132, v132, v131\nv_cos_f32 v{136+j}, v132\nv_sin_f32 v{144+j}, v132")
        for p in range(4):
            a(f"v_cvt_pk_bf16_f32 v{FC+4*tb+p}, v{136+2*p}, v{137+2*p}\nv_cvt_pk_bf16_f32 v{FS+4*tb+p}, v{144+2*p}, v{145+2*p}")
            a(f"v_xor_b32 v{FN+4*tb+p}, 0x80008000, v{FS+4*tb+p}")

def zero_acc(a):
    for r in range(0,128,2): a(f"v_mov_b64 v[{r}:{r+1}], 0")

def scalars2(a):
    tile_map2(a)
    srd(a,SX,P_X,XB_BYTES); srd(a,SWS,P_WS,ws_end()); srd(a,SOUT,P_OUT,XB_BYTES)
    a(f"""
    s_lshr_b32 s74, s{S_WAVE}, 1
    s_and_b32 s75, s{S_WAVE}, 1
    s_lshl_b32 s62, s75, 10
    s_add_u32 s62, s62, s{S_T1}
    s_lshl3_add_u32 s62, s62, s{S_NB}
    s_lshl1_add_u32 s62, s62, s74
    s_lshl_b32 s77, s62, 6
    s_add_u32 s78, s77, {16*32*1024}
    s_lshl1_add_u32 s62, s{S_T1}, s75
    s_mul_i32 s79, s62, {112*1024}
    s_and_b32 s63, s{S_T1}, 1
    s_lshl1_add_u32 s62, s63, s74
    s_lshl_b32 s62, s62, 11
    s_add_u32 s79, s79, s62
    """)
    stage_rot(a,76,12)

class S1:
    def __init__(self,a,spec): self.a=a; self.spec=spec
    def reads(self,k,buf,ts=range(8)):
        xb,wb=((XA,WA),(XB,WB))[buf]
        xs=[f"ds_read_b128 {vr(xb+4*i,4)}, v{AX0+k} offset:{t*2048}" for i,t in enumerate(ts)]
        ws=[]
        for g in range(4):
            if self.spec:
                ws.append(f"ds_read_b128 {vr(wb+4*g,4)}, v{AW0+k} offset:{16384+(g>>1)*16384+(g&1)*2048}")
            else:
                for rho in range(2):
                    ws.append(f"ds_read_b64_tr_b16 {vr(wb+4*g+2*rho,2)}, v{AW0+(g&1)} offset:{16384+(g>>1)*16384+k*8192+rho*1024}")
        return ws+xs
    def mfmas(self,buf,ts=range(8)):
        xb,wb=((XA,WA),(XB,WB))[buf]
        out=[]
        for i,t in enumerate(ts):
            for gg in range(4):
                g=gg if t%2==0 else 3-gg
                d=(t*4+g)*4
                x=vr(xb+4*i,4); w=vr(wb+4*g,4)
                p,q=(x,w) if self.spec else (w,x)
                out.append(f"{MF} {vr(d,4)}, {p}, {q}, {vr(d,4)}")
        return out
    def move(self,delta): return [f"v_add_u32 v{r}, {delta}, v{r}" for r in (AX0,AX1,AW0,AW1)]
    def weave(self,m,others):
        others=list(others)
        per=2 if len(m)<=24 else 1
        assert len(others)<=per*len(m)
        for x in m:
            self.a(x)
            for _ in range(per):
                if others: self.a(others.pop(0))
    def loop(self):
        a=self.a
        a(f"s_mov_b32 s70, 0\ns_mov_b32 s72, 6")
        if CFG.get('mt'): a("s_mov_b32 m0, 20")
        ls(a,1)
        a("s_barrier")
        ls(a,2)
        for l in self.reads(0,0): a(l)
        a(f"buffer_store_dwordx4 {vr(SD,4)}, v{SA}, {sr(SWS)}, 0 offen sc1")
        loop=a.lab('loop')
        if CFG.get('al',1): a(".p2align 6")
        a(f"{loop}:")
        a("s_waitcnt lgkmcnt(0)")
        if CFG.get('mt'): a("v_writelane_b32 v254, s96, m0\ns_add_u32 m0, m0, 1")
        self.weave(self.mfmas(0),self.reads(1,1)+["s_add_u32 s70, s70, 1\ns_cmp_eq_u32 s70, 3",f"s_cselect_b32 s71, {-2*SLOT}, s73\ns_cselect_b32 s70, 0, s70"]+self.move("s71"))
        a("s_waitcnt lgkmcnt(0)")
        if CFG.get('dbgsl'): a(f"s_sleep {CFG['dbgsl']}")
        bd=CFG.get('bd',0); m=self.mfmas(1)
        for x in m[:bd]: a(x)
        a("s_barrier")
        if CFG.get('mt'): a("s_memrealtime s[96:97]")
        self.weave(m[bd:],self.reads(0,0)+["s_sub_u32 s72, s72, 1\ns_cmp_lg_u32 s72, 0"])
        a(f"s_cbranch_scc1 {loop}")
    def half(self,h,last,spread=()):
        a=self.a; ts=range(4*h,4*h+4); sp=list(spread)
        def ex(l,k):
            l=list(l)
            if not sp: return l
            l+=[""]*(20-len(l))
            return l+[sp[2*k],"","","","","",sp[2*k+1]]
        a("s_waitcnt lgkmcnt(0)")
        self.weave(self.mfmas(0,ts),ex(self.reads(1,1,ts)+self.move(SLOT),0))
        a("s_waitcnt lgkmcnt(0)\ns_barrier")
        self.weave(self.mfmas(1,ts),ex(self.reads(0,0,ts),1))
        a("s_waitcnt lgkmcnt(0)")
        self.weave(self.mfmas(0,ts),ex(self.reads(1,1,ts)+(self.move(-SLOT) if h==0 else []),2))
        if h==1: a(f"s_waitcnt {'' if self.spec else 'vmcnt(0) '}lgkmcnt(0)\ns_barrier")
        else: a("s_waitcnt lgkmcnt(0)")
        self.weave(self.mfmas(1,ts),ex(last,3))

def epilogue_ffn_setup(a):
    a(f"""
    v_lshlrev_b32 v229, 4, v129
    v_add_u32 v229, {L_STAT}, v229
    v_and_b32 v131, 1, v130
    v_lshl_add_u32 v228, v131, 4, v129
    v_lshrrev_b32 v131, 1, v130
    v_lshl_add_u32 v228, v131, 7, v228
    s_lshl_b32 s62, s{S_WAVE}, 5
    v_add_u32 v228, s62, v228
    v_lshlrev_b32 v228, 2, v228
    v_add_u32 v228, {L_CS}, v228
    v_lshlrev_b32 v230, 4, v{VL}
    s_mul_i32 s62, s{S_I}, {8*56}
    s_lshl2_add_u32 s62, s{S_J}, s62
    s_add_u32 s62, s62, s{S_WAVE}
    s_lshl_b32 s62, s62, 10
    s_add_u32 s63, s62, {4*56*1024}
    s_bitcmp1_b32 s{S_J}, 0
    s_cselect_b32 s90, s63, s62
    s_cselect_b32 s92, s62, s63
    """)
ST=144
def ffn_stat_reads(h):
    out=[f"ds_read_b32 v{231+q}, v228 offset:{1024*q}" for q in range(4)] if h==0 else []
    return out+[f"ds_read_b128 {vr(ST+4*i,4)}, v229 offset:{256*(4*h+i)}" for i in range(4)]
def epilogue_ffn(a,h,nafter):
    a(f"s_waitcnt lgkmcnt({nafter})")
    if h==0:
        for q in range(4): a(f"v_and_b32 v{231+q}, 0xffffff00, v{231+q}")
        a("v_add_f32 v231, v231, v232\nv_add_f32 v233, v233, v234\nv_add_f32 v231, v231, v233\ns_nop 1")
    else: a("s_mov_b32 s90, s92")
    def corr(i): return f"v_mfma_f32_16x16x1_4b_f32 {vr(16*(4*h+i),16)}, v231, v{ST+4*i}, {vr(16*(4*h+i),16)}"
    def parts(i):
        t=4*h+i; b=16*t; s=ST+4*i; o=184+4*(i&1); T=(176,168)[i&1]
        A=[f"v_pk_mul_f32 {vr(T+2*p,2)}, {vr(b+2*p,2)}, {vr(s,2)} op_sel:[0,1] op_sel_hi:[1,1]" for p in range(4)]
        B=[f"v_exp_f32 v{T+p}, v{T+p}" for p in range(8)]
        C=[f"v_pk_mul_f32 {vr(b+2*p,2)}, {vr(b+2*p,2)}, {vr(b+8+2*p,2)}" for p in range(4)]
        D=[f"v_pk_fma_f32 {vr(T+2*p,2)}, {vr(T+2*p,2)}, {vr(s+2,2)}, {vr(s+2,2)} op_sel:[0,0,0] op_sel_hi:[1,0,0]" for p in range(4)]
        E=[f"v_rcp_f32 v{T+p}, v{T+p}" for p in range(8)]
        F=[f"v_pk_mul_f32 {vr(b+2*p,2)}, {vr(b+2*p,2)}, {vr(T+2*p,2)}" for p in range(4)]
        G=[f"v_cvt_pk_bf16_f32 v{o+p}, v{b+2*p}, v{b+2*p+1}" for p in range(4)]
        S=[f"buffer_store_dwordx4 {vr(o,4)}, v230, {sr(SWS)}, s90 offen sc1"+(f"\ns_add_u32 s90, s90, {56*1024}" if i<3 else "")]
        return A,B,C,D,E,F,G,S
    a(corr(0))
    for i in range(4): a(f"v_mul_f32 v{ST+4*i+1}, {hx(-LOG2E)}, v{ST+4*i+3}")
    a("s_nop 5")
    for i in range(4):
        A,B,C,D,E,F,G,S=parts(i)
        for x in A: a(x)
        if i<3: a(corr(i+1))
        for x in B+C+D+E+F+G+S: a(x)
def stage1_ffn(a):
    S=S1(a,False)
    S.loop()
    nxt=S.reads(0,0,range(4,8))
    S.half(0,ffn_stat_reads(0)+nxt)
    ls(a,3)
    epilogue_ffn(a,0,len(nxt))
    ls(a,14)
    S.half(1,ffn_stat_reads(1))
    ls(a,15)
    epilogue_ffn(a,1,0)
    head2(a,[])

def spec_acc(tb,eb,b,ri): return 64*(b>>1)+(((tb*2+eb)*2+(b&1))*2+ri)*4
def epilogue_spec(a,h,nafter):
    R=144; Z=160
    a(f"s_waitcnt lgkmcnt({nafter})")
    for i in range(4):
        t=4*h+i
        for g in range(4):
            d=(t*4+g)*4
            for p in range(2):
                a(f"v_pk_mul_f32 {vr(d+2*p,2)}, {vr(d+2*p,2)}, {vr(R+4*i+2*p,2)}")
        for g in range(4):
            d=(t*4+g)*4
            z=Z+((i>>1)*4+g)*4+(i&1)*2
            for p in range(2):
                a(f"v_cvt_pk_bf16_f32 v{z+p}, v{d+2*p}, v{d+2*p+1}")
    a("s_nop 1")
    acc=spec_acc
    def group(tb,eb):
        out=[]
        for bl in range(2):
            b=2*h+bl
            zr=vr(Z+(bl*4+eb)*4,4); zi=vr(Z+(bl*4+2+eb)*4,4)
            out+=[f"{MF} {vr(acc(tb,eb,b,0),4)}, {vr(FC+4*tb,4)}, {zr}, 0",
                  f"{MF} {vr(acc(tb,eb,b,1),4)}, {vr(FC+4*tb,4)}, {zi}, 0",
                  f"{MF} {vr(acc(tb,eb,b,0),4)}, {vr(FS+4*tb,4)}, {zi}, {vr(acc(tb,eb,b,0),4)}",
                  f"{MF} {vr(acc(tb,eb,b,1),4)}, {vr(FN+4*tb,4)}, {zr}, {vr(acc(tb,eb,b,1),4)}"]
        return out
    def pack(tb):
        out=[]
        for j in range(4):
            o=PK[h][tb]+4*j
            for eb in range(2):
                for bl in range(2):
                    b=2*h+bl
                    out.append(f"v_cvt_pk_bf16_f32 v{o+2*eb+bl}, v{acc(tb,eb,b,0)+j}, v{acc(tb,eb,b,1)+j}")
        return out
    for x in group(0,0)+group(0,1)+group(1,0): a(x)
    pk=pack(0)
    for x in group(1,1):
        a(x)
        for _ in range(2): a(pk.pop(0))
    a("s_nop 5")
    for x in pack(1): a(x)
PK=((144,0),(0,16))
def spec_stores(h):
    return [f"s_add_u32 s63, s90, {(16*tb+j)*65536}\nbuffer_store_dwordx4 {vr(PK[h][tb]+4*j,4)}, v253, {sr(SWS)}, s63 offen offset:{h*2048} sc1" for tb in range(2) for j in range(4)]
def stage1_spec(a):
    S=S1(a,True)
    S.loop()
    a(f"""
    s_waitcnt vmcnt(0)
    v_lshrrev_b32 v252, 4, v{VL}
    v_and_b32 v253, 15, v{VL}
    v_lshlrev_b32 v253, 4, v253
    v_lshl_add_u32 v253, v252, 18, v253
    v_lshlrev_b32 v252, 4, v252
    v_add_u32 v252, {L_RSTD}, v252
    """)
    rr=lambda h: [f"ds_read_b128 {vr(144+4*i,4)}, v252 offset:{64*(4*h+i)}" for i in range(4)]
    nxt=S.reads(0,0,range(4,8))
    S.half(0,rr(0)+nxt)
    ls(a,3)
    epilogue_spec(a,0,len(nxt))
    ls(a,14)
    S.half(1,rr(1),spread=spec_stores(0))
    ls(a,15)
    epilogue_spec(a,1,0)
    head2(a,spec_stores(1))

PF=6
ACC=0; HF=32; WF=80; XP=224; AW=232; AH=244; AO=246
def wreads(n):
    b=WF+16*(n%NPRE); u=pos(n); k=u>>16
    return [f"ds_read_b64_tr_b16 {vr(b+4*eb+2*rho,2)}, v{AW+4*k+eb} offset:{(u&0xffff)+rho*2048}" for eb in range(4) for rho in range(2)]
def head2(a,stores):
    ls(a,4)
    stores=list(stores)
    if stores: a(stores.pop(0))
    a(f"""
    v_and_b32 v38, 15, v{VL}
    v_lshrrev_b32 v34, 4, v{VL}
    v_lshrrev_b32 v35, 2, v38
    v_and_b32 v36, 3, v38
    v_lshl_add_u32 v35, v34, 2, v35
    v_bfe_u32 v37, v35, 1, 2
    s_lshl_b32 s62, s74, 1
    v_xor_b32 v37, s62, v37
    v_lshlrev_b32 v37, 5, v37
    v_lshl_add_u32 v37, v36, 3, v37
    v_lshl_add_u32 v37, v35, 7, v37
    s_lshl_b32 s62, s74, 12
    v_add_u32 v{AW}, s62, v37
    """)
    for eb in range(1,4): a(f"v_xor_b32 v{AW+eb}, {eb<<5}, v{AW}")
    for eb in range(4): a(f"v_add_u32 v{AW+4+eb}, 0x10000, v{AW+eb}")
    other=[f"v_add_u32 v{AW+8+eb}, 0x20000, v{AW+eb}" for eb in range(4)]+f"""
    v_lshlrev_b32 v35, 15, v38
    v_and_b32 v36, 1, v34
    v_lshlrev_b32 v36, 5, v36
    v_lshrrev_b32 v37, 1, v34
    v_lshl_add_u32 v36, v37, 4, v36
    v_add_u32 v{AO}, v35, v36
    v_lshl_add_u32 v{AH}, v{VL}, 4, s79
    v_add_u32 v{AH+1}, {56*1024}, v{AH}
    """.split('\n')
    other=[x for x in other if x.strip()]
    PB=CFG.get('pb',4)
    k=0
    for n in range(PB):
        for l in wreads(n):
            if stores and k%4==0: a(stores.pop(0))
            a(l); k+=1
            if other: a(other.pop(0))
    for x in other+stores: a(x)

def compute2(a):
    LC=CFG.get('lc',8); BY=CFG.get('by',25)
    vm=VM(); vm.op('st')
    def hload(n,t):
        sg,k=divmod(n,2); b=HF+8*(n%PF)
        a(f"buffer_load_dwordx4 {vr(b+4*t,4)}, v{AH+t}, {sr(SWS)}, s{80+sg%7} offen offset:{k*1024} sc1"); vm.op(f"h{n}")
    for t in range(2):
        a(f"buffer_load_dwordx4 {vr(XP+4*t,4)}, v{AO}, {sr(SX)}, s{77+t} offen"); vm.op('x')
    ls(a,5)
    a("s_barrier")
    ls(a,18)
    nh=CFG.get('nh',3)
    for n in range(nh):
        for t in range(2): hload(n,t)
    for n in range(CFG.get('pb',4),NPRE):
        for l in wreads(n): a(l)
    ls(a,7)
    a(f"s_waitcnt vmcnt({vm.need('st')}) lgkmcnt(0)\ns_barrier")
    for n in range(nh,PF):
        for t in range(2): hload(n,t)
    ls(a,12)
    XR=WF+16*2
    tailwork=[]
    for t in range(2):
        tailwork+=[f"v_permlane16_swap_b32 v{XP+4*t}, v{XP+4*t+2}",f"v_permlane16_swap_b32 v{XP+4*t+1}, v{XP+4*t+3}"]
    for i in range(8):
        tailwork+=[f"v_lshlrev_b32 v{XR+2*i}, 16, v{XP+i}",f"v_and_b32 v{XR+2*i+1}, 0xffff0000, v{XP+i}"]
    tailwork+=[f"v_lshlrev_b32 v249, 4, v{VL}",f"s_lshl_b32 s62, s{S_WAVE}, 12",f"s_add_u32 s62, s62, {L_RED}","v_add_u32 v250, s62, v249","v_xor_b32 v251, 8192, v250",
               "s_lshl2_add_u32 s62, s74, s75","s_lshl_b32 s62, s62, 11",f"s_add_u32 s62, s62, {L_Y}","v_add_u32 v252, s62, v249",f"s_mov_b32 s64, {hx(-LOG2E)}","s_mov_b32 s65, s64"]
    for n in range(28):
        need=[f"h{n}"]
        if n==23: need.append('x')
        w=f"s_waitcnt vmcnt({vm.need(*need)})"
        if n>=NPRE: w+=f" lgkmcnt({8 if n<27 else 0})"
        a(w)
        if n==0: ls(a,11)
        if n==LC:
            if CFG.get('ct'): ls(a,13)
            a("s_barrier")
            if CFG.get('ct'): ls(a,19)
            a(f"v_xor_b32 v{AH}, 4096, v{AH}\nv_xor_b32 v{AH+1}, 4096, v{AH+1}")
            for m in range(14,LC+PF):
                for t in range(2): hload(m,t)
        if n==CFG.get('bg',17): a("s_barrier")
        if n==BY:
            if CFG.get('ct'): ls(a,16)
            a("s_barrier")
            if CFG.get('ct'): ls(a,17)
        r=wreads(n+2) if NPRE<=n+2<28 else []
        hb=HF+8*(n%PF); wb=WF+16*(n%NPRE)
        order=[(t,(ee if t==0 else 3-ee)) for t in range(2) for ee in range(4)]
        if n==27: order=[(0,2),(0,3),(1,3),(1,2),(1,1),(1,0),(0,0),(0,1)]
        for i,(t,eb) in enumerate(order):
            d=ACC+(t*4+eb)*4
            a(f"{MF} {vr(d,4)}, {vr(wb+4*eb,4)}, {vr(hb+4*t,4)}, {'0' if n==0 else vr(d,4)}")
            if i<len(r): a(r[i])
            if n+PF<28 and i in (3,7) and (n+PF<14 or n>=LC): hload(n+PF,i//4)
            if n>=23 and tailwork: a(tailwork.pop(0))
    assert not tailwork and LC>=14-PF
    ls(a,8)
    a("s_nop 3")
    for t,eb in ((0,0),(0,1),(1,1),(1,0)):
        a(f"ds_write_b128 v250, {vr(ACC+(t*4+2+eb)*4,4)} offset:{(t*2+eb)*1024}")
    a("s_waitcnt lgkmcnt(0)\ns_barrier")
    RD=32; Y=48; T=64
    for t in range(2):
        for eb in range(2):
            a(f"ds_read_b128 {vr(RD+(t*2+eb)*4,4)}, v251 offset:{(t*2+eb)*1024}")
        for eb in range(2):
            a(f"ds_read_b128 {vr(Y+(t*2+eb)*4,4)}, v252 offset:{eb*4096+t*1024}")
    ofl=CFG.get('ofl','sc1').replace('none','').replace('+',' ')
    for t in range(2):
        b=ACC+t*16
        a(f"s_waitcnt lgkmcnt({6-4*t})")
        for p in range(4): a(f"v_pk_add_f32 {vr(b+2*p,2)}, {vr(b+2*p,2)}, {vr(RD+t*8+2*p,2)}")
        for p in range(4): a(f"v_pk_mul_f32 {vr(T+2*p,2)}, {vr(b+2*p,2)}, s[64:65]")
        for p in range(8): a(f"v_exp_f32 v{T+p}, v{T+p}")
        a(f"s_waitcnt lgkmcnt({4-4*t})")
        for p in range(4): a(f"v_pk_mul_f32 {vr(b+2*p,2)}, {vr(b+2*p,2)}, {vr(Y+t*8+2*p,2)}")
        for p in range(4): a(f"v_pk_add_f32 {vr(T+2*p,2)}, {vr(T+2*p,2)}, 1.0 op_sel_hi:[1,0]")
        for p in range(8): a(f"v_rcp_f32 v{T+p}, v{T+p}")
        for p in range(4): a(f"v_pk_fma_f32 {vr(b+2*p,2)}, {vr(b+2*p,2)}, {vr(T+2*p,2)}, {vr(XR+t*8+2*p,2)}")
        o=72+4*t
        for p in range(4): a(f"v_cvt_pk_bf16_f32 v{o+p}, v{b+2*p}, v{b+2*p+1}")
        a(f"s_nop 1\nv_permlane16_swap_b32 v{o}, v{o+2}\nv_permlane16_swap_b32 v{o+1}, v{o+3}")
        a(f"buffer_store_dwordx4 {vr(o,4)}, v{AO}, {sr(SOUT)}, s{77+t} offen {ofl}")
    ls(a,9)
    if diag() and not CFG.get('gap'):
        a("s_waitcnt vmcnt(0)"); ls(a,10)
        ls_dump(a)

class Loader:
    def __init__(self,a): self.a=a; self.vm=VM(); self.m0=None; self.fill=[]; self.extra=[]; self.thr=0; self.regs={}
    def setm0(self,val):
        a=self.a
        if self.m0 is not None and -32768<=val-self.m0<=32767: a(f"s_addk_i32 m0, {val-self.m0}")
        else: a(f"s_add_u32 m0, s92, {val}")
        self.m0=val
    def dma(self,lds,vaddr,srdn,soff,tag,pre=None):
        self.setm0(lds)
        self.a(pre if pre else (self.fill.pop(0) if self.fill else "s_nop 0"))
        self.a(f"buffer_load_dwordx4 v{vaddr}, {sr(srdn)}, {soff} offen lds"); self.vm.op(tag)
        if self.extra: self.a(self.extra.pop(0))
        if self.thr: self.a(f"s_waitcnt vmcnt({self.thr})")
    def issue(self,c,lo=0,hi=4):
        slot=c%3
        for p in range(lo,hi):
            self.dma(slot*SLOT+p*4096,10,SX,f"s{64+p}",f"c{c}")
            self.fill.append(f"s_addk_i32 s{64+p}, 128")
            self.dma(slot*SLOT+16384+p*4096,11,SB0,f"s{68+p}",f"c{c}")
            self.dma(slot*SLOT+32768+p*4096,11,SB1,f"s{68+p}",f"c{c}")
            self.fill.append(f"s_add_u32 s{68+p}, s{68+p}, s72")
    def wd_off(self,n,kh):
        sg,k=divmod(n,2)
        return f"s_add_u32 s62, s{80+sg%7}, {(kh*64+32*k)*1024}"
    def wd(self,n,tag='wd'):
        for kh in range(2):
            self.dma(pos(n)+kh*4096,18 if n<14 else 17,SWD,"s62",tag,pre=self.wd_off(n,kh))
    def wreg(self,n):
        self.regs[n]=128+8*len(self.regs)
        for kh in range(2):
            self.a(self.wd_off(n,kh))
            self.a(f"buffer_load_dwordx4 {vr(self.regs[n]+4*kh,4)}, v{18 if n<14 else 17}, {sr(SWD)}, s62 offen"); self.vm.op('wr')
            if self.thr: self.a(f"s_waitcnt vmcnt({self.thr})")
    def put(self,n):
        u=pos(n)
        for kh in range(2):
            self.a(f"ds_write_b128 v{(21,23,26)[u>>16]}, {vr(self.regs[n]+4*kh,4)} offset:{(u&0xffff)+kh*4096}")
    def bar(self,c,*tags):
        a=self.a
        a(f"s_waitcnt vmcnt({self.vm.need(*tags)})")
        if CFG.get('lt',0): ls(a,2+2*c)
        a("s_barrier")
        if CFG.get('lt',0): ls(a,3+2*c)

def loader_start(a,L):
    sp=a.lab('lsp'); jn=a.lab('ljn')
    a(f"""
    s_sub_u32 s74, s{S_WAVE}, 4
    s_lshl_b32 s92, s74, 10
    v_lshrrev_b32 v1, 3, v{VL}
    v_lshl_add_u32 v1, s74, 3, v1
    v_bfe_u32 v2, v1, 1, 3
    v_and_b32 v3, 7, v{VL}
    v_xor_b32 v2, v2, v3
    v_lshlrev_b32 v2, 4, v2
    s_cmp_ge_u32 s{S_J}, 14
    s_cbranch_scc1 {sp}
    v_lshl_add_u32 v10, v1, 15, v2
    v_lshrrev_b32 v3, 4, v{VL}
    v_lshl_add_u32 v4, s74, 2, v3
    v_mul_u32_u24 v4, 3584, v4
    s_lshr_b32 s62, s74, 1
    v_lshl_or_b32 v3, s62, 2, v3
    v_lshlrev_b32 v3, 1, v3
    v_and_b32 v5, 15, v{VL}
    v_xor_b32 v3, v3, v5
    v_lshl_add_u32 v11, v3, 4, v4
    s_and_b32 s64, s{S_J}, 1
    s_lshl1_add_u32 s64, s{S_I}, s64
    s_lshl_b32 s64, s64, 10
    s_add_u32 s65, s64, 0x100000
    s_xor_b32 s66, s64, 0x400
    s_xor_b32 s67, s65, 0x400
    s_lshl_b32 s68, s{S_J}, 8
    s_mov_b32 s62, {16*3584}
    s_mov_b32 s72, {64*3584}
    s_mov_b32 s{SB0+2}, {W_BYTES}
    s_branch {jn}
    {sp}:
    v_lshl_add_u32 v10, v1, 16, v2
    v_and_b32 v3, 15, v1
    v_lshrrev_b32 v4, 4, v1
    v_lshl_add_u32 v3, v3, 1, v4
    v_lshl_add_u32 v11, v3, 10, v2
    s_lshl_b32 s64, s{S_I}, 12
    s_add_u32 s65, s64, 0x400
    s_add_u32 s66, s64, 0x800
    s_add_u32 s67, s64, 0xc00
    s_sub_u32 s68, s{S_J}, 14
    s_lshl_b32 s68, s68, 17
    s_add_u32 s68, s68, 0x400
    s_mov_b32 s62, 0x8000
    s_movk_i32 s72, 128
    s_mov_b32 s{SB0+2}, {T_BYTES}
    {jn}:
    s_mov_b32 s{SB0+3}, 0x00020000
    s_mov_b32 s{SB1+3}, 0x00020000
    s_mov_b32 s{SB1+2}, s{SB0+2}
    s_add_u32 s69, s68, s62
    s_add_u32 s70, s69, s62
    s_add_u32 s71, s70, s62
    s_cmp_ge_u32 s{S_J}, 14
    s_waitcnt lgkmcnt(0)
    s_cselect_b64 s[{SB0}:{SB0+1}], s[{P_HRE}:{P_HRE+1}], s[{P_WG}:{P_WG+1}]
    s_cselect_b64 s[{SB1}:{SB1+1}], s[{P_HIM}:{P_HIM+1}], s[{P_WU}:{P_WU+1}]
    """)
    srd_lo(a,SX,P_X)
    ls_first(a)
    if CFG.get('ldelay',0): a(f"s_sleep {CFG['ldelay']}")
    ls(a,1)

def loader(a,L):
    vm=L.vm
    CB=64; GA=208; YA=224
    epoch_load(a,9)
    n0=CFG.get('n0',3)
    L.issue(0,0,n0)
    tile_map2(a)
    a(f"""
    v_and_b32 v12, 15, v{VL}
    v_lshrrev_b32 v13, 4, v{VL}
    s_mov_b32 s63, {hx(1/2048.)}
    s_mov_b32 s60, 0x8000
    s_mov_b32 s61, 0x80000000
    s_cmp_ge_u32 s{S_NB}, 4
    s_cselect_b32 s90, {hx(-1/2048.)}, s63
    s_cselect_b32 s75, s61, s60
    s_cselect_b32 s73, s60, s61
    v_lshlrev_b32 v2, 2, v13
    v_cvt_f32_u32 v2, v2
    v_lshl_add_u32 v3, v12, 5, s{S_T1}
    v_cvt_f32_u32 v3, v3
    v_mul_f32 v3, s90, v3
    """)
    for k in range(4):
        c=lambda tb,b: CB+(tb*4+k)*4+b
        a(f"v_add_f32 v40, {hx(16.0*k)}, v2\nv_mul_f32 v40, v40, v3\nv_add_f32 v41, v40, v3\nv_add_f32 v42, v41, v3\nv_add_f32 v43, v42, v3")
        for b in range(4): a(f"v_cos_f32 v{44+b}, v{40+b}\nv_sin_f32 v{48+b}, v{40+b}")
        for b in range(4): a(f"v_cvt_pk_bf16_f32 v{c(0,b)}, v{44+b}, v{48+b}")
        a(f"v_cvt_pk_bf16_f32 v40, v49, v45\nv_cvt_pk_bf16_f32 v41, v51, v47")
        for tb in range(1,4): a(f"v_mov_b32 v{c(tb,0)}, v{c(0,0)}")
        a(f"v_xor_b32 v{c(1,1)}, s75, v40\nv_xor_b32 v{c(3,1)}, s73, v40\nv_xor_b32 v{c(1,3)}, s73, v41\nv_xor_b32 v{c(3,3)}, s75, v41")
        a(f"v_xor_b32 v{c(2,1)}, 0x80008000, v{c(0,1)}\nv_xor_b32 v{c(2,3)}, 0x80008000, v{c(0,3)}")
        a(f"v_xor_b32 v{c(1,2)}, 0x80008000, v{c(0,2)}\nv_mov_b32 v{c(2,2)}, v{c(0,2)}\nv_mov_b32 v{c(3,2)}, v{c(1,2)}")
    L.issue(0,n0,4); L.issue(1,0,CFG.get('i1',2))
    srd(a,SWS,P_WS,ws_end()); srd(a,SWD,P_WD,W_BYTES)
    a(f"""
    v_and_b32 v6, 7, v{VL}
    v_lshlrev_b32 v5, 1, v13
    v_xor_b32 v6, v6, v5
    v_lshlrev_b32 v6, 4, v6
    v_lshl_add_u32 v6, v1, 10, v6
    s_and_b32 s60, s{S_T1}, 1
    s_lshl_b32 s60, s60, 10
    s_add_u32 s60, s60, s{S_NB}
    v_lshl_add_u32 v18, s60, 7, v6
    v_xor_b32 v17, 0x20000, v18
    """)
    stage_rot(a,60,17)
    a(f"""
    s_lshl2_add_u32 s60, s2, s74
    s_mul_i32 s60, s60, 1792
    s_add_u32 s76, s{P_WD}, s60
    s_addc_u32 s77, s{P_WD+1}, 0
    s_lshl2_add_u32 s60, s{S_LOC}, s74
    s_mul_i32 s60, s60, {14*1024}
    s_add_u32 s60, s60, 384
    s_add_u32 s78, s{P_WD}, s60
    s_addc_u32 s79, s{P_WD+1}, 0
    """)
    sp2=a.lab('gspec'); j2=a.lab('gjoin')
    a(f"v_and_b32 v5, 31, v{VL}\ns_and_b32 s60, s74, 1\ns_lshr_b32 s63, s74, 1\ns_cmp_ge_u32 s{S_J}, 14\ns_cbranch_scc1 {sp2}")
    a(f"v_and_b32 v3, 1, v5\nv_lshlrev_b32 v3, 10, v3\nv_and_b32 v4, 30, v5\ns_and_b32 s61, s{S_J}, 1\ns_xor_b32 s63, s63, s61\ns_lshl1_add_u32 s61, s{S_I}, s60\ns_lshl_b32 s61, s61, 5\ns_add_u32 s61, s61, s63\nv_add3_u32 v20, v3, v4, s61\ns_branch {j2}\n{sp2}:")
    a(f"s_lshl1_add_u32 s61, s{S_I}, s63\ns_lshl_b32 s61, s61, 6\ns_add_u32 s61, s61, s60\nv_lshl_add_u32 v20, v5, 1, s61\n{j2}:")
    a(f"""
    v_lshlrev_b32 v20, 4, v20
    v_lshlrev_b32 v5, 4, v5
    v_lshrrev_b32 v6, 5, v{VL}
    v_mul_u32_u24 v6, {1792*4}, v6
    s_min_u32 s61, s{S_J}, 13
    s_lshl_b32 s61, s61, 9
    v_add3_u32 v22, v5, v6, s61
    s_mul_i32 s88, s74, {3584*4}
    s_add_u32 s88, s88, {WS_CS}
    s_mov_b32 s87, {WS_ST}
    v_mov_b32 v15, 0x0c0c0400
    v_mov_b32 v16, 0x04000c0c
    v_lshl_add_u32 v21, v{VL}, 4, s92
    v_add_u32 v23, 0x10000, v21
    """)
    a(f"""
    s_lshl2_add_u32 s60, s{S_NB}, s74
    s_lshl_b32 s60, s60, 4
    v_add_u32 v3, s60, v12
    v_sub_u32 v4, 512, v3
    s_sub_u32 s61, 32, s{S_T1}
    s_and_b32 s61, s61, 31
    s_lshl_b32 s60, s{S_NB}, 6
    s_sub_u32 s63, 448, s60
    s_max_u32 s73, s60, 1
    s_sub_u32 s73, s73, 1
    s_add_u32 s75, s60, 62
    s_cmp_ge_u32 s{S_NB}, 4
    s_cselect_b32 s61, s61, s{S_T1}
    s_cselect_b64 vcc, -1, 0
    s_cselect_b32 s73, s63, s73
    s_cselect_b32 s75, s63, s75
    v_cndmask_b32 v4, v3, v4, vcc
    v_subrev_u32 v4, 1, v4
    v_lshlrev_b32 v4, 3, v4
    v_lshl_add_u32 v4, v13, 12, v4
    v_cmp_eq_u32 vcc, 0, v3
    v_mov_b32 v5, {OOB}
    s_lshl_b32 s61, s61, 16
    v_cndmask_b32 v19, v4, v5, vcc
    s_add_u32 s91, s61, {WS_G}
    s_lshr_b32 s73, s73, 7
    s_lshr_b32 s75, s75, 7
    s_sub_u32 s75, s75, s73
    v_and_b32 v5, 1, v13
    v_mul_u32_u24 v5, s75, v5
    v_lshl_add_u32 v5, v12, 4, v5
    v_add_lshl_u32 v14, v5, s73, 9
    s_lshr_b32 s61, s{S_T1}, 1
    s_and_b32 s63, s{S_T1}, 1
    s_lshl4_add_u32 s61, s61, s63
    s_lshl_b32 s61, s61, 9
    s_add_u32 s61, s61, {WS_FL}
    s_xor_b32 s63, s61, 0x300
    s_add_u32 s34, s{P_WS}, s61
    s_addc_u32 s35, s{P_WS+1}, 0
    s_add_u32 s36, s{P_WS}, s63
    s_addc_u32 s37, s{P_WS+1}, 0
    """)
    flag_addr(a,61)
    a(f"s_add_u32 s42, s{P_WS}, s61\ns_addc_u32 s43, s{P_WS+1}, 0\nv_and_b32 v5, 1, v{VL}\nv_lshlrev_b32 v5, 8, v5\nbuffer_load_dwordx2 v[32:33], v5, {sr(SWS)}, s61 offen sc1"); vm.op('old')
    sl=[f"s_load_dword s95, s[76:77], {q*64}" for q in range(28)]+[f"s_load_dword s95, s[78:79], {(q//2)*1024+(q&1)*64}" for q in range(28)]
    if CFG.get('spm')==1: sl=[x for p in zip(sl[:28],sl[28:]) for x in p]
    if CFG.get('spm')==2: sl=sl[28:]+sl[:28]
    ss=[int(c,16) for c in str(CFG.get('sps','e777777')).zfill(7)]
    def spf(rnd):
        if not CFG.get('spf',1): return
        for _ in range(ss[rnd]):
            if sl: a(sl.pop(0))
    def gather():
        a(f"buffer_load_dwordx4 v[24:27], v20, {sr(SWS)}, s87 offen sc1\nbuffer_load_dwordx4 v[28:31], v22, {sr(SWS)}, s88 offen sc1")
    R=(64,66,68,70,72,76,78)
    def watch_issue(base):
        sk=a.lab('nw')
        a(f"s_cmp_lg_u32 s74, 3\ns_cbranch_scc1 {sk}")
        for q in range(7): a(f"s_load_dwordx2 s[{R[q]}:{R[q]+1}], s[{base}:{base+1}], {q*1024} glc")
        a(f"{sk}:")
    def watch(base):
        np_=a.lab('nopoll'); lp=a.lab('poll'); ck=a.lab('chk')
        a(f"s_cmp_lg_u32 s74, 3\ns_cbranch_scc1 {np_}\ns_mov_b32 s89, {SPIN}\ns_branch {ck}\n{lp}:")
        for q in range(7): a(f"s_load_dwordx2 s[{R[q]}:{R[q]+1}], s[{base}:{base+1}], {q*1024} glc")
        a(f"s_sub_u32 s89, s89, 1\ns_cbranch_scc1 {np_}\n{ck}:\ns_waitcnt lgkmcnt(0)")
        for q in range(7): a(f"s_cmp_lg_u64 s[{R[q]}:{R[q]+1}], s[{S_TAG}:{S_TAG+1}]\ns_cbranch_scc1 {lp}")
        a(f"{np_}:")
    def raise_flag(h):
        sk=a.lab('nf')
        if h==0: a(f"s_cmp_ge_u32 s{S_J}, 14\ns_cbranch_scc1 {sk}")
        a(f"s_cmp_lg_u32 s74, 0\ns_cbranch_scc1 {sk}\ns_atomic_add_x2 s[{44+2*h}:{45+2*h}], s[42:43], {256*h}\n{sk}:")
    regq=list(range(19,28))+(list(range(13,19)) if CFG.get('r12',0) else [])
    sched=[int(c,16) for c in str(CFG.get('wrs','0')).zfill(6)]
    def wregs(k):
        for _ in range(k):
            if regq: L.wreg(regq.pop(0))
    spf(0)
    L.bar(0,'c0')
    L.issue(1,CFG.get('i1',2),4); L.issue(2,0,CFG.get('i2',2)); spf(1); wregs(sched[0])
    epoch_tag(a,9)
    L.bar(1,'c1','old')
    L.extra=[f"v_readlane_b32 s44, v32, 0",f"v_readlane_b32 s45, v33, 0",f"v_readlane_b32 s46, v32, 1",f"v_readlane_b32 s47, v33, 1","s_nop 0",
             f"s_sub_u32 s44, s{S_TAG}, s44\ns_subb_u32 s45, s{S_TAG+1}, s45\ns_sub_u32 s46, s{S_TAG}, s46\ns_subb_u32 s47, s{S_TAG+1}, s47"]
    L.issue(2,CFG.get('i2',2),4); L.issue(3); spf(2); wregs(sched[1])
    L.bar(2,'c2')
    L.issue(4); spf(3); wregs(sched[2])
    L.bar(3,'c3')
    gather(); vm.op('g'); vm.op('g')
    L.issue(5); spf(4); wregs(sched[3])
    L.bar(4,'c4','g')
    check=["v_perm_b32 v3, v29, v28, v15","v_perm_b32 v4, v31, v30, v16",f"v_xor_b32 v5, s{S_TAG}, v25","v_or_b32 v3, v3, v4",f"v_xor_b32 v3, s{S_TAG}, v3","v_or_b32 v3, v3, v5"]
    L.extra=list(check)
    L.issue(6,0,2)
    rt=a.lab('rt'); ok=a.lab('ok')
    a(f"v_cmp_ne_u32 vcc, 0, v3\ns_cbranch_vccz {ok}\ns_mov_b32 s89, {SPIN}\n{rt}:")
    gather(); a("s_waitcnt vmcnt(0)")
    for x in check: a(x)
    a(f"v_cmp_ne_u32 vcc, 0, v3\ns_cbranch_vccz {ok}\ns_sleep 2\ns_sub_u32 s89, s89, 1\ns_cmp_lg_u32 s89, 0\ns_cbranch_scc1 {rt}\n{ok}:")
    L.issue(6,2,4); spf(5); wregs(sched[4])
    L.bar(5,'c5')
    L.issue(7); spf(6); wregs(sched[5])
    L.bar(6,'c6')
    a(f"s_add_u32 m0, s92, {L_CS}\ns_lshr_b32 s61, s92, 1\nbuffer_load_dwordx4 v22, {sr(SWS)}, s88 offen sc1 lds"); vm.op('gd')
    a(f"s_add_u32 m0, s61, {L_STAT}\ns_mov_b32 exec_hi, 0\nbuffer_load_dwordx4 v20, {sr(SWS)}, s87 offen sc1 lds"); vm.op('gd')
    a(f"s_lshr_b32 s61, s92, 3\ns_add_u32 m0, s61, {L_RSTD-12}\ns_nop 0\nbuffer_load_dword v20, {sr(SWS)}, s87 offen offset:12 sc1 lds\ns_mov_b32 exec_hi, -1"); vm.op('gd')
    L.m0=None
    u6=CFG.get('u6',3)
    for n in range(0,u6): L.wd(n)
    L.bar(7,'c7','gd')
    L.thr=CFG.get('thr',0)
    for n in range(u6,7): L.wd(n,'w6')
    wregs(99)
    a(f"v_add_u32 v26, 0x20000, v21")
    ls(a,18); a("s_barrier"); ls(a,19)
    u7=CFG.get('u7',10)
    for n in range(7,u7): L.wd(n,'w8' if n<9 else 'wd')
    a(f"s_waitcnt vmcnt({vm.need('w6')})")
    ls(a,20); a("s_barrier"); ls(a,21)
    raise_flag(0)
    if CFG.get('r12',0):
        for n in range(u7,13): L.wd(n)
        a("s_waitcnt vmcnt(0)")
        watch_issue(34)
        for n in range(13,19): L.put(n)
    else:
        for n in range(u7,19):
            if n==CFG.get('we',15): watch_issue(34)
            L.wd(n)
        a(f"s_waitcnt vmcnt({vm.need('w8')})")
    ls(a,22)
    watch(34)
    ls(a,28)
    a("s_barrier")
    a(f"s_waitcnt vmcnt(0) lgkmcnt(0)\ns_barrier")
    raise_flag(1)
    if CFG.get('lprio',2): a(f"s_setprio {CFG.get('lprio',2)}")
    for n in range(19,28):
        if n==CFG.get('wl',23): watch_issue(36)
        L.put(n)
    ls(a,27)
    watch(36)
    a("s_waitcnt lgkmcnt(0)")
    ls(a,23)
    a("s_barrier")
    if CFG.get('gap'): ls_dump(a)
    lp=a.lab('poll'); ok=a.lab('ok')
    a(f"s_cmp_lg_u32 s74, 3\ns_cbranch_scc1 {ok}")
    if CFG.get('g0',0): a(f"s_sleep {CFG['g0']}")
    a(f"s_mov_b32 s87, {WS_FL+14*512+256}\ns_mov_b32 s89, {SPIN}\n{lp}:")
    a(f"buffer_load_dwordx2 v[24:25], v14, {sr(SWS)}, s87 offen sc1\ns_waitcnt vmcnt(0)\nv_cmp_ne_u64 vcc, s[{S_TAG}:{S_TAG+1}], v[24:25]\ns_cbranch_vccz {ok}")
    a(f"s_sleep {CFG.get('gs',3)}\ns_sub_u32 s89, s89, 1\ns_cmp_lg_u32 s89, 0\ns_cbranch_scc1 {lp}\n{ok}:")
    ls(a,17)
    a("s_barrier")
    for k in range(4):
        a(f"buffer_load_dwordx2 {vr(GA+4*k,2)}, v19, {sr(SWS)}, s91 offen sc1\nbuffer_load_dwordx2 {vr(GA+4*k+2,2)}, v19, {sr(SWS)}, s91 offen offset:2048 sc1\ns_add_u32 s91, s91, {4*4096}")
    ls(a,24)
    for k in range(4):
        a(f"s_waitcnt vmcnt({6-2*k})")
        for tb in range(4):
            a(f"{MF} {vr(YA+4*tb,4)}, {vr(GA+4*k,4)}, {vr(CB+(tb*4+k)*4,4)}, {'0' if k==0 else vr(YA+4*tb,4)}")
    nb=a.lab('nobump')
    a(f"s_or_b32 s60, s2, s74\ns_cbranch_scc1 {nb}\ns_mov_b32 s60, {WS_EP}\nv_mov_b32 v24, s{S_TAG}\ns_mov_b64 exec, 1\nbuffer_store_dword v24, off, {sr(SWS)}, s60 sc1\ns_mov_b64 exec, -1\n{nb}:")
    a(f"s_lshl_b32 s60, s74, 12\ns_add_u32 s60, s60, {L_Y}\nv_lshl_add_u32 v1, v{VL}, 4, s60\ns_nop 3")
    ls(a,29)
    a("s_barrier")
    for tb in range(4):
        a(f"ds_write_b128 v1, {vr(YA+4*tb,4)} offset:{1024*tb}")
    a("s_waitcnt lgkmcnt(0)")
    ls(a,25)
    a("s_barrier")
    ls(a,26)
    if not CFG.get('gap') and not CFG.get('lite'): ls_dump(a)

def kernel_main(a,name):
    kbegin(a,name)
    end=a.lab('end'); ld=a.lab('ld'); sp=a.lab('sp'); s2=a.lab('stage2')
    r1=a.lab('r1'); r3=a.lab('r3'); rj=a.lab('rj'); rt=a.lab('rt'); rz=a.lab('rz'); c0=a.lab('c0'); c1=a.lab('c1')
    a(f"s_cmp_ge_u32 s2, 256\ns_cbranch_scc1 {end}")
    if diag(): a("s_memrealtime s[94:95]")
    a("s_load_dwordx16 s[32:47], s[0:1], 0\ns_load_dwordx8 s[48:55], s[0:1], 64")
    if CFG.get('cpf',1):
        a(f"""
        s_getpc_b64 s[60:61]
        L_pc_here:
        s_bfe_u32 s62, s2, 0x20003
        v_lshl_add_u32 v1, v0, 2, s62
        v_lshlrev_b32 v1, 7, v1
        v_min_u32 v1, L_code_end-L_pc_here-4, v1
        global_load_dword v252, v1, s[60:61]
        """)
    a(f"v_lshrrev_b32 v1, 6, v0\nv_and_b32 v{VL}, 63, v0\nv_readfirstlane_b32 s{S_WAVE}, v1")
    tile_map(a)
    srd_hi(a,SX,XB_BYTES)
    a(f"s_cmp_ge_u32 s{S_WAVE}, 4\ns_cbranch_scc1 {ld}")
    a(f"s_cmp_eq_u32 s{S_WAVE}, 3\ns_cbranch_scc1 {r3}")
    a(f"s_cmp_lg_u32 s{S_WAVE}, 0\ns_cbranch_scc1 {r1}")
    cs_ids(a)
    colsum_loads(a)
    a(f"s_branch {rt}\n{r1}:")
    row_ids(a); rows_loads(a)
    r1b=a.lab('r1b')
    a(f"s_branch {r1b}\n{ld}:")
    L=Loader(a)
    loader_start(a,L)
    loader(a,L)
    a(f"s_endpgm\n{rt}:")
    cs_addr(a,68)
    a(f"s_branch {rz}\n{r1b}:")
    st_addr(a,68)
    a(f"s_lshl4_add_u32 s68, s60, s68\ns_mov_b32 s87, 1\ns_branch {rz}\n{r3}:")
    if CFG.get('warm',1):
        row_ids(a); st_addr(a,72)
        a(f"v_mov_b32 v1, s72")
    a(f"s_waitcnt lgkmcnt(0)")
    epoch_load(a,128)
    if CFG.get('warm',1):
        a(f"global_load_dword v252, v1, s[{P_WS}:{P_WS+1}] sc1")
    a(f"s_mov_b32 s87, 2\n{rz}:\nv_mov_b32 v{SA}, {OOB}")
    ls_first(a)
    if CFG.get('prio',1): a("s_setprio 1")
    scalars2(a)
    sp0=a.lab('sp0'); j0=a.lab('j0')
    a(f"s_cmp_ge_u32 s{S_J}, 14\ns_cbranch_scc1 {sp0}")
    compute1_setup(a,False); epilogue_ffn_setup(a)
    a(f"s_branch {j0}\n{sp0}:")
    compute1_setup(a,True); dft32_consts(a)
    a(f"s_sub_u32 s62, s{S_J}, 14\ns_lshl2_add_u32 s62, s62, s{S_WAVE}\ns_lshl4_add_u32 s62, s{S_I}, s62\ns_lshl_b32 s62, s62, 8\ns_add_u32 s90, s62, {WS_G}")
    a(f"{j0}:")
    zero_acc(a)
    a(f"s_cmp_eq_u32 s87, 1\ns_cbranch_scc1 {c1}\ns_cmp_eq_u32 s87, 0\ns_cbranch_scc1 {c0}")
    a("s_waitcnt vmcnt(0)"); epoch_tag(a,128)
    a(f"s_branch {rj}\n{c0}:")
    colsum_finish(a)
    a(f"s_branch {rj}\n{c1}:")
    rows_finish(a)
    a(f"{rj}:")
    a(f"s_cmp_ge_u32 s{S_J}, 14\ns_cbranch_scc1 {sp}")
    stage1_ffn(a)
    a(f"{s2}:")
    compute2(a)
    a(f"s_endpgm\n{sp}:")
    stage1_spec(a)
    a(f"s_branch {s2}")
    a(f"{end}:\ns_endpgm\nL_code_end:")

def build(cfg):
    CFG.clear(); CFG.update(cfg)
    a=Asm()
    name=NAME+'_kernel'
    if cfg.get('probe'):
        a(f"; @launch kernel={name} grid=(256,1,1) block=(512,1,1) lds={LDS}")
        a(f"; @launch kernel=probe_kernel grid=(1,1,1) block=(64,1,1) lds=0")
    else:
        a(f"; @launch grid=(256,1,1) block=(512,1,1) lds={LDS}")
    a('.amdgcn_target "amdgcn-amd-amdhsa--gfx950"\n.text')
    kernel_main(a,name); names=[name]
    if cfg.get('probe'): names.append(kernel_probe(a))
    a('.section .rodata,"a"')
    for n in names:
        a('.p2align 6')
        a.l.append(kd(n,256,102,256))
    return a.text()

if __name__=='__main__':
    cfg={}
    for kv in sys.argv[2:]:
        k,v=kv.split('='); cfg[k]=int(v) if v.lstrip('-').isdigit() else v
    t=build(cfg)
    if cfg.get('cyc'): t=t.replace('s_memrealtime','s_memtime')
    open(sys.argv[1],'w').write(t)
```

```python
import sys, struct
NAME='recurrent_scan__spectral_fnet__swiglu_ffn__prompt'
LOG2E=1.4426950408889634
def f2u(x): return struct.unpack('<I',struct.pack('<f',x))[0]
def hx(x): return hex(f2u(x))

WS_H=0; WS_G=0xA00000; WS_ST=0x900000; WS_CS=0x908000; WS_EP=0x918000; WS_FL=0x9C0000; WS_FG=0x9F0000
WS_TRACE=0x940000
CFG={}
def diag(): return CFG.get('probe') or CFG.get('trace')
def ws_end(): return 0xC80000
def GS(): return 65536+CFG.get('gp',4352)
S_TAG=6
OOB=0x40000000

class Asm:
    def __init__(self): self.l=[]; self.n=0
    def __call__(self,s):
        for line in s.split('\n'):
            line=line.strip()
            if line: self.l.append(('' if line.endswith(':') or line.startswith('.') or line.startswith(';') else '    ')+line)
    def lab(self,b): self.n+=1; return f"L_{b}_{self.n}"
    def text(self): return '\n'.join(self.l)+'\n'

class VM:
    def __init__(self): self.ops=[]
    def op(self,tag): self.ops.append(tag)
    def need(self,*tags):
        last=max(i for i,t in enumerate(self.ops) if t in tags)
        n=len(self.ops)-1-last
        assert n<=63, n
        return n

def kd(name,vgpr,sgpr,accum):
    return f""".amdhsa_kernel {name}
  .amdhsa_next_free_vgpr {vgpr}
  .amdhsa_next_free_sgpr {sgpr}
  .amdhsa_accum_offset {accum}
  .amdhsa_group_segment_fixed_size 0
  .amdhsa_kernarg_size 96
  .amdhsa_user_sgpr_count 2
  .amdhsa_user_sgpr_kernarg_segment_ptr 1
  .amdhsa_system_sgpr_workgroup_id_x 1
  .amdhsa_float_denorm_mode_32 3
.end_amdhsa_kernel
"""
def kbegin(a,name): a(f".globl {name}\n.p2align 8\n.type {name},@function\n{name}:")
def srd(a,d,base,nbytes):
    a(f"s_mov_b64 s[{d}:{d+1}], s[{base}:{base+1}]\ns_mov_b32 s{d+2}, {nbytes}\ns_mov_b32 s{d+3}, 0x00020000")
def srd_hi(a,d,nbytes): a(f"s_mov_b32 s{d+2}, {nbytes}\ns_mov_b32 s{d+3}, 0x00020000")
def srd_lo(a,d,base): a(f"s_mov_b64 s[{d}:{d+1}], s[{base}:{base+1}]")
def vr(b,n): return f"v[{b}:{b+n-1}]" if n>1 else f"v{b}"
def sr(b): return f"s[{b}:{b+3}]"
MF="v_mfma_f32_16x16x32_bf16"

P_X,P_HRE,P_HIM,P_WG,P_WU,P_WD,P_OUT,P_DBG,P_WS=32,38,40,44,46,48,50,52,54
SX,SB0,SB1,SWS,SWD,SOUT=8,12,16,20,24,28
S_WAVE=56; S_I=57; S_J=58; S_T1=59; S_NB=3; S_A=100; S_G=101; S_LOC=93; S_X=4
VL=255
SPIN=100000
XB_BYTES=2048*512*2; W_BYTES=512*1792*2; T_BYTES=512*512*2

def ls(a,idx):
    if CFG.get('lite') and idx!=10: return
    if diag() and not CFG.get('gap'): a(f"s_memrealtime s[96:97]\ns_waitcnt lgkmcnt(0)\nv_writelane_b32 v254, s96, {idx}")
def ls_first(a):
    if diag(): a(f"v_writelane_b32 v254, s94, 0")
def ls_dump(a):
    if diag(): a(f"s_lshl_b32 s98, s2, 11\ns_lshl_b32 s99, s{S_WAVE}, 8\ns_add_u32 s98, s98, s99\ns_add_u32 s98, s98, {WS_TRACE}\nv_lshlrev_b32 v253, 2, v{VL}\nbuffer_store_dword v254, v253, {sr(SWS)}, s98 offen sc1")
def kernel_probe(a):
    pa,pb=CFG['probe'].split(':'); K=CFG.get('K',10)
    name='probe_kernel'; kbegin(a,name); end=a.lab('end')
    a(f"s_memrealtime s[70:71]\ns_cmp_ge_u32 s2, 1\ns_cbranch_scc1 {end}")
    a("s_load_dwordx2 s[54:55], s[0:1], 88\ns_waitcnt lgkmcnt(0)")
    srd(a,SWS,P_WS,ws_end())
    a("v_lshlrev_b32 v1, 11, v0")
    for r,p in ((4,pa),(8,pb)):
        w,i=p[3:].split('.')
        for q in range(4):
            a(f"s_mov_b32 s60, {WS_TRACE+int(w)*256+int(i)*4+q*64*2048}\nbuffer_load_dword v{r+q}, v1, {sr(SWS)}, s60 offen")
    a("s_waitcnt vmcnt(0)\ns_nop 0\nv_readfirstlane_b32 s61, v4\ns_nop 3")
    for r in range(4,12): a(f"v_subrev_u32 v{r}, s61, v{r}")
    for r,p,sd in ((4,pa,62),(8,pb,63)):
        op=p[:3]
        vop={'min':'v_min_i32','max':'v_max_i32','avg':'v_add_u32'}[op]; sop={'min':'s_min_i32','max':'s_max_i32','avg':'s_add_u32'}[op]
        a(f"{vop} v{r}, v{r}, v{r+1}\n{vop} v{r+2}, v{r+2}, v{r+3}\n{vop} v{r}, v{r}, v{r+2}\ns_nop 0")
        a(f"v_readlane_b32 s{sd}, v{r}, 0")
        for l in range(1,64): a(f"v_readlane_b32 s64, v{r}, {l}\ns_nop 0\n{sop} s{sd}, s{sd}, s64")
        a(f"s_mul_i32 s{sd}, s{sd}, {K}")
        if op=='avg': a(f"s_ashr_i32 s{sd}, s{sd}, 8")
    if CFG.get('gap'): a(f"s_sub_u32 s63, s70, s61\ns_mul_i32 s63, s63, {K}")
    a("s_sub_u32 s62, s63, s62\ns_max_i32 s62, s62, 0\ns_min_i32 s62, s62, 100000")
    a("s_memrealtime s[66:67]\ns_waitcnt lgkmcnt(0)")
    lp=a.lab('spin')
    a(f"{lp}:\ns_memrealtime s[68:69]\ns_waitcnt lgkmcnt(0)\ns_sub_u32 s68, s68, s66\ns_cmp_lt_u32 s68, s62\ns_cbranch_scc1 {lp}")
    a(f"{end}:\ns_endpgm")
    return name

SLOT=49152
L_STAT=3*SLOT+8192; L_RSTD=L_STAT+2048; L_CS=L_RSTD+512
L_Y=16384; L_RED=32768; LDS=163840; L_SIG=LDS-16
NPRE=9
def pos(n):
    if n>=19: n-=19
    if n<6: return 2*SLOT+n*8192
    if n==6: return 3*SLOT
    return (n-7)*8192

def tile_map(a):
    a(f"""
    s_lshr_b32 s{S_LOC}, s2, 3
    s_and_b32 s{S_A}, s2, 1
    s_bfe_u32 s{S_G}, s2, 0x20001
    s_bfe_u32 s60, s2, 0x10002
    s_bfe_u32 s61, s2, 0x10001
    s_mul_i32 s62, s60, 7
    s_lshr_b32 s63, s2, 6
    s_lshl2_add_u32 s63, s61, s63
    s_and_b32 s64, s{S_LOC}, 3
    s_lshl2_add_u32 s65, s61, s64
    s_and_b32 s66, s{S_LOC}, 7
    s_cmp_ge_u32 s{S_LOC}, 24
    s_cselect_b32 s63, 3, s63
    s_cselect_b32 s66, s65, s66
    s_add_u32 s{S_J}, s62, s63
    s_lshl3_add_u32 s{S_X}, s{S_A}, s66
    s_lshl2_add_u32 s64, s{S_A}, s64
    s_lshl3_add_u32 s64, s61, s64
    s_add_u32 s60, s60, 14
    s_cmp_ge_u32 s{S_LOC}, 28
    s_cselect_b32 s{S_J}, s60, s{S_J}
    s_cselect_b32 s{S_I}, s64, s{S_X}
    """)
def tile_map2(a):
    a(f"""
    s_and_b32 s60, s2, 7
    s_bfe_u32 s62, s{S_LOC}, 0x10001
    s_lshl1_add_u32 s{S_T1}, s60, s62
    s_sub_u32 s62, 32, s{S_T1}
    s_cmp_eq_u32 s{S_T1}, 0
    s_cselect_b32 s62, 16, s62
    s_bitcmp1_b32 s{S_LOC}, 0
    s_cselect_b32 s{S_T1}, s62, s{S_T1}
    s_lshr_b32 s{S_NB}, s{S_LOC}, 2
    s_xor_b32 s{S_NB}, s{S_NB}, {CFG.get('nbx',4)}
    """)

def stage_rot(a,s,sh):
    r=CFG.get('rot',0)
    if r==0:
        for sg in range(7): a(f"s_mov_b32 s{80+sg}, {sg<<(sh+1)}")
        return
    a(f"s_and_b32 s{s}, s{S_LOC}, 1\ns_mul_i32 s{s}, s{s}, {3 if r==2 else 0}\ns_add_u32 s{s}, s{s}, s{S_NB}\ns_sub_u32 s62, s{s}, 7\ns_cmp_ge_u32 s{s}, 7\ns_cselect_b32 s{s}, s62, s{s}")
    for sg in range(7):
        a(f"s_lshl_b32 s{80+sg}, s{s}, {sh+1}\ns_add_u32 s{s}, s{s}, 1\ns_cmp_eq_u32 s{s}, 7\ns_cselect_b32 s{s}, 0, s{s}")

def epoch_load(a,v):
    a(f"v_mov_b32 v{v}, {WS_EP}\nglobal_load_dword v{v}, v{v}, s[{P_WS}:{P_WS+1}] sc1")
def epoch_tag(a,v):
    a(f"v_readfirstlane_b32 s{S_TAG}, v{v}\ns_nop 0\ns_mul_i32 s{S_TAG}, s{S_TAG}, 0x9e3779b1\ns_add_u32 s{S_TAG}, s{S_TAG}, 0x7f4a7c15\ns_not_b32 s{S_TAG+1}, s{S_TAG}")

SD=160; SA=253
def cs_ids(a):
    a(f"""
    s_and_b32 s61, s{S_X}, 3
    s_bfe_u32 s63, s{S_X}, 0x10002
    s_lshl1_add_u32 s63, s{S_J}, s63
    s_lshr_b32 s69, s{S_X}, 3
    """)
def cs_addr(a,sd):
    a(f"""
    s_mul_i32 s{sd}, s61, {3584*4}
    s_mul_i32 s62, s69, {1792*4}
    s_add_u32 s{sd}, s{sd}, s62
    s_lshl_b32 s62, s63, 8
    s_add_u32 s{sd}, s{sd}, s62
    s_add_u32 s{sd}, s{sd}, {WS_CS}
    """)
def row_ids(a):
    a(f"""
    s_and_b32 s71, s{S_LOC}, 7
    s_lshr_b32 s70, s{S_LOC}, 3
    s_and_b32 s62, s{S_G}, 1
    s_lshl2_add_u32 s70, s62, s70
    s_lshl3_add_u32 s70, s{S_A}, s70
    s_lshr_b32 s62, s{S_G}, 1
    s_lshl4_add_u32 s70, s62, s70
    """)
def st_addr(a,sd):
    a(f"s_lshl3_add_u32 s{sd}, s70, s71\ns_lshl_b32 s{sd}, s{sd}, 7\ns_add_u32 s{sd}, s{sd}, {WS_ST}")
def flag_addr(a,sd):
    a(f"s_lshl4_add_u32 s{sd}, s{S_I}, s{S_J}\ns_lshl_b32 s{sd}, s{sd}, 9\ns_add_u32 s{sd}, s{sd}, {WS_FL}")

def colsum_loads(a):
    a(f"""
    s_mul_i32 s72, s61, 3584
    s_lshl_b32 s62, s63, 7
    s_add_u32 s72, s72, s62
    s_mov_b32 s73, {32*3584}
    s_mov_b32 s66, {W_BYTES}
    s_mov_b32 s67, s{SX+3}
    s_mov_b32 s87, 0
    v_lshrrev_b32 v1, 3, v{VL}
    v_mul_u32_u24 v1, {4*3584}, v1
    v_and_b32 v2, 7, v{VL}
    v_lshl_add_u32 v1, v2, 4, v1
    s_cmp_eq_u32 s69, 1
    s_waitcnt lgkmcnt(0)
    s_cselect_b64 s[64:65], s[{P_WU}:{P_WU+1}], s[{P_WG}:{P_WG+1}]
    """)
    epoch_load(a,128)
    for n in range(16):
        a(f"buffer_load_dwordx4 {vr(160+4*n,4)}, v1, s[64:67], s72 offen")
        if n<15: a(f"s_add_u32 s72, s72, s73")
def colsum_finish(a):
    a(f"""
    v_and_b32 v140, 15, v{VL}
    v_and_b32 v141, 1, v140
    v_lshlrev_b32 v141, 4, v141
    v_mov_b32 v142, 0x3f80
    v_lshlrev_b32 v141, v141, v142
    v_lshrrev_b32 v140, 1, v140
    """)
    for p in range(4):
        a(f"v_cmp_eq_u32 vcc, {p}, v140\ns_nop 1\nv_cndmask_b32 v{132+p}, 0, v141, vcc")
    a(f"""
    v_and_b32 v140, 7, v{VL}
    v_lshlrev_b32 v140, 5, v140
    v_and_b32 v141, 16, v{VL}
    v_add3_u32 v140, v140, v141, s68
    v_and_b32 v141, 0x28, v{VL}
    v_cmp_eq_u32 vcc, 0, v141
    s_nop 1
    v_cndmask_b32 v{SA}, v{SA}, v140, vcc
    v_mov_b32 v140, 0x07060500
    v_mov_b32 v141, 0x07060501
    v_mov_b32 v142, 0x07060502
    v_mov_b32 v143, 0x07060503
    """)
    a("s_waitcnt vmcnt(16)"); epoch_tag(a,128)
    for n in range(16):
        a(f"s_waitcnt vmcnt({15-n})")
        a(f"{MF} v[136:139], v[132:135], {vr(160+4*n,4)}, {'0' if n==0 else 'v[136:139]'}")
    a("s_nop 7\ns_nop 1")
    for j in range(4):
        a(f"v_add_f32_dpp v{SD+j}, v{136+j}, v{136+j} row_ror:8 row_mask:0xf bank_mask:0xf")
    for j in range(4):
        a(f"v_perm_b32 v{SD+j}, v{SD+j}, s{S_TAG}, v{140+j}")
def rows_loads(a):
    a(f"""
    s_sub_u32 s60, s{S_WAVE}, 1
    s_lshl1_add_u32 s63, s70, s60
    s_lshl_b32 s62, s71, 8
    s_add_u32 s63, s63, s62
    s_lshl_b32 s63, s63, 10
    v_lshrrev_b32 v1, 4, v{VL}
    v_and_b32 v2, 15, v{VL}
    v_lshlrev_b32 v3, 4, v2
    v_lshl_add_u32 v3, v1, 16, v3
    s_waitcnt lgkmcnt(0)
    """)
    srd_lo(a,SX,P_X)
    epoch_load(a,128)
    for p in range(4):
        a(f"buffer_load_dwordx4 {vr(168+4*p,4)}, v3, {sr(SX)}, s63 offen offset:{256*p}")
def rows_finish(a):
    a(f"""
    v_and_b32 v141, 15, v{VL}
    v_cmp_eq_u32 vcc, 0, v141
    v_lshl_add_u32 v140, v{VL}, 1, s68
    v_mov_b32 v131, 0x3f803f80
    v_cndmask_b32 v{SA}, v{SA}, v140, vcc
    v_mov_b32 v132, 0
    v_mov_b32 v133, 0
    v_mov_b32 v134, 0x00003f80
    v_mov_b32 v135, 0x3f800000
    v_mov_b32 v136, 0
    v_mov_b32 v137, 0
    """)
    a("s_waitcnt vmcnt(4)"); epoch_tag(a,128)
    for p in range(4):
        a(f"s_waitcnt vmcnt({3-p})")
        for r in range(4):
            a(f"v_dot2c_f32_bf16 v{132+(r&1)}, v{168+4*p+r}, v131")
    a("s_nop 2\nv_add_f32 v132, v132, v133")
    def red(v):
        for s in (8,4,2,1):
            a(f"s_nop 1\nv_add_f32_dpp v{v}, v{v}, v{v} row_ror:{s} row_mask:0xf bank_mask:0xf")
    red(132)
    a(f"v_mul_f32 v132, {hx(-1.0/512)}, v132")
    for p in range(4):
        for r in range(4):
            a(f"v_dot2_f32_bf16 v{144+2*r}, v{168+4*p+r}, v134, v132\nv_dot2_f32_bf16 v{145+2*r}, v{168+4*p+r}, v135, v132")
        for r in range(8):
            a(f"v_fmac_f32 v{136+(r&1)}, v{144+r}, v{144+r}")
    a("v_add_f32 v136, v136, v137")
    red(136)
    a(f"""
    v_mul_f32 v136, {hx(1.0/512)}, v136
    v_cvt_pk_bf16_f32 v136, v136, v132
    v_and_b32 v{SD}, 0xffff0000, v136
    v_lshlrev_b32 v136, 16, v136
    v_add_f32 v136, {hx(1e-5)}, v136
    v_cvt_pk_bf16_f32 v136, v136, v136
    v_lshlrev_b32 v136, 16, v136
    v_sqrt_f32 v136, v136
    s_nop 0
    v_cvt_pk_bf16_f32 v136, v136, v136
    v_lshlrev_b32 v136, 16, v136
    v_rcp_f32 v{SD+3}, v136
    v_mul_f32 v{SD+2}, v136, v136
    v_mov_b32 v{SD+1}, s{S_TAG}
    buffer_store_dwordx4 {vr(SD,4)}, v{SA}, {sr(SWS)}, 0 offen sc1
    v_mov_b32 v{SA}, {OOB}
    """)

XA,XB,WA,WB=128,160,192,208
AX0,AX1,AW0,AW1=224,225,226,227
FC,FS,FN=228,236,244

def compute1_setup(a,spec):
    a(f"""
    v_and_b32 v129, 15, v{VL}
    v_lshrrev_b32 v130, 4, v{VL}
    v_lshrrev_b32 v131, 1, v129
    v_xor_b32 v131, v131, v130
    v_lshlrev_b32 v131, 4, v131
    v_lshl_add_u32 v{AX0}, v129, 7, v131
    v_xor_b32 v{AX1}, 64, v{AX0}
    s_mov_b32 s73, {SLOT}
    """)
    if spec:
        a(f"s_lshl_b32 s62, s{S_WAVE}, 12\nv_add_u32 v{AW0}, s62, v{AX0}\nv_add_u32 v{AW1}, s62, v{AX1}")
    else:
        a(f"""
        v_lshrrev_b32 v131, 2, v129
        v_and_b32 v132, 3, v129
        v_and_b32 v133, 1, v130
        v_lshl_or_b32 v133, v133, 2, v131
        s_lshl_b32 s62, s{S_WAVE}, 1
        v_xor_b32 v133, s62, v133
        v_lshlrev_b32 v133, 5, v133
        v_lshl_add_u32 v133, v132, 3, v133
        v_lshl_add_u32 v131, v130, 3, v131
        v_lshl_add_u32 v{AW0}, v131, 8, v133
        v_xor_b32 v{AW1}, 32, v{AW0}
        """)

TW=152
def spec_setup(a):
    a(f"""
    v_and_b32 v129, 15, v{VL}
    v_lshrrev_b32 v130, 4, v{VL}
    v_and_b32 v131, 3, v129
    v_lshrrev_b32 v132, 2, v129
    v_and_b32 v133, 1, v131
    v_lshrrev_b32 v134, 1, v131
    v_lshl_or_b32 v133, v134, 2, v133
    v_lshlrev_b32 v134, 1, v130
    v_xor_b32 v133, v133, v134
    v_lshlrev_b32 v133, 5, v133
    v_lshl_add_u32 v133, v132, 3, v133
    v_lshl_add_u32 v{AX0}, v131, 10, v133
    v_xor_b32 v{AX1}, 32, v{AX0}
    v_lshl_add_u32 v131, s{S_WAVE}, 4, v129
    v_lshlrev_b32 v{AW1}, 6, v130
    v_add_u32 v{AW1}, {L_RSTD}, v{AW1}
    v_cvt_f32_u32 v131, v131
    v_mul_f32 v131, {hx(-1/512.)}, v131
    v_add_f32 v132, v131, v131
    v_add_f32 v133, v132, v131
    v_mov_b32 v{TW}, 1.0
    v_mov_b32 v{TW+4}, 0
    """)
    for ph in range(1,4): a(f"v_cos_f32 v{TW+ph}, v{130+ph}\nv_sin_f32 v{TW+4+ph}, v{130+ph}")
    a(f"v_cvt_f32_u32 v130, v130\nv_cvt_f32_u32 v129, v129")
    a(f"v_mul_f32 v131, 4.0, v131\nv_mul_f32 v133, {hx(8.0)}, v130")
    for k in range(4):
        a(f"v_add_f32 v132, {hx(32.0*k)}, v133\nv_mul_f32 v132, v132, v131")
        for j in range(8):
            a(f"v_cos_f32 v{136+j}, v132\nv_sin_f32 v{144+j}, v132")
            if j<7: a("v_add_f32 v132, v132, v131")
        for p in range(4):
            a(f"v_cvt_pk_bf16_f32 v{192+4*k+p}, v{136+2*p}, v{137+2*p}\nv_cvt_pk_bf16_f32 v{208+4*k+p}, v{144+2*p}, v{145+2*p}")
    a(f"s_cmp_eq_u32 s{S_WAVE}, 0\ns_cselect_b32 s40, 0x00010001, 0\ns_mov_b32 s41, s40\nv_mov_b32 v132, 0xbf803f80")
    for r in range(16): a(f"v_cndmask_b32 v{208+r}, v{208+r}, v132, s[40:41]")
    for tb in range(2):
        a(f"v_add_f32 v131, {hx(16.0*tb)}, v129\nv_mul_f32 v131, {hx(1/32.)}, v131")
        for j in range(8):
            a(f"v_add_f32 v132, {hx(4.0*j)}, v130\nv_mul_f32 v132, v132, v131\nv_cos_f32 v{136+j}, v132\nv_sin_f32 v{144+j}, v132")
        for p in range(4):
            a(f"v_cvt_pk_bf16_f32 v{FC+4*tb+p}, v{136+2*p}, v{137+2*p}\nv_cvt_pk_bf16_f32 v{FS+4*tb+p}, v{144+2*p}, v{145+2*p}")
            a(f"v_xor_b32 v{FN+4*tb+p}, 0x80008000, v{FS+4*tb+p}")
    a(f"s_sub_u32 s62, s{S_J}, 14\ns_lshl1_add_u32 s62, s{S_I}, s62\ns_lshl4_add_u32 s62, s62, s{S_WAVE}\ns_lshl_b32 s62, s62, 7\ns_add_u32 s90, s62, {WS_G}")

def zero_acc(a):
    for r in range(0,128,2): a(f"v_mov_b64 v[{r}:{r+1}], 0")

def scalars2(a):
    tile_map2(a)
    srd(a,SX,P_X,XB_BYTES); srd(a,SWS,P_WS,ws_end()); srd(a,SOUT,P_OUT,XB_BYTES)
    a(f"""
    s_lshr_b32 s74, s{S_WAVE}, 1
    s_and_b32 s75, s{S_WAVE}, 1
    s_lshl_b32 s62, s75, 10
    s_add_u32 s62, s62, s{S_T1}
    s_lshl3_add_u32 s62, s62, s{S_NB}
    s_lshl1_add_u32 s62, s62, s74
    s_lshl_b32 s77, s62, 6
    s_add_u32 s78, s77, {16*32*1024}
    s_lshl1_add_u32 s62, s{S_T1}, s75
    s_mul_i32 s79, s62, {112*1024}
    s_and_b32 s63, s{S_T1}, 1
    s_lshl1_add_u32 s62, s63, s74
    s_lshl_b32 s62, s62, 11
    s_add_u32 s79, s79, s62
    """)
    stage_rot(a,76,12)

class S1:
    def __init__(self,a,spec): self.a=a; self.spec=spec
    def reads(self,k,buf,ts=range(8)):
        xb,wb=((XA,WA),(XB,WB))[buf]
        xs=[f"ds_read_b128 {vr(xb+4*i,4)}, v{AX0+k} offset:{t*2048}" for i,t in enumerate(ts)]
        ws=[]
        for g in range(4):
            if self.spec:
                ws.append(f"ds_read_b128 {vr(wb+4*g,4)}, v{AW0+k} offset:{16384+(g>>1)*16384+(g&1)*2048}")
            else:
                for rho in range(2):
                    ws.append(f"ds_read_b64_tr_b16 {vr(wb+4*g+2*rho,2)}, v{AW0+(g&1)} offset:{16384+(g>>1)*16384+k*8192+rho*1024}")
        return ws+xs
    def mfmas(self,buf,ts=range(8)):
        xb,wb=((XA,WA),(XB,WB))[buf]
        out=[]
        for i,t in enumerate(ts):
            for gg in range(4):
                g=gg if t%2==0 else 3-gg
                d=(t*4+g)*4
                x=vr(xb+4*i,4); w=vr(wb+4*g,4)
                p,q=(x,w) if self.spec else (w,x)
                out.append(f"{MF} {vr(d,4)}, {p}, {q}, {vr(d,4)}")
        return out
    def move(self,delta): return [f"v_add_u32 v{r}, {delta}, v{r}" for r in (AX0,AX1,AW0,AW1)]
    def weave(self,m,others):
        others=list(others)
        per=2 if len(m)<=24 else 1
        assert len(others)<=per*len(m)
        for x in m:
            self.a(x)
            for _ in range(per):
                if others: self.a(others.pop(0))
    def loop(self):
        a=self.a
        a(f"s_mov_b32 s70, 0\ns_mov_b32 s72, 6")
        if CFG.get('mt'): a("s_mov_b32 m0, 20")
        ls(a,1)
        a("s_barrier")
        ls(a,2)
        for l in self.reads(0,0): a(l)
        a(f"buffer_store_dwordx4 {vr(SD,4)}, v{SA}, {sr(SWS)}, 0 offen sc1")
        loop=a.lab('loop')
        if CFG.get('al',1): a(".p2align 6")
        a(f"{loop}:")
        a("s_waitcnt lgkmcnt(0)")
        if CFG.get('mt'): a("v_writelane_b32 v254, s96, m0\ns_add_u32 m0, m0, 1")
        self.weave(self.mfmas(0),self.reads(1,1)+["s_add_u32 s70, s70, 1\ns_cmp_eq_u32 s70, 3",f"s_cselect_b32 s71, {-2*SLOT}, s73\ns_cselect_b32 s70, 0, s70"]+self.move("s71"))
        a("s_waitcnt lgkmcnt(0)")
        bd=CFG.get('bd',0); m=self.mfmas(1)
        for x in m[:bd]: a(x)
        a("s_barrier")
        if CFG.get('mt'): a("s_memrealtime s[96:97]")
        self.weave(m[bd:],self.reads(0,0)+["s_sub_u32 s72, s72, 1\ns_cmp_lg_u32 s72, 0"])
        a(f"s_cbranch_scc1 {loop}")
    def half(self,h,last,spread=()):
        a=self.a; ts=range(4*h,4*h+4); sp=list(spread)
        def ex(l,k):
            l=list(l)
            if not sp: return l
            l+=[""]*(20-len(l))
            return l+[sp[2*k],"","","","","",sp[2*k+1]]
        a("s_waitcnt lgkmcnt(0)")
        self.weave(self.mfmas(0,ts),ex(self.reads(1,1,ts)+self.move(SLOT),0))
        a("s_waitcnt lgkmcnt(0)\ns_barrier")
        self.weave(self.mfmas(1,ts),ex(self.reads(0,0,ts),1))
        a("s_waitcnt lgkmcnt(0)")
        self.weave(self.mfmas(0,ts),ex(self.reads(1,1,ts)+(self.move(-SLOT) if h==0 else []),2))
        if h==1: a(f"s_waitcnt {'' if self.spec else 'vmcnt(0) '}lgkmcnt(0)\ns_barrier")
        else: a("s_waitcnt lgkmcnt(0)")
        self.weave(self.mfmas(1,ts),ex(last,3))

def epilogue_ffn_setup(a):
    a(f"""
    v_lshlrev_b32 v229, 4, v129
    v_add_u32 v229, {L_STAT}, v229
    v_and_b32 v131, 1, v130
    v_lshl_add_u32 v228, v131, 4, v129
    v_lshrrev_b32 v131, 1, v130
    v_lshl_add_u32 v228, v131, 7, v228
    s_lshl_b32 s62, s{S_WAVE}, 5
    v_add_u32 v228, s62, v228
    v_lshlrev_b32 v228, 2, v228
    v_add_u32 v228, {L_CS}, v228
    v_lshlrev_b32 v230, 4, v{VL}
    s_mul_i32 s62, s{S_I}, {8*56}
    s_lshl2_add_u32 s62, s{S_J}, s62
    s_add_u32 s62, s62, s{S_WAVE}
    s_lshl_b32 s62, s62, 10
    s_add_u32 s63, s62, {4*56*1024}
    s_bitcmp1_b32 s{S_J}, 0
    s_cselect_b32 s90, s63, s62
    s_cselect_b32 s92, s62, s63
    """)
ST=144
def ffn_stat_reads(h):
    out=[f"ds_read_b32 v{231+q}, v228 offset:{1024*q}" for q in range(4)] if h==0 else []
    return out+[f"ds_read_b128 {vr(ST+4*i,4)}, v229 offset:{256*(4*h+i)}" for i in range(4)]
def epilogue_ffn(a,h,nafter):
    a(f"s_waitcnt lgkmcnt({nafter})")
    if h==0:
        for q in range(4): a(f"v_and_b32 v{231+q}, 0xffffff00, v{231+q}")
        a("v_add_f32 v231, v231, v232\nv_add_f32 v233, v233, v234\nv_add_f32 v231, v231, v233\ns_nop 1")
    else: a("s_mov_b32 s90, s92")
    def corr(i): return f"v_mfma_f32_16x16x1_4b_f32 {vr(16*(4*h+i),16)}, v231, v{ST+4*i}, {vr(16*(4*h+i),16)}"
    def parts(i):
        t=4*h+i; b=16*t; s=ST+4*i; o=184+4*(i&1); T=(176,168)[i&1]
        A=[f"v_pk_mul_f32 {vr(T+2*p,2)}, {vr(b+2*p,2)}, {vr(s,2)} op_sel:[0,1] op_sel_hi:[1,1]" for p in range(4)]
        B=[f"v_exp_f32 v{T+p}, v{T+p}" for p in range(8)]
        C=[f"v_pk_mul_f32 {vr(b+2*p,2)}, {vr(b+2*p,2)}, {vr(b+8+2*p,2)}" for p in range(4)]
        D=[f"v_pk_fma_f32 {vr(T+2*p,2)}, {vr(T+2*p,2)}, {vr(s+2,2)}, {vr(s+2,2)} op_sel:[0,0,0] op_sel_hi:[1,0,0]" for p in range(4)]
        E=[f"v_rcp_f32 v{T+p}, v{T+p}" for p in range(8)]
        F=[f"v_pk_mul_f32 {vr(b+2*p,2)}, {vr(b+2*p,2)}, {vr(T+2*p,2)}" for p in range(4)]
        G=[f"v_cvt_pk_bf16_f32 v{o+p}, v{b+2*p}, v{b+2*p+1}" for p in range(4)]
        S=[f"buffer_store_dwordx4 {vr(o,4)}, v230, {sr(SWS)}, s90 offen sc1"+(f"\ns_add_u32 s90, s90, {56*1024}" if i<3 else "")]
        return A,B,C,D,E,F,G,S
    a(corr(0))
    for i in range(4): a(f"v_mul_f32 v{ST+4*i+1}, {hx(-LOG2E)}, v{ST+4*i+3}")
    a("s_nop 5")
    for i in range(4):
        A,B,C,D,E,F,G,S=parts(i)
        for x in A: a(x)
        if i<3: a(corr(i+1))
        for x in B+C+D+E+F+G+S: a(x)
def stage1_ffn(a):
    S=S1(a,False)
    S.loop()
    nxt=S.reads(0,0,range(4,8))
    S.half(0,ffn_stat_reads(0)+nxt)
    ls(a,3)
    epilogue_ffn(a,0,len(nxt))
    ls(a,14)
    S.half(1,ffn_stat_reads(1))
    ls(a,15)
    epilogue_ffn(a,1,0)

def stage1_spec(a):
    TF=192; XF=128; NX=6
    ls(a,1)
    a("s_barrier")
    ls(a,2)
    units=[(b,k) for b in range(16) for k in range(4)]
    def rd(n):
        b,k=units[n]; r=XF+4*(n%NX)
        return [f"ds_read_b64_tr_b16 {vr(r+2*rho,2)}, v{AX0+rho} offset:{b*4096+k*256}" for rho in range(2)]
    for n in range(NX-1):
        for l in rd(n): a(l)
    a(f"""
    v_lshrrev_b32 v252, 4, v{VL}
    v_and_b32 v253, 15, v{VL}
    v_lshlrev_b32 v253, 3, v253
    v_mul_u32_u24 v252, {4*GS()}, v252
    v_add_u32 v253, v253, v252
    """)
    if CFG.get('gw',0):
        a(f"v_and_b32 v252, 1, v{VL}\nv_mul_u32_u24 v252, {GS()-8}, v252\nv_add_u32 v253, v253, v252\ns_mov_b32 s66, 0x55555555\ns_mov_b32 s67, s66")
    for n,(b,k) in enumerate(units):
        left=min(len(units)-1-n,NX-2)
        a(f"s_waitcnt lgkmcnt({2*left})")
        if n+NX-1==32: a("s_barrier")
        nx=rd(n+NX-1) if n+NX-1<len(units) else ["",""]
        for ri in range(2):
            d=8*b+4*ri
            a(f"{MF} {vr(d,4)}, {vr(XF+4*(n%NX),4)}, {vr(TF+16*ri+4*k,4)}, {'0' if k==0 else vr(d,4)}")
            a(nx[ri])
    ls(a,3)
    a("s_barrier")
    ls(a,22)
    R=128; Q=144; O=(160,168); SU=176; Z=192
    for q in range(4): a(f"ds_read_b128 {vr(R+4*q,4)}, v{AW1} offset:{16*q}")
    a(f"s_mov_b32 s64, {hx(0.7071067811865476)}\ns_cmp_lg_u32 s{S_WAVE}, 0\ns_waitcnt lgkmcnt(0)")
    def combine(b):
        p=8*b; o=O[b&1]; r=R+(b&~1); sel="op_sel:[0,1] op_sel_hi:[1,1]" if b&1 else "op_sel_hi:[1,0]"
        for h in range(4): a(f"v_pk_mul_f32 {vr(p+2*h,2)}, {vr(p+2*h,2)}, {vr(r,2)} {sel}")
        for h in range(2):
            a(f"v_pk_mul_f32 {vr(Q+2*h,2)}, {vr(p+2*h,2)}, {vr(TW+2*h,2)}")
            a(f"v_pk_mul_f32 {vr(Q+4+2*h,2)}, {vr(p+4+2*h,2)}, {vr(TW+2*h,2)}")
        for h in range(2):
            a(f"v_pk_fma_f32 {vr(Q+2*h,2)}, {vr(p+4+2*h,2)}, {vr(TW+4+2*h,2)}, {vr(Q+2*h,2)} neg_lo:[1,0,0] neg_hi:[1,0,0]")
            a(f"v_pk_fma_f32 {vr(Q+4+2*h,2)}, {vr(p+2*h,2)}, {vr(TW+4+2*h,2)}, {vr(Q+4+2*h,2)}")
        a(f"v_pk_add_f32 {vr(SU,2)}, {vr(Q,2)}, {vr(Q+2,2)}")
        a(f"v_pk_add_f32 {vr(SU+2,2)}, {vr(Q+4,2)}, {vr(Q+6,2)}")
        a(f"v_pk_add_f32 {vr(SU+4,2)}, {vr(Q,2)}, {vr(Q+2,2)} neg_lo:[0,1] neg_hi:[0,1]")
        a(f"v_pk_add_f32 {vr(SU+6,2)}, {vr(Q+4,2)}, {vr(Q+6,2)} neg_lo:[0,1] neg_hi:[0,1]")
        a(f"v_pk_add_f32 {vr(o,2)}, {vr(SU,2)}, {vr(SU,2)} op_sel:[0,1] op_sel_hi:[0,1] neg_hi:[0,1]")
        a(f"v_pk_add_f32 {vr(o+2,2)}, {vr(SU+2,2)}, {vr(SU+2,2)} op_sel:[0,1] op_sel_hi:[0,1] neg_hi:[1,0]")
        a(f"v_pk_add_f32 {vr(o+4,2)}, {vr(SU+4,2)}, {vr(SU+6,2)} op_sel:[0,1] op_sel_hi:[0,1] neg_hi:[0,1]")
        a(f"v_pk_add_f32 {vr(o+6,2)}, {vr(SU+6,2)}, {vr(SU+4,2)} op_sel:[0,1] op_sel_hi:[0,1] neg_lo:[0,1] neg_hi:[1,1]")
        sk=a.lab('nsp')
        a(f"""
        s_cbranch_scc1 {sk}
        s_mov_b64 exec, s[40:41]
        v_mov_b32 v{o}, v{o+1}
        v_mov_b32 v{o+2}, 0
        v_mov_b32 v{o+4}, v{SU+4}
        v_sub_f32 v{o+6}, 0, v{SU+5}
        v_fma_f32 v{o+5}, s64, v{SU+7}, v{p+4}
        v_fma_f32 v{o+1}, -s64, v{SU+7}, v{p+4}
        v_fma_f32 v{o+7}, -s64, v{SU+3}, -v{p+6}
        v_fma_f32 v{o+3}, -s64, v{SU+3}, v{p+6}
        s_mov_b64 exec, -1
        {sk}:
        """)
    PL={0:(0,2),1:(5,7),2:(4,6),3:(1,3)}
    def acc(bl,pl,tb,ri): return 64*bl+((pl*2+tb)*2+ri)*4
    for bl in range(2):
        for jp in range(4):
            combine(8*bl+2*jp); combine(8*bl+2*jp+1)
            for pl in range(4):
                for ri in range(2):
                    a(f"v_cvt_pk_bf16_f32 v{Z+(pl*2+ri)*4+jp}, v{O[0]+PL[pl][ri]}, v{O[1]+PL[pl][ri]}")
        a("s_nop 1")
        if bl==1: ls(a,14)
        def pack(pl):
            out=[]
            if not CFG.get('gw',0):
                for tb in range(2):
                    for j in range(4):
                        o=128+2*((tb*4+j)+8*(pl&1))
                        out+=[f"v_cvt_pk_bf16_f32 v{o+b2}, v{acc(b2,pl,tb,0)+j}, v{acc(b2,pl,tb,1)+j}" for b2 in range(2)]
                        out.append(f"s_add_u32 s63, s90, {(16*tb+j)*GS()}\nbuffer_store_dwordx2 {vr(o,2)}, v253, {sr(SWS)}, s63 offen offset:{pl*512} sc1")
                return out
            P=128; W=160+16*(pl&1)
            for u in range(8):
                tb,j=divmod(u,4)
                out+=[f"v_cvt_pk_bf16_f32 v{P+2*u+b2}, v{acc(b2,pl,tb,0)+j}, v{acc(b2,pl,tb,1)+j}" for b2 in range(2)]
            dpp="quad_perm:[1,0,3,2] row_mask:0xf bank_mask:0xf"
            out.append("s_mov_b64 vcc, s[66:67]")
            for g in range(4):
                out+=[f"v_cndmask_b32_dpp v{W+4*g+b2}, v{P+4*g+2+b2}, v{P+4*g+b2}, vcc {dpp}" for b2 in range(2)]
            out.append("s_not_b64 vcc, vcc")
            for g in range(4):
                tb,jp=divmod(g,2)
                out+=[f"v_cndmask_b32_dpp v{W+4*g+2+b2}, v{P+4*g+b2}, v{P+4*g+2+b2}, vcc {dpp}" for b2 in range(2)]
                out.append(f"s_add_u32 s63, s90, {(16*tb+2*jp)*GS()}\nbuffer_store_dwordx4 {vr(W+4*g,4)}, v253, {sr(SWS)}, s63 offen offset:{pl*512} sc1")
            return out
        for pl in range(4):
            zr=vr(Z+pl*8,4); zi=vr(Z+pl*8+4,4)
            pk=pack(pl-2) if (bl==1 and pl>=2) else []
            for tb in range(2):
                for x in (f"{MF} {vr(acc(bl,pl,tb,0),4)}, {vr(FC+4*tb,4)}, {zr}, 0",
                          f"{MF} {vr(acc(bl,pl,tb,1),4)}, {vr(FC+4*tb,4)}, {zi}, 0",
                          f"{MF} {vr(acc(bl,pl,tb,0),4)}, {vr(FS+4*tb,4)}, {zi}, {vr(acc(bl,pl,tb,0),4)}",
                          f"{MF} {vr(acc(bl,pl,tb,1),4)}, {vr(FN+4*tb,4)}, {zr}, {vr(acc(bl,pl,tb,1),4)}"):
                    a(x)
                    for _ in range(3):
                        if pk: a(pk.pop(0))
            for x in pk: a(x)
    for x in pack(2)+pack(3): a(x)
    a("s_waitcnt vmcnt(0)")
    ls(a,15)
    a("s_barrier\ns_barrier")

PF=6
ACC=0; HF=32; WF=80; XP=224; AW=232; AH=244; AO=246
def wreads(n):
    b=WF+16*(n%NPRE); u=pos(n); k=u>>16
    return [f"ds_read_b64_tr_b16 {vr(b+4*eb+2*rho,2)}, v{AW+4*k+eb} offset:{(u&0xffff)+rho*2048}" for eb in range(4) for rho in range(2)]
def head2(a,stores):
    ls(a,4)
    stores=list(stores)
    if stores: a(stores.pop(0))
    a(f"""
    v_and_b32 v38, 15, v{VL}
    v_lshrrev_b32 v34, 4, v{VL}
    v_lshrrev_b32 v35, 2, v38
    v_and_b32 v36, 3, v38
    v_lshl_add_u32 v35, v34, 2, v35
    v_bfe_u32 v37, v35, 1, 2
    s_lshl_b32 s62, s74, 1
    v_xor_b32 v37, s62, v37
    v_lshlrev_b32 v37, 5, v37
    v_lshl_add_u32 v37, v36, 3, v37
    v_lshl_add_u32 v37, v35, 7, v37
    s_lshl_b32 s62, s74, 12
    v_add_u32 v{AW}, s62, v37
    """)
    for eb in range(1,4): a(f"v_xor_b32 v{AW+eb}, {eb<<5}, v{AW}")
    for eb in range(4): a(f"v_add_u32 v{AW+4+eb}, 0x10000, v{AW+eb}")
    other=[f"v_add_u32 v{AW+8+eb}, 0x20000, v{AW+eb}" for eb in range(4)]+f"""
    v_lshlrev_b32 v35, 15, v38
    v_and_b32 v36, 1, v34
    v_lshlrev_b32 v36, 5, v36
    v_lshrrev_b32 v37, 1, v34
    v_lshl_add_u32 v36, v37, 4, v36
    v_add_u32 v{AO}, v35, v36
    v_lshl_add_u32 v37, s74, 2, v37
    v_xor_b32 v37, v37, v38
    v_and_b32 v37, 7, v37
    v_lshlrev_b32 v37, 4, v37
    v_and_b32 v36, 1, v34
    v_lshl_add_u32 v37, v36, 3, v37
    v_lshl_add_u32 v37, v38, 7, v37
    s_lshl_b32 s62, s75, 12
    s_add_u32 s62, s62, {L_STAT}
    v_add_u32 v247, s62, v37
    v_xor_b32 v248, 32, v247
    v_lshl_add_u32 v{AH}, v{VL}, 4, s79
    v_add_u32 v{AH+1}, {56*1024}, v{AH}
    """.split('\n')
    other=[x for x in other if x.strip()]
    PB=CFG.get('pb',4)
    k=0
    for n in range(PB):
        for l in wreads(n):
            if stores and k%4==0: a(stores.pop(0))
            a(l); k+=1
            if other: a(other.pop(0))
    for x in other+stores: a(x)

def compute2(a):
    head2(a,[])
    LC=CFG.get('lc',8); BY=CFG.get('by',14)
    vm=VM(); vm.op('st')
    def hload(n,t):
        sg,k=divmod(n,2); b=HF+8*(n%PF)
        a(f"buffer_load_dwordx4 {vr(b+4*t,4)}, v{AH+t}, {sr(SWS)}, s{80+sg%7} offen offset:{k*1024} sc1"); vm.op(f"h{n}")
    ls(a,5)
    a("s_barrier")
    ls(a,18)
    nh=CFG.get('nh',3)
    for n in range(nh):
        for t in range(2): hload(n,t)
    for n in range(CFG.get('pb',4),NPRE):
        for l in wreads(n): a(l)
    ls(a,7)
    a(f"s_waitcnt vmcnt({vm.need('st')}) lgkmcnt(0)\ns_barrier")
    for n in range(nh,PF):
        for t in range(2): hload(n,t)
    ls(a,12)
    XR=WF+16*2
    tailwork=[]
    for i in range(8):
        tailwork+=[f"v_lshlrev_b32 v{XR+2*i}, 16, v{XP+i}",f"v_and_b32 v{XR+2*i+1}, 0xffff0000, v{XP+i}"]
    tailwork+=[f"v_lshlrev_b32 v249, 4, v{VL}",f"s_lshl_b32 s62, s{S_WAVE}, 12",f"s_add_u32 s62, s62, {L_RED}","v_add_u32 v250, s62, v249","v_xor_b32 v251, 8192, v250",
               "s_lshl2_add_u32 s62, s74, s75","s_lshl_b32 s62, s62, 11",f"s_add_u32 s62, s62, {L_Y}","v_add_u32 v252, s62, v249",f"s_mov_b32 s64, {hx(-LOG2E)}","s_mov_b32 s65, s64"]
    for n in range(28):
        need=[f"h{n}"]
        w=f"s_waitcnt vmcnt({vm.need(*need)})"
        if n>=NPRE: w+=f" lgkmcnt({8 if n<27 else 0})"
        a(w)
        if n==0: ls(a,11)
        if n==LC:
            if CFG.get('ct'): ls(a,13)
            a("s_barrier")
            if CFG.get('ct'): ls(a,19)
            a(f"v_xor_b32 v{AH}, 4096, v{AH}\nv_xor_b32 v{AH+1}, 4096, v{AH+1}")
            for m in range(14,LC+PF):
                for t in range(2): hload(m,t)
        if n==BY:
            if CFG.get('ct'): ls(a,16)
            a("s_barrier")
            if CFG.get('ct'): ls(a,17)
        if n==20:
            for t in range(2):
                for eb in range(2): a(f"ds_read_b64 {vr(XP+4*t+2*eb,2)}, v{247+eb} offset:{t*2048}")
        r=wreads(n+2) if NPRE<=n+2<28 else []
        hb=HF+8*(n%PF); wb=WF+16*(n%NPRE)
        order=[(t,(ee if t==0 else 3-ee)) for t in range(2) for ee in range(4)]
        if n==27: order=[(0,2),(0,3),(1,3),(1,2),(1,1),(1,0),(0,0),(0,1)]
        for i,(t,eb) in enumerate(order):
            d=ACC+(t*4+eb)*4
            a(f"{MF} {vr(d,4)}, {vr(wb+4*eb,4)}, {vr(hb+4*t,4)}, {'0' if n==0 else vr(d,4)}")
            if i<len(r): a(r[i])
            if n+PF<28 and i in (3,7) and (n+PF<14 or n>=LC): hload(n+PF,i//4)
            if n>=23 and tailwork: a(tailwork.pop(0))
    assert not tailwork and LC>=14-PF
    ls(a,8)
    a("s_nop 3")
    for t,eb in ((0,0),(0,1),(1,1),(1,0)):
        a(f"ds_write_b128 v250, {vr(ACC+(t*4+2+eb)*4,4)} offset:{(t*2+eb)*1024}")
    a("s_waitcnt lgkmcnt(0)\ns_barrier")
    RD=32; Y=48; T=64
    for t in range(2):
        for eb in range(2):
            a(f"ds_read_b128 {vr(RD+(t*2+eb)*4,4)}, v251 offset:{(t*2+eb)*1024}")
        for eb in range(2):
            a(f"ds_read_b128 {vr(Y+(t*2+eb)*4,4)}, v252 offset:{eb*4096+t*1024}")
    ofl=CFG.get('ofl','sc1').replace('none','').replace('+',' ')
    for t in range(2):
        b=ACC+t*16
        a(f"s_waitcnt lgkmcnt({6-4*t})")
        for p in range(4): a(f"v_pk_add_f32 {vr(b+2*p,2)}, {vr(b+2*p,2)}, {vr(RD+t*8+2*p,2)}")
        for p in range(4): a(f"v_pk_mul_f32 {vr(T+2*p,2)}, {vr(b+2*p,2)}, s[64:65]")
        for p in range(8): a(f"v_exp_f32 v{T+p}, v{T+p}")
        a(f"s_waitcnt lgkmcnt({4-4*t})")
        for p in range(4): a(f"v_pk_mul_f32 {vr(b+2*p,2)}, {vr(b+2*p,2)}, {vr(Y+t*8+2*p,2)}")
        for p in range(4): a(f"v_pk_add_f32 {vr(T+2*p,2)}, {vr(T+2*p,2)}, 1.0 op_sel_hi:[1,0]")
        for p in range(8): a(f"v_rcp_f32 v{T+p}, v{T+p}")
        for p in range(4): a(f"v_pk_fma_f32 {vr(b+2*p,2)}, {vr(b+2*p,2)}, {vr(T+2*p,2)}, {vr(XR+t*8+2*p,2)}")
        o=72+4*t
        for p in range(4): a(f"v_cvt_pk_bf16_f32 v{o+p}, v{b+2*p}, v{b+2*p+1}")
        a(f"s_nop 1\nv_permlane16_swap_b32 v{o}, v{o+2}\nv_permlane16_swap_b32 v{o+1}, v{o+3}")
        a(f"buffer_store_dwordx4 {vr(o,4)}, v{AO}, {sr(SOUT)}, s{77+t} offen {ofl}")
    ls(a,9)
    if diag() and not CFG.get('gap'):
        a("s_waitcnt vmcnt(0)"); ls(a,10)
        ls_dump(a)

class Loader:
    def __init__(self,a): self.a=a; self.vm=VM(); self.m0=None; self.fill=[]; self.extra=[]; self.thr=0; self.regs={}
    def setm0(self,val):
        a=self.a
        if self.m0 is not None and -32768<=val-self.m0<=32767: a(f"s_addk_i32 m0, {val-self.m0}")
        else: a(f"s_add_u32 m0, s92, {val}")
        self.m0=val
    def dma(self,lds,vaddr,srdn,soff,tag,pre=None):
        self.setm0(lds)
        self.a(pre if pre else (self.fill.pop(0) if self.fill else "s_nop 0"))
        self.a(f"buffer_load_dwordx4 v{vaddr}, {sr(srdn)}, {soff} offen lds"); self.vm.op(tag)
        if self.extra: self.a(self.extra.pop(0))
        if self.thr: self.a(f"s_waitcnt vmcnt({self.thr})")
    def issue(self,c,lo=0,hi=4):
        slot=c%3
        for p in range(lo,hi):
            self.dma(slot*SLOT+p*4096,10,SX,f"s{64+p}",f"c{c}")
            self.fill.append(f"s_addk_i32 s{64+p}, 128")
            self.dma(slot*SLOT+16384+p*4096,11,SB0,f"s{68+p}",f"c{c}")
            self.dma(slot*SLOT+32768+p*4096,11,SB1,f"s{68+p}",f"c{c}")
            self.fill.append(f"s_add_u32 s{68+p}, s{68+p}, s72")
    def wd_off(self,n,kh):
        sg,k=divmod(n,2)
        return f"s_add_u32 s62, s{80+sg%7}, {(kh*64+32*k)*1024}"
    def wd(self,n,tag='wd'):
        for kh in range(2):
            self.dma(pos(n)+kh*4096,18 if n<14 else 17,SWD,"s62",tag,pre=self.wd_off(n,kh))
    def wreg(self,n):
        self.regs[n]=128+8*len(self.regs)
        for kh in range(2):
            self.a(self.wd_off(n,kh))
            self.a(f"buffer_load_dwordx4 {vr(self.regs[n]+4*kh,4)}, v{18 if n<14 else 17}, {sr(SWD)}, s62 offen"); self.vm.op('wr')
            if self.thr: self.a(f"s_waitcnt vmcnt({self.thr})")
    def put(self,n):
        u=pos(n)
        for kh in range(2):
            self.a(f"ds_write_b128 v{(21,23,34)[u>>16]}, {vr(self.regs[n]+4*kh,4)} offset:{(u&0xffff)+kh*4096}")
    def bar(self,c,*tags):
        a=self.a
        a(f"s_waitcnt vmcnt({self.vm.need(*tags)})")
        if CFG.get('lt',0): ls(a,2+2*c)
        a("s_barrier")
        if CFG.get('lt',0): ls(a,3+2*c)

def loader_start(a,L):
    sp=a.lab('lsp'); jn=a.lab('ljn')
    a(f"""
    s_sub_u32 s74, s{S_WAVE}, 4
    s_lshl_b32 s92, s74, 10
    v_lshrrev_b32 v1, 3, v{VL}
    v_lshl_add_u32 v1, s74, 3, v1
    v_bfe_u32 v2, v1, 1, 3
    v_and_b32 v3, 7, v{VL}
    v_xor_b32 v2, v2, v3
    v_lshlrev_b32 v2, 4, v2
    s_mov_b32 s{SB0+2}, {W_BYTES}
    s_mov_b32 s{SB0+3}, s{SX+3}
    s_mov_b32 s{SB1+2}, s{SB0+2}
    s_mov_b32 s{SB1+3}, s{SX+3}
    s_cmp_ge_u32 s{S_J}, 14
    s_cbranch_scc1 {sp}
    v_lshl_add_u32 v10, v1, 15, v2
    v_lshrrev_b32 v3, 4, v{VL}
    v_lshl_add_u32 v4, s74, 2, v3
    v_mul_u32_u24 v4, 3584, v4
    s_lshr_b32 s62, s74, 1
    v_lshl_or_b32 v3, s62, 2, v3
    v_lshlrev_b32 v3, 1, v3
    v_and_b32 v5, 15, v{VL}
    v_xor_b32 v3, v3, v5
    v_lshl_add_u32 v11, v3, 4, v4
    s_and_b32 s64, s{S_J}, 1
    s_lshl1_add_u32 s64, s{S_I}, s64
    s_lshl_b32 s64, s64, 10
    s_add_u32 s65, s64, 0x100000
    s_xor_b32 s66, s64, 0x400
    s_xor_b32 s67, s65, 0x400
    s_lshl_b32 s68, s{S_J}, 8
    s_mov_b32 s62, {16*3584}
    s_mov_b32 s72, {64*3584}
    s_add_u32 s69, s68, s62
    s_add_u32 s70, s69, s62
    s_add_u32 s71, s70, s62
    s_branch {jn}
    {sp}:
    s_and_b32 s62, s74, 1
    s_lshr_b32 s63, s74, 1
    s_lshl2_add_u32 s62, s63, s62
    s_lshl_b32 s62, s62, 1
    v_xor_b32 v10, s62, v{VL}
    v_lshlrev_b32 v10, 4, v10
    v_mov_b32 v11, v10
    s_sub_u32 s62, s{S_J}, 14
    s_lshl1_add_u32 s62, s{S_I}, s62
    s_lshl_b32 s64, s74, 5
    s_add_u32 s64, s64, s62
    s_lshl_b32 s64, s64, 11
    {jn}:
    s_waitcnt lgkmcnt(0)
    """)
    srd_lo(a,SX,P_X); srd_lo(a,SB0,P_WG); srd_lo(a,SB1,P_WU)
    ls_first(a)
    if CFG.get('ldelay',0): a(f"s_sleep {CFG['ldelay']}")
    ls(a,1)

def loader(a,L):
    vm=L.vm
    CB=64; GA=36; YA=224; XT=52
    epoch_load(a,9)
    n0=CFG.get('n0',3)
    LS=Loader(a)
    def xrows(lo,hi):
        for b in range(lo,hi):
            LS.dma(b*4096,10,SX,"s62",'x' if b>=8 else 'x0',pre=f"s_add_u32 s62, s64, {(b&7)*0x40000+(b>>3)*0x400}")
    def fork(ffn,spec):
        l1=a.lab('fs'); l2=a.lab('fj')
        a(f"s_cmp_ge_u32 s{S_J}, 14\ns_cbranch_scc1 {l1}"); ffn(); a(f"s_branch {l2}\n{l1}:"); spec(); a(f"{l2}:")
    fork(lambda: L.issue(0,0,n0), lambda: xrows(0,8))
    tile_map2(a)
    a(f"""
    v_and_b32 v12, 15, v{VL}
    v_lshrrev_b32 v13, 4, v{VL}
    s_mov_b32 s63, {hx(1/2048.)}
    s_mov_b32 s60, 0x8000
    s_mov_b32 s61, 0x80000000
    s_cmp_ge_u32 s{S_NB}, 4
    s_cselect_b32 s90, {hx(-1/2048.)}, s63
    s_cselect_b32 s75, s61, s60
    s_cselect_b32 s73, s60, s61
    v_lshlrev_b32 v2, 2, v13
    v_cvt_f32_u32 v2, v2
    v_lshl_add_u32 v3, v12, 5, s{S_T1}
    v_cvt_f32_u32 v3, v3
    v_mul_f32 v3, s90, v3
    """)
    for k in range(4):
        c=lambda tb,b: CB+(tb*4+k)*4+b
        a(f"v_add_f32 v40, {hx(16.0*k)}, v2\nv_mul_f32 v40, v40, v3\nv_add_f32 v41, v40, v3\nv_add_f32 v42, v41, v3\nv_add_f32 v43, v42, v3")
        for b in range(4): a(f"v_cos_f32 v{44+b}, v{40+b}\nv_sin_f32 v{48+b}, v{40+b}")
        for b in range(4): a(f"v_cvt_pk_bf16_f32 v{c(0,b)}, v{44+b}, v{48+b}")
        a(f"v_cvt_pk_bf16_f32 v40, v49, v45\nv_cvt_pk_bf16_f32 v41, v51, v47")
        for tb in range(1,4): a(f"v_mov_b32 v{c(tb,0)}, v{c(0,0)}")
        a(f"v_xor_b32 v{c(1,1)}, s75, v40\nv_xor_b32 v{c(3,1)}, s73, v40\nv_xor_b32 v{c(1,3)}, s73, v41\nv_xor_b32 v{c(3,3)}, s75, v41")
        a(f"v_xor_b32 v{c(2,1)}, 0x80008000, v{c(0,1)}\nv_xor_b32 v{c(2,3)}, 0x80008000, v{c(0,3)}")
        a(f"v_xor_b32 v{c(1,2)}, 0x80008000, v{c(0,2)}\nv_mov_b32 v{c(2,2)}, v{c(0,2)}\nv_mov_b32 v{c(3,2)}, v{c(1,2)}")
    fork(lambda: (L.issue(0,n0,4), L.issue(1,0,CFG.get('i1',2))), lambda: xrows(8,16))
    srd(a,SWS,P_WS,ws_end()); srd(a,SWD,P_WD,W_BYTES)
    a(f"""
    v_and_b32 v6, 7, v{VL}
    v_lshlrev_b32 v5, 1, v13
    v_xor_b32 v6, v6, v5
    v_lshlrev_b32 v6, 4, v6
    v_lshl_add_u32 v6, v1, 10, v6
    s_and_b32 s60, s{S_T1}, 1
    s_lshl_b32 s60, s60, 10
    s_add_u32 s60, s60, s{S_NB}
    v_lshl_add_u32 v18, s60, 7, v6
    v_xor_b32 v17, 0x20000, v18
    """)
    stage_rot(a,60,17)
    a(f"""
    s_lshl2_add_u32 s60, s2, s74
    s_mul_i32 s60, s60, 1792
    s_add_u32 s76, s{P_WD}, s60
    s_addc_u32 s77, s{P_WD+1}, 0
    s_lshl2_add_u32 s60, s{S_LOC}, s74
    s_mul_i32 s60, s60, {14*1024}
    s_add_u32 s60, s60, 384
    s_add_u32 s78, s{P_WD}, s60
    s_addc_u32 s79, s{P_WD+1}, 0
    """)
    sp2=a.lab('gspec'); j2=a.lab('gjoin')
    a(f"v_and_b32 v5, 31, v{VL}\ns_and_b32 s60, s74, 1\ns_lshr_b32 s63, s74, 1\ns_cmp_ge_u32 s{S_J}, 14\ns_cbranch_scc1 {sp2}")
    a(f"v_and_b32 v3, 1, v5\nv_lshlrev_b32 v3, 10, v3\nv_and_b32 v4, 30, v5\ns_and_b32 s61, s{S_J}, 1\ns_xor_b32 s63, s63, s61\ns_lshl1_add_u32 s61, s{S_I}, s60\ns_lshl_b32 s61, s61, 5\ns_add_u32 s61, s61, s63\nv_add3_u32 v20, v3, v4, s61\ns_branch {j2}\n{sp2}:")
    a(f"s_lshl1_add_u32 s61, s{S_I}, s{S_J}\ns_sub_u32 s61, s61, 14\ns_lshl_b32 s61, s61, 6\nv_and_b32 v3, 7, v12\nv_lshl_add_u32 v3, v3, 2, v13\nv_lshrrev_b32 v4, 3, v12\nv_lshl_add_u32 v3, v3, 1, v4\nv_add_u32 v20, s61, v3\n{j2}:")
    a(f"""
    v_lshlrev_b32 v20, 4, v20
    v_lshlrev_b32 v5, 4, v5
    v_lshrrev_b32 v6, 5, v{VL}
    v_mul_u32_u24 v6, {1792*4}, v6
    s_lshl_b32 s61, s{S_J}, 9
    v_add3_u32 v22, v5, v6, s61
    s_mul_i32 s88, s74, {3584*4}
    s_add_u32 s88, s88, {WS_CS}
    s_mov_b32 s87, {WS_ST}
    v_mov_b32 v15, 0x0c0c0400
    v_mov_b32 v16, 0x04000c0c
    v_lshl_add_u32 v21, v{VL}, 4, s92
    v_add_u32 v23, 0x10000, v21
    """)
    a(f"""
    s_lshl2_add_u32 s60, s{S_NB}, s74
    s_lshl_b32 s60, s60, 4
    v_add_u32 v3, s60, v12
    v_sub_u32 v4, 512, v3
    s_sub_u32 s61, 32, s{S_T1}
    s_and_b32 s61, s61, 31
    s_cmp_ge_u32 s{S_NB}, 4
    s_cselect_b32 s61, s61, s{S_T1}
    s_cselect_b64 vcc, -1, 0
    s_mul_i32 s61, s61, {GS()}
    s_add_u32 s91, s61, {WS_G}
    v_cndmask_b32 v4, v3, v4, vcc
    v_and_b32 v5, 64, v4
    v_cmp_ne_u32 vcc, 0, v5
    v_sub_u32 v5, 0, v4
    v_and_b32 v6, 0xc0, v4
    v_cndmask_b32 v4, v4, v5, vcc
    v_and_or_b32 v4, v4, 63, v6
    v_lshlrev_b32 v4, 3, v4
    v_cmp_eq_u32 vcc, 0, v3
    v_lshl_add_u32 v4, v13, 12, v4
    v_mov_b32 v5, {OOB}
    v_cndmask_b32 v19, v4, v5, vcc
    v_bfe_u32 v5, v{VL}, 1, {4 if CFG.get('gm',1) else 2}
    {'' if CFG.get('gm',1) else 'v_lshl_add_u32 v5, s74, 2, v5'}
    v_and_b32 v6, 1, v{VL}
    v_lshl_add_u32 v5, v5, 4, v6
    v_lshlrev_b32 v14, 9, v5
    s_mov_b32 s53, {WS_FL+14*512+256}
    v_lshrrev_b32 v5, 3, v{VL}
    v_xor_b32 v6, v5, v{VL}
    v_and_b32 v6, 7, v6
    v_lshlrev_b32 v6, 4, v6
    v_lshl_add_u32 v35, v5, 15, v6
    s_lshl_b32 s52, s74, 9
    s_add_u32 s52, s52, s{S_T1}
    s_lshl3_add_u32 s52, s52, s{S_NB}
    s_lshl_b32 s52, s52, 7
    s_lshr_b32 s61, s{S_T1}, 1
    s_and_b32 s63, s{S_T1}, 1
    s_lshl4_add_u32 s61, s61, s63
    s_lshl_b32 s61, s61, 9
    s_add_u32 s61, s61, {WS_FL}
    s_xor_b32 s63, s61, 0x300
    s_add_u32 s34, s{P_WS}, s61
    s_addc_u32 s35, s{P_WS+1}, 0
    s_add_u32 s36, s{P_WS}, s63
    s_addc_u32 s37, s{P_WS+1}, 0
    """)
    flag_addr(a,61)
    a(f"s_add_u32 s42, s{P_WS}, s61\ns_addc_u32 s43, s{P_WS+1}, 0\nv_and_b32 v5, 1, v{VL}\nv_lshlrev_b32 v5, 8, v5\nbuffer_load_dwordx2 v[32:33], v5, {sr(SWS)}, s61 offen sc1"); vm.op('old'); LS.vm.op('old')
    sl=[f"s_load_dword s95, s[76:77], {q*64}" for q in range(28)]+[f"s_load_dword s95, s[78:79], {(q//2)*1024+(q&1)*64}" for q in range(28)]
    if CFG.get('spm')==1: sl=[x for p in zip(sl[:28],sl[28:]) for x in p]
    if CFG.get('spm')==2: sl=sl[28:]+sl[:28]
    ss=[int(c,16) for c in str(CFG.get('sps','e770000')).zfill(7)]
    def spf(rnd):
        if not CFG.get('spf',1): return
        for _ in range(ss[rnd]):
            if sl: a(sl.pop(0))
    def gather():
        a(f"buffer_load_dwordx4 v[24:27], v20, {sr(SWS)}, s87 offen sc1\nbuffer_load_dwordx4 v[28:31], v22, {sr(SWS)}, s88 offen sc1")
    R=(64,66,68,70,72,76,78)
    def watch_issue(base):
        sk=a.lab('nw')
        a(f"s_cmp_lg_u32 s74, 3\ns_cbranch_scc1 {sk}")
        for q in range(7): a(f"s_load_dwordx2 s[{R[q]}:{R[q]+1}], s[{base}:{base+1}], {q*1024} glc")
        a(f"{sk}:")
    def watch(base):
        np_=a.lab('nopoll'); lp=a.lab('poll'); ck=a.lab('chk')
        a(f"s_cmp_lg_u32 s74, 3\ns_cbranch_scc1 {np_}\ns_mov_b32 s89, {SPIN}\ns_branch {ck}\n{lp}:")
        for q in range(7): a(f"s_load_dwordx2 s[{R[q]}:{R[q]+1}], s[{base}:{base+1}], {q*1024} glc")
        a(f"s_sub_u32 s89, s89, 1\ns_cbranch_scc1 {np_}\n{ck}:\ns_waitcnt lgkmcnt(0)")
        for q in range(7): a(f"s_cmp_lg_u64 s[{R[q]}:{R[q]+1}], s[{S_TAG}:{S_TAG+1}]\ns_cbranch_scc1 {lp}")
        a(f"{np_}:")
    def raise_flag(h):
        sk=a.lab('nf')
        if h==1: a(f"s_cmp_ge_u32 s{S_J}, 14\ns_cbranch_scc1 {sk}")
        a(f"s_cmp_lg_u32 s74, 0\ns_cbranch_scc1 {sk}\ns_atomic_add_x2 s[{44+2*h}:{45+2*h}], s[42:43], {256*h}\n{sk}:")
    regq=list(range(19,28))+(list(range(13,19)) if CFG.get('r12',1) else [])
    sched=[int(c,16) for c in str(CFG.get('wrs','122100')).zfill(6)]
    def wregs(k):
        for _ in range(k):
            if regq: L.wreg(regq.pop(0))
    def xtile(v):
        a(f"buffer_load_dwordx4 {vr(XT,4)}, v35, {sr(SX)}, s52 offen\ns_add_u32 s52, s52, 0x40000\nbuffer_load_dwordx4 {vr(XT+4,4)}, v35, {sr(SX)}, s52 offen"); v.op('xt'); v.op('xt')
    def gloads(v):
        for k in range(4):
            a(f"buffer_load_dwordx2 {vr(GA+4*k,2)}, v19, {sr(SWS)}, s91 offen sc1\nbuffer_load_dwordx2 {vr(GA+4*k+2,2)}, v19, {sr(SWS)}, s91 offen offset:2048 sc1\ns_add_u32 s91, s91, {4*4096}"); v.op('gl'); v.op('gl')
    def gpoll(v): a(f"buffer_load_dwordx2 v[24:25], v14, {sr(SWS)}, s53 offen sc1"); v.op('gp')
    def gcheck(v):
        lp=a.lab('poll'); ok=a.lab('ok')
        a(f"s_waitcnt vmcnt({v.need('gp')})\ns_mov_b32 s89, {SPIN}\n{lp}:\nv_cmp_ne_u64 vcc, s[{S_TAG}:{S_TAG+1}], v[24:25]\ns_cbranch_vccz {ok}")
        a(f"s_sleep 4\nbuffer_load_dwordx2 v[24:25], v14, {sr(SWS)}, s53 offen sc1\ns_waitcnt vmcnt(0)\ns_sub_u32 s89, s89, 1\ns_cbranch_scc0 {lp}\n{ok}:")
    flagdelta=[f"v_readlane_b32 s44, v32, 0",f"v_readlane_b32 s45, v33, 0",f"v_readlane_b32 s46, v32, 1",f"v_readlane_b32 s47, v33, 1","s_nop 0",
             f"s_sub_u32 s44, s{S_TAG}, s44\ns_subb_u32 s45, s{S_TAG+1}, s45\ns_sub_u32 s46, s{S_TAG}, s46\ns_subb_u32 s47, s{S_TAG+1}, s47"]
    lspec=a.lab('lspec'); ltail=a.lab('ltail')
    a(f"v_add_u32 v34, 0x20000, v21")
    spf(0)
    a(f"s_cmp_ge_u32 s{S_J}, 14\ns_cbranch_scc1 {lspec}")
    sl_keep=list(sl)
    L.bar(0,'c0')
    L.issue(1,CFG.get('i1',2),4); L.issue(2,0,CFG.get('i2',2)); spf(1); wregs(sched[0])
    epoch_tag(a,9)
    L.bar(1,'c1','old')
    L.extra=list(flagdelta)
    L.issue(2,CFG.get('i2',2),4); L.issue(3); spf(2); wregs(sched[1])
    L.bar(2,'c2')
    L.issue(4); spf(3); wregs(sched[2]); xtile(vm)
    L.bar(3,'c3')
    gather(); vm.op('g'); vm.op('g')
    L.issue(5); spf(4); wregs(sched[3])
    L.bar(4,'c4','g')
    check=["v_perm_b32 v3, v29, v28, v15","v_perm_b32 v4, v31, v30, v16",f"v_xor_b32 v5, s{S_TAG}, v25","v_or_b32 v3, v3, v4",f"v_xor_b32 v3, s{S_TAG}, v3","v_or_b32 v3, v3, v5"]
    L.extra=list(check)
    L.issue(6,0,2)
    rt=a.lab('rt'); ok=a.lab('ok')
    a(f"v_cmp_ne_u32 vcc, 0, v3\ns_cbranch_vccz {ok}\ns_mov_b32 s89, {SPIN}\n{rt}:")
    gather(); a("s_waitcnt vmcnt(0)")
    for x in check: a(x)
    a(f"v_cmp_ne_u32 vcc, 0, v3\ns_cbranch_vccz {ok}\ns_sleep 2\ns_sub_u32 s89, s89, 1\ns_cmp_lg_u32 s89, 0\ns_cbranch_scc1 {rt}\n{ok}:")
    L.issue(6,2,4); spf(5); wregs(sched[4])
    L.bar(5,'c5')
    L.issue(7); spf(6); wregs(sched[5])
    L.bar(6,'c6')
    a(f"s_add_u32 m0, s92, {L_CS}\ns_lshr_b32 s61, s92, 1\nbuffer_load_dwordx4 v22, {sr(SWS)}, s88 offen sc1 lds"); vm.op('gd')
    a(f"s_add_u32 m0, s61, {L_STAT}\ns_mov_b32 exec_hi, 0\nbuffer_load_dwordx4 v20, {sr(SWS)}, s87 offen sc1 lds\ns_mov_b32 exec_hi, -1"); vm.op('gd')
    L.m0=None
    u6=CFG.get('u6',3)
    for n in range(0,u6): L.wd(n)
    L.bar(7,'c7','gd')
    L.thr=CFG.get('thr',0)
    for n in range(u6,7): L.wd(n,'w6')
    wregs(99)
    GM=CFG.get('gm',1)
    if not GM: gpoll(vm)
    ls(a,18); a("s_barrier"); ls(a,19)
    u7=CFG.get('u7',10)
    for n in range(7,u7): L.wd(n)
    if GM==2: gpoll(vm)
    if not GM: gcheck(vm)
    else: a(f"s_waitcnt vmcnt({vm.need('w6')})")
    ls(a,20); a("s_barrier"); ls(a,21)
    raise_flag(0)
    if GM==1: gpoll(vm)
    for n in range(u7,13): L.wd(n)
    if GM: gcheck(vm)
    gloads(vm)
    a(f"s_waitcnt vmcnt({vm.need('wd')})")
    for n in range(13,19):
        if n==CFG.get('wp',13): watch_issue(34)
        L.put(n)
    a(f"s_branch {ltail}\n{lspec}:")
    sl[:]=sl_keep
    a(f"s_waitcnt vmcnt({LS.vm.need('x0')})\ns_barrier\ns_waitcnt vmcnt({LS.vm.need('x')})\ns_barrier")
    epoch_tag(a,9)
    rt=a.lab('rt'); ok=a.lab('ok')
    a(f"s_mov_b32 s89, {SPIN}\n{rt}:\nbuffer_load_dwordx4 v[24:27], v20, {sr(SWS)}, s87 offen sc1\ns_waitcnt vmcnt(0)\nv_cmp_ne_u32 vcc, s{S_TAG}, v25\ns_cbranch_vccz {ok}")
    a(f"s_sleep 4\ns_sub_u32 s89, s89, 1\ns_cbranch_scc0 {rt}\n{ok}:")
    a(f"v_lshlrev_b32 v3, 2, v{VL}\nv_add_u32 v3, {L_RSTD}, v3\nds_write_b32 v3, v27")
    for x in flagdelta: a(x)
    a("s_waitcnt lgkmcnt(0)")
    spf(1); spf(2)
    for n in range(0,CFG.get('su2',3)): LS.wd(n)
    a(f"s_barrier")
    spf(3); spf(4)
    rest=[(LS.wd,n) for n in range(CFG.get('su2',3),7)]+[(LS.wreg,n) for n in range(19,28)]+[(LS.wd,n) for n in range(7,19)]
    sv=CFG.get('sv',15)
    for f,n in rest[:sv]: f(n)
    spf(5); spf(6)
    a("s_barrier")
    sk=a.lab('nf')
    a(f"s_cmp_lg_u32 s74, 0\ns_cbranch_scc1 {sk}\ns_atomic_add_x2 s[46:47], s[42:43], 256\n{sk}:")
    for f,n in rest[sv:]: f(n)
    xtile(LS.vm)
    gpoll(LS.vm); gcheck(LS.vm)
    a("s_barrier")
    gloads(LS.vm); watch_issue(34)
    a(f"{ltail}:")
    ls(a,22)
    watch(34)
    ls(a,28)
    a("s_barrier")
    a("s_waitcnt vmcnt(0) lgkmcnt(0)")
    for k in range(4):
        for tb in range(4):
            a(f"{MF} {vr(YA+4*tb,4)}, {vr(GA+4*k,4)}, {vr(CB+(tb*4+k)*4,4)}, {'0' if k==0 else vr(YA+4*tb,4)}")
    a(f"s_barrier")
    raise_flag(1)
    if CFG.get('lprio',2): a(f"s_setprio {CFG.get('lprio',2)}")
    a(f"v_add_u32 v1, s92, v34\nds_write_b128 v1, {vr(XT,4)} offset:{L_STAT-0x20000}\nds_write_b128 v1, {vr(XT+4,4)} offset:{L_STAT-0x20000+1024}")
    for n in range(19,28):
        if n==CFG.get('wl',23): watch_issue(36)
        L.put(n)
    ls(a,27)
    watch(36)
    a("s_waitcnt lgkmcnt(0)")
    ls(a,23)
    a("s_barrier")
    if CFG.get('gap'): ls_dump(a)
    nb=a.lab('nobump')
    a(f"s_or_b32 s60, s2, s74\ns_cbranch_scc1 {nb}\ns_mov_b32 s60, {WS_EP}\nv_mov_b32 v24, s{S_TAG}\ns_mov_b64 exec, 1\nbuffer_store_dword v24, off, {sr(SWS)}, s60 sc1\ns_mov_b64 exec, -1\n{nb}:")
    a(f"s_lshl_b32 s60, s74, 12\ns_add_u32 s60, s60, {L_Y}\nv_lshl_add_u32 v1, v{VL}, 4, s60\ns_nop 3")
    ls(a,29)
    a("s_barrier")
    for tb in range(4):
        a(f"ds_write_b128 v1, {vr(YA+4*tb,4)} offset:{1024*tb}")
    a("s_waitcnt lgkmcnt(0)")
    ls(a,25)
    a("s_barrier")
    ls(a,26)
    if not CFG.get('gap') and not CFG.get('lite'): ls_dump(a)

def kernel_main(a,name):
    kbegin(a,name)
    end=a.lab('end'); ld=a.lab('ld'); sp=a.lab('sp'); s2=a.lab('stage2')
    r1=a.lab('r1'); r3=a.lab('r3'); rj=a.lab('rj'); rt=a.lab('rt'); rz=a.lab('rz'); c0=a.lab('c0'); c1=a.lab('c1')
    a(f"s_cmp_ge_u32 s2, 256\ns_cbranch_scc1 {end}")
    if diag(): a("s_memrealtime s[94:95]")
    a("s_load_dwordx16 s[32:47], s[0:1], 0\ns_load_dwordx8 s[48:55], s[0:1], 64")
    if CFG.get('cpf',1):
        a(f"""
        s_getpc_b64 s[60:61]
        L_pc_here:
        s_bfe_u32 s62, s2, 0x20003
        v_lshl_add_u32 v1, v0, 2, s62
        v_lshlrev_b32 v1, 7, v1
        v_min_u32 v1, L_code_end-L_pc_here-4, v1
        global_load_dword v252, v1, s[60:61]
        """)
    a(f"v_lshrrev_b32 v1, 6, v0\nv_and_b32 v{VL}, 63, v0\nv_readfirstlane_b32 s{S_WAVE}, v1")
    tile_map(a)
    srd_hi(a,SX,XB_BYTES)
    a(f"s_cmp_ge_u32 s{S_WAVE}, 4\ns_cbranch_scc1 {ld}")
    a(f"s_cmp_eq_u32 s{S_WAVE}, 3\ns_cbranch_scc1 {r3}")
    a(f"s_cmp_lg_u32 s{S_WAVE}, 0\ns_cbranch_scc1 {r1}")
    a(f"s_cmp_ge_u32 s{S_J}, 14\ns_cbranch_scc1 {r3}")
    cs_ids(a)
    colsum_loads(a)
    a(f"s_branch {rt}\n{r1}:")
    row_ids(a); rows_loads(a)
    r1b=a.lab('r1b')
    a(f"s_branch {r1b}\n{ld}:")
    L=Loader(a)
    loader_start(a,L)
    loader(a,L)
    a(f"s_endpgm\n{rt}:")
    cs_addr(a,68)
    a(f"s_branch {rz}\n{r1b}:")
    st_addr(a,68)
    a(f"s_lshl4_add_u32 s68, s60, s68\ns_mov_b32 s87, 1\ns_branch {rz}\n{r3}:")
    if CFG.get('warm',1):
        row_ids(a); st_addr(a,72)
        a(f"v_mov_b32 v1, s72")
    a(f"s_waitcnt lgkmcnt(0)")
    epoch_load(a,128)
    if CFG.get('warm',1):
        a(f"global_load_dword v252, v1, s[{P_WS}:{P_WS+1}] sc1")
    a(f"s_mov_b32 s87, 2\n{rz}:\nv_mov_b32 v{SA}, {OOB}")
    ls_first(a)
    if CFG.get('prio',1): a("s_setprio 1")
    scalars2(a)
    sp0=a.lab('sp0'); j0=a.lab('j0')
    a(f"s_cmp_ge_u32 s{S_J}, 14\ns_cbranch_scc1 {sp0}")
    compute1_setup(a,False); epilogue_ffn_setup(a)
    a(f"s_branch {j0}\n{sp0}:")
    spec_setup(a)
    a(f"{j0}:")
    zero_acc(a)
    a(f"s_cmp_eq_u32 s87, 1\ns_cbranch_scc1 {c1}\ns_cmp_eq_u32 s87, 0\ns_cbranch_scc1 {c0}")
    a("s_waitcnt vmcnt(0)"); epoch_tag(a,128)
    a(f"s_branch {rj}\n{c0}:")
    colsum_finish(a)
    a(f"s_branch {rj}\n{c1}:")
    rows_finish(a)
    a(f"{rj}:")
    a(f"s_cmp_ge_u32 s{S_J}, 14\ns_cbranch_scc1 {sp}")
    stage1_ffn(a)
    a(f"{s2}:")
    compute2(a)
    a(f"s_endpgm\n{sp}:")
    stage1_spec(a)
    a(f"s_branch {s2}")
    a(f"{end}:\ns_endpgm\nL_code_end:")

def build(cfg):
    CFG.clear(); CFG.update(cfg)
    a=Asm()
    name=NAME+'_kernel'
    if cfg.get('probe'):
        a(f"; @launch kernel={name} grid=(256,1,1) block=(512,1,1) lds={LDS}")
        a(f"; @launch kernel=probe_kernel grid=(1,1,1) block=(64,1,1) lds=0")
    else:
        a(f"; @launch grid=(256,1,1) block=(512,1,1) lds={LDS}")
    a('.amdgcn_target "amdgcn-amd-amdhsa--gfx950"\n.text')
    kernel_main(a,name); names=[name]
    if cfg.get('probe'): names.append(kernel_probe(a))
    a('.section .rodata,"a"')
    for n in names:
        a('.p2align 6')
        a.l.append(kd(n,256,102,256))
    return a.text()

if __name__=='__main__':
    cfg={}
    for kv in sys.argv[2:]:
        k,v=kv.split('='); cfg[k]=int(v) if v.lstrip('-').isdigit() else v
    t=build(cfg)
    if cfg.get('cyc'): t=t.replace('s_memrealtime','s_memtime')
    open(sys.argv[1],'w').write(t)
```
